```python
import torch

def _softmax(x, axis=-1):
    return torch.softmax(x, dim=axis)
def _gelu(x):
    return torch.nn.functional.gelu(x, approximate="tanh")
def _silu(x):
    return torch.nn.functional.silu(x)
def _sigmoid(x):
    return torch.sigmoid(x)
def _layernorm(x, axis=-1, eps=1e-5):
    m = x.mean(dim=axis, keepdim=True)
    v = x.var(dim=axis, keepdim=True, unbiased=False)
    return (x - m) / torch.sqrt(v + eps)
def _scatter_add(tgt, idx, src, axis=0):
    return tgt.clone().index_add_(axis, idx, src)
def _segment_sum(src, seg, n):
    out = torch.zeros((n,) + src.shape[1:], dtype=src.dtype)
    return out.index_add_(0, seg, src)
def _pad(x, pw):
    flat = tuple(v for pair in reversed(pw) for v in pair)
    return torch.nn.functional.pad(x, flat)

kernel_name = 'concat_heads__ssm_conv_s4__mha_block__prompt'

def setup_inputs():

    _w = (lambda a: (lambda t: t.to(torch.bfloat16) if t.is_floating_point() else t)(torch.as_tensor(a)))
    def _A_setup():
        B, L, D, N = 1, 2048, 512, 128
        A_re = -(lambda _x: torch.exp(torch.as_tensor(_x)))((lambda *s: torch.randn(*s, dtype=torch.bfloat16) * 6.4)(D, N))
        A_im = torch.pi * (lambda *s: torch.randn(*s, dtype=torch.bfloat16) * 0.1)(D, N)
        B_re = (lambda *s: torch.randn(*s, dtype=torch.bfloat16) * 0.2)(D, N)
        B_im = (lambda *s: torch.randn(*s, dtype=torch.bfloat16) * 0.2)(D, N)
        C_re = (lambda *s: torch.randn(*s, dtype=torch.bfloat16) * 0.2)(D, N)
        C_im = (lambda *s: torch.randn(*s, dtype=torch.bfloat16) * 0.2)(D, N)
        log_dt = (lambda *s: torch.randn(*s, dtype=torch.bfloat16) * 0.1)(D) * 0.5 - 4.0
        Dskip = (lambda *s: torch.randn(*s, dtype=torch.bfloat16) * 0.1)(D)
        return {
            "u": _w((lambda *s: torch.randn(*s, dtype=torch.bfloat16) * 0.05)(B, L, D)),
            "A_re": _w(A_re),
            "A_im": _w(A_im),
            "B_re": _w(B_re),
            "B_im": _w(B_im),
            "C_re": _w(C_re),
            "C_im": _w(C_im),
            "log_dt": _w(log_dt),
            "Dskip": _w(Dskip),
        }
    _A_in = _A_setup()

    def _B_setup():
        B, S, D, H = 1, 2048, 512, 32
        return {
            "x": _w((lambda *s: torch.randn(*s, dtype=torch.bfloat16) * 0.2)(B, S, D)),
            "wqkv": _w((lambda *s: torch.randn(*s, dtype=torch.bfloat16) * 0.2)(D, 3 * D)),
            "wo": _w((lambda *s: torch.randn(*s, dtype=torch.bfloat16) * 0.05)(D, D)),
        }
    _B_in = _B_setup()

    return {
        "A_u": _A_in["u"],
        "A_A_re": _A_in["A_re"],
        "A_A_im": _A_in["A_im"],
        "A_B_re": _A_in["B_re"],
        "A_B_im": _A_in["B_im"],
        "A_C_re": _A_in["C_re"],
        "A_C_im": _A_in["C_im"],
        "A_log_dt": _A_in["log_dt"],
        "A_Dskip": _A_in["Dskip"],
        "B_x": _B_in["x"],
        "B_wqkv": _B_in["wqkv"],
        "B_wo": _B_in["wo"],
    }

def reference(A_u, A_A_re, A_A_im, A_B_re, A_B_im, A_C_re, A_C_im, A_log_dt, A_Dskip, B_x, B_wqkv, B_wo):
    def _A_ref(u, A_re, A_im, B_re, B_im, C_re, C_im, log_dt, Dskip):
        Bsz, L, D = u.shape
        dt = torch.exp(log_dt)[:, None]
        A = A_re + 1j * A_im
        Bc = B_re + 1j * B_im
        Cc = C_re + 1j * C_im
        logdA = dt * A
        dB = dt * Bc
        l = (lambda x, dt: x.to(dt))(torch.arange(L), A_re.dtype)
        P = torch.exp(logdA[:, :, None] * l[None, None, :])
        K = torch.einsum("dn,dnl,dn->dl", Cc, P, dB).real
        L2 = 2 * L
        Kp = _pad(K, ((0, 0), (0, L)))
        up = (lambda x, *d: x.permute(*d))(u, 0, 2, 1)
        up = _pad(up, ((0, 0), (0, 0), (0, L)))
        Kf = (lambda x, axes=(-2,-1): torch.fft.rfft2(x.float(), dim=axes))(Kp[:, None, :], axes=(-2, -1))
        Uf = (lambda x, axes=(-2,-1): torch.fft.rfft2(x.float(), dim=axes))(up[:, :, None, :], axes=(-2, -1))
        Yf = Uf * Kf[None, :, :, :]
        y = (lambda x, s, axes=(-2,-1): torch.fft.irfft2(x, s=s, dim=axes).to(torch.bfloat16))(Yf, (1, L2), axes=(-2, -1))[:, :, 0, :L]
        y = (lambda x, *d: x.permute(*d))(y, 0, 2, 1) + u * Dskip[None, None, :]
        return y

    def _B_ref(x, wqkv, wo):
        B, S, D = x.shape
        H = 32
        Dh = D // H
        qkv = (lambda x, *d: x.permute(*d))((x @ wqkv).reshape(B, S, 3, H, Dh), 2, 0, 3, 1, 4)
        q, k, v = qkv[0], qkv[1], qkv[2]
        scores = torch.einsum("bhqd,bhkd->bhqk", q, k) * (Dh ** -0.5)
        p = _softmax(scores, axis=-1)
        o = torch.einsum("bhqk,bhkd->bhqd", p, v)
        return (lambda x, *d: x.permute(*d))(o, 0, 2, 1, 3).reshape(B, S, D) @ wo

    a = _A_ref(A_u, A_A_re, A_A_im, A_B_re, A_B_im, A_C_re, A_C_im, A_log_dt, A_Dskip)
    b = _B_ref(B_x, B_wqkv, B_wo)
    return torch.concatenate([a, b], axis=-1)
```

```python
import sys, struct, math

NAME = "concat_heads__ssm_conv_s4__mha_block__prompt"

QI = 0x000000
KVI = 0x200000
OI = 0x600000
WOI = 0x800000
KD = 0x880000
KD_PITCH = 1536
WS_BYTES = 0x1000000

LOG2E = 1.4426950408889634


def f2u(x):
    return struct.unpack("<I", struct.pack("<f", x))[0]


def fl(x):
    return "0x%08x" % f2u(x)


def v(a, n=1):
    return f"v[{a}:{a+n-1}]" if n > 1 else f"v{a}"


def s(a, n=1):
    return f"s[{a}:{a+n-1}]" if n > 1 else f"s{a}"


class Asm:
    def __init__(self):
        self.L = []

    def __call__(self, txt):
        for line in txt.strip().split("\n"):
            line = line.strip()
            if line:
                self.L.append("    " + line)

    def lab(self, name):
        self.L.append(name + ":")

    def ext(self, other):
        self.L.extend(other.L)

    def text(self):
        return "\n".join(self.L) + "\n"


def srd(a, dst, lo, nbytes):
    a(f"""
    s_mov_b32 s{dst}, s{lo}
    s_and_b32 s{dst+1}, s{lo+1}, 0xffff
    s_mov_b32 s{dst+2}, {hex(nbytes)}
    s_mov_b32 s{dst+3}, 0x00020000
    """)


def head(a, name):
    a.L.append(f".globl {name}")
    a.L.append(".p2align 8")
    a.L.append(f".type {name},@function")
    a.lab(name)


def desc(name, nv, ns=102):
    acc = (nv + 3) // 4 * 4
    return f""".p2align 6
.amdhsa_kernel {name}
  .amdhsa_next_free_vgpr {acc}
  .amdhsa_next_free_sgpr {ns}
  .amdhsa_accum_offset {acc}
  .amdhsa_group_segment_fixed_size 0
  .amdhsa_kernarg_size 120
  .amdhsa_user_sgpr_count 2
  .amdhsa_user_sgpr_kernarg_segment_ptr 1
  .amdhsa_system_sgpr_workgroup_id_x 1
.end_amdhsa_kernel
"""


K1_SLOT = 28672
K1_NS = 5
K1_KBUF = K1_SLOT * K1_NS
K1_KPITCH = 544
K1_LDS = 163840


def gen_k1():
    a = Asm()
    head(a, "k1_kernel")
    a(f"""
    s_cmp_ge_u32 s2, 256
    s_cbranch_scc1 k1_end
    s_load_dwordx16 s[16:31], s[0:1], 0
    s_load_dwordx8 s[32:39], s[0:1], 64
    s_load_dwordx2 s[40:41], s[0:1], 112
    v_lshrrev_b32 v1, 6, v0
    v_and_b32 v0, 63, v0
    s_and_b32 s4, s2, 7
    v_readfirstlane_b32 s3, v1
    s_lshr_b32 s5, s2, 3
    s_waitcnt lgkmcnt(0)
    """)
    srd(a, 44, 40, WS_BYTES)
    a("""
    s_cmp_ge_u32 s3, 6
    s_cbranch_scc1 k1_woi
    s_cmp_ge_u32 s3, 4
    s_cbranch_scc1 k1_kgen
    """)
    srd(a, 48, 34, 2048 * 512 * 2)
    srd(a, 52, 36, 512 * 1536 * 2)
    a(f"""
    s_and_b32 s6, s5, 1
    s_lshl_b32 s7, s4, 1
    s_add_u32 s6, s6, s7            ; fg
    s_lshr_b32 s7, s5, 1            ; tt
    s_lshl_b32 s8, s7, 2
    s_add_u32 s8, s8, s3
    s_lshl_b32 s9, s8, 15
    s_mul_i32 s10, s3, {16*3072}
    s_lshl_b32 s11, s6, 6
    s_add_u32 s10, s10, s11
    s_lshl_b32 s12, s3, 12
    s_mul_i32 s13, s3, 3072
    s_add_u32 s13, s13, 16384
    v_lshrrev_b32 v1, 3, v0         ; lane>>3
    v_and_b32 v7, 7, v0             ; lane&7
    v_lshrrev_b32 v8, 4, v0         ; lane>>4
    v_xor_b32 v7, v7, v8
    v_lshlrev_b32 v1, 10, v1
    v_lshl_add_u32 v2, v7, 4, v1    ; q=0
    v_xor_b32 v3, 64, v2            ; chunk^4
    v_add_u32 v3, 7168, v3          ; q=1
    v_add_u32 v4, {2*7168}, v2      ; q=2
    v_add_u32 v5, {2*7168}, v3      ; q=3
    v_lshrrev_b32 v1, 2, v0
    v_mul_u32_u24 v1, 3072, v1
    v_and_b32 v7, 3, v0
    v_lshl_add_u32 v6, v7, 4, v1
    v_add_u32 v6, s10, v6           ; W voffset
    """)

    def dma_stage(st):
        slot = (st % K1_NS) * K1_SLOT
        a(f"""
        s_add_u32 m0, s12, {slot}
        s_add_u32 s14, s9, {st*128}
        buffer_load_dwordx4 v2, s[48:51], s14 offen lds
        buffer_load_dwordx4 v3, s[48:51], s14 offen offset:1024 lds
        buffer_load_dwordx4 v4, s[48:51], s14 offen offset:2048 lds
        buffer_load_dwordx4 v5, s[48:51], s14 offen offset:3072 lds
        s_add_u32 m0, s13, {slot}
        s_mov_b32 s15, {st*64*3072}
        buffer_load_dwordx4 v6, s[52:55], s15 offen lds
        buffer_load_dwordx4 v6, s[52:55], s15 offen offset:1024 lds
        buffer_load_dwordx4 v6, s[52:55], s15 offen offset:2048 lds
        """)

    for st in range(K1_NS):
        dma_stage(st)
    a(f"""
    v_and_b32 v7, 31, v0            ; s
    v_lshrrev_b32 v13, 5, v0        ; h
    v_bfe_u32 v14, v0, 1, 3         ; (s>>1)&7
    v_xor_b32 v14, v14, v13         ; h ^ f
    v_lshlrev_b32 v15, 7, v7
    v_add_u32 v15, s12, v15         ; w*4096 + s*128
    v_lshl_add_u32 v8, v14, 4, v15
    v_xor_b32 v9, 32, v8
    v_xor_b32 v10, 64, v8
    v_xor_b32 v11, 96, v8
    v_bfe_u32 v14, v0, 2, 2         ; (i>>2)
    v_lshl_add_u32 v14, v13, 3, v14 ; 8h + (i>>2)
    v_lshlrev_b32 v12, 6, v14
    v_bfe_u32 v14, v0, 4, 1
    v_lshl_add_u32 v12, v14, 5, v12
    v_and_b32 v14, 3, v0
    v_lshl_add_u32 v12, v14, 3, v12
    """)
    FA, FB = 20, 36
    ACC = [64, 80, 96]

    def set_cur(st):
        slot = (st % K1_NS) * K1_SLOT
        for kk in range(4):
            a(f"v_add_u32 v{13+kk}, {slot}, v{8+kk}")
        a(f"v_add_u32 v17, {slot}, v12")

    def reads(kk, F):
        a(f"ds_read_b128 {v(F,4)}, v{13+kk}")
        for seg in range(3):
            for half in range(2):
                off = 16384 + kk * 3072 + seg * 1024 + half * 256
                a(f"ds_read_b64_tr_b16 {v(F+4+4*seg+2*half,2)}, v17 offset:{off}")

    def mfmas(F, first):
        x = v(F, 4)
        for seg in range(3):
            w = v(F + 4 + 4 * seg, 4)
            d = v(ACC[seg], 16)
            c = "0" if first else d
            if seg < 2:
                a(f"v_mfma_f32_32x32x16_bf16 {d}, {w}, {x}, {c}")
            else:
                a(f"v_mfma_f32_32x32x16_bf16 {d}, {x}, {w}, {c}")

    set_cur(0)
    a(f"s_waitcnt vmcnt({7*(K1_NS-1)})")
    a("s_barrier")
    reads(0, FA)
    for st in range(8):
        reads(1, FB)
        a("s_waitcnt lgkmcnt(7)")
        mfmas(FA, st == 0)
        reads(2, FA)
        a("s_waitcnt lgkmcnt(7)")
        mfmas(FB, False)
        reads(3, FB)
        a("s_waitcnt lgkmcnt(7)")
        mfmas(FA, False)
        if st < 7:
            last_issued = min(st + K1_NS - 1, 7)
            n_out = last_issued - (st + 1)
            set_cur(st + 1)
            a(f"s_waitcnt vmcnt({7*n_out}) lgkmcnt(0)")
            a("s_barrier")
            reads(0, FA)
            mfmas(FB, False)
            if st + K1_NS <= 7:
                dma_stage(st + K1_NS)
        else:
            a("s_waitcnt lgkmcnt(0)")
            mfmas(FB, False)
    a(f"""
    s_lshl_b32 s10, s6, 17          ; fg*2*65536
    s_lshl_b32 s11, s8, 10
    s_add_u32 s10, s10, s11
    s_add_u32 s10, s10, {QI}        ; Q head A
    s_add_u32 s11, s10, 65536       ; Q head B
    s_lshl_b32 s12, s6, 18          ; fg*2*131072
    s_lshl_b32 s13, s8, 11
    s_add_u32 s12, s12, s13
    s_add_u32 s12, s12, {KVI}
    s_add_u32 s13, s12, 131072
    v_lshlrev_b32 v1, 4, v0         ; lane*16
    v_and_b32 v2, 0x33, v0
    v_bfe_u32 v3, v0, 2, 1
    v_lshl_or_b32 v2, v3, 3, v2
    v_bfe_u32 v3, v0, 3, 1
    v_lshl_or_b32 v2, v3, 2, v2
    v_lshlrev_b32 v2, 4, v2         ; K voffset
    v_and_b32 v3, 15, v0
    v_lshlrev_b32 v3, 4, v3
    v_lshrrev_b32 v4, 5, v0
    v_lshl_add_u32 v3, v4, 8, v3
    v_bfe_u32 v4, v0, 4, 1
    v_lshl_add_u32 v3, v4, 17, v3   ; V voffset
    s_mov_b32 s14, {fl(0.25*LOG2E)}
    """)
    for j in range(16):
        a(f"v_mul_f32 v{64+j}, s14, v{64+j}")
    for seg in range(3):
        for j in range(8):
            a(f"v_cvt_pk_bf16_f32 v{20+8*seg+j}, v{ACC[seg]+2*j}, v{ACC[seg]+2*j+1}")
        if seg == 0:
            a("buffer_store_dwordx4 v[20:23], v1, s[44:47], s10 offen")
            a("buffer_store_dwordx4 v[24:27], v1, s[44:47], s11 offen")
        elif seg == 1:
            a("buffer_store_dwordx4 v[28:31], v2, s[44:47], s12 offen")
            a("buffer_store_dwordx4 v[32:35], v2, s[44:47], s13 offen")
        else:
            a("buffer_store_dwordx4 v[36:39], v3, s[44:47], s12 offen offset:1024")
            a("buffer_store_dwordx4 v[40:43], v3, s[44:47], s12 offen offset:1536")
    a("s_endpgm")

    a.lab("k1_kgen")
    a(f"""
    s_lshl_b32 s6, s4, 6
    s_lshl_b32 s7, s5, 1
    s_add_u32 s6, s6, s7
    s_sub_u32 s7, s3, 4
    s_add_u32 s6, s6, s7            ; channel d
    s_lshl_b32 s8, s6, 8
    s_lshl_b32 s9, s6, 1
    v_lshl_add_u32 v1, v0, 2, s8
    v_mov_b32 v10, s9
    global_load_dword v2, v1, s[18:19]
    global_load_dword v3, v1, s[20:21]
    global_load_ushort v8, v10, s[30:31]
    global_load_dword v4, v1, s[22:23]
    global_load_dword v5, v1, s[24:25]
    global_load_dword v6, v1, s[26:27]
    global_load_dword v7, v1, s[28:29]
    global_load_ushort v9, v10, s[32:33]
    s_mul_i32 s10, s7, {16*K1_KPITCH}
    s_add_u32 s10, s10, {K1_KBUF}
    v_lshl_add_u32 v56, v0, 3, s10
    v_and_b32 v57, 15, v0
    v_mul_u32_u24 v57, {K1_KPITCH}, v57
    v_lshrrev_b32 v58, 4, v0
    v_lshl_add_u32 v57, v58, 4, v57
    v_add_u32 v57, s10, v57
    s_mul_i32 s11, s6, {KD_PITCH}
    s_add_u32 s11, s11, {KD}
    s_mov_b32 s12, 0xffff0000
    s_mov_b32 s13, {fl(LOG2E)}
    s_mov_b32 s14, {fl(1.0/(2*math.pi))}
    s_barrier
    """)
    k = Asm()
    k("""
    s_waitcnt vmcnt(0)
    v_lshlrev_b32 v8, 16, v8
    v_mul_f32 v8, s13, v8
    v_exp_f32 v8, v8
    """)
    for i in range(6):
        k(f"v_lshlrev_b32 v{12+i}, 16, v{2+i}")
        k(f"v_and_b32 v{18+i}, s12, v{2+i}")
    k("""
    v_cvt_pk_bf16_f32 v8, v8, v8
    v_lshlrev_b32 v9, 16, v9
    v_lshlrev_b32 v8, 16, v8
    """)
    R = lambda q, m: 64 + 4 * q + 2 * m
    G1 = lambda m: 32 + 2 * m
    G8 = lambda m: 36 + 2 * m
    G128 = lambda m: 40 + 2 * m
    LC = lambda m: 44 + 2 * m
    T = lambda m: 48 + 2 * m
    for m in range(2):
        b = 12 + 6 * m
        for i in range(4):
            k(f"v_mul_f32 v{b+i}, v8, v{b+i}")
    for m in range(2):
        b = 12 + 6 * m
        k(f"v_mul_f32 v{b}, s13, v{b}")
        k(f"v_mul_f32 v{b+1}, s14, v{b+1}")
        k(f"v_mul_f32 v{R(0,m)}, v{b+4}, v{b+2}")
        k(f"v_mul_f32 v{R(0,m)+1}, v{b+4}, v{b+3}")
        k(f"v_fma_f32 v{R(0,m)}, -v{b+5}, v{b+3}, v{R(0,m)}")
        k(f"v_fma_f32 v{R(0,m)+1}, v{b+5}, v{b+2}, v{R(0,m)+1}")
    for (x, G, neg) in ((8.0, G8, True), (1.0, G1, False), (128.0, G128, False)):
        for m in range(2):
            b = 12 + 6 * m
            t0, t1 = 24 + 4 * m, 25 + 4 * m
            k(f"v_mul_f32 v{t0}, {fl(x)}, v{b}")
            k(f"v_mul_f32 v{t1}, {fl(x)}, v{b+1}")
            k(f"v_exp_f32 v{t0}, v{t0}")
            k(f"v_fract_f32 v{t1}, v{t1}")
            k(f"v_cos_f32 v{G(m)}, v{t1}")
            k(f"v_sin_f32 v{G(m)+1}, v{t1}")
        for m in range(2):
            t0 = 24 + 4 * m
            k(f"v_mul_f32 v{G(m)}, v{t0}, v{G(m)}")
            if neg:
                k(f"v_mul_f32_e64 v{G(m)+1}, -v{t0}, v{G(m)+1}")
            else:
                k(f"v_mul_f32 v{G(m)+1}, v{t0}, v{G(m)+1}")

    def cmul2(dst, src, mul):
        for m in range(2):
            k(f"v_pk_mul_f32 {v(T(m),2)}, {v(src(m),2)}, {v(mul(m),2)} op_sel:[0,0] op_sel_hi:[1,0]")
        for m in range(2):
            k(f"v_pk_fma_f32 {v(dst(m),2)}, {v(src(m),2)}, {v(mul(m),2)}, {v(T(m),2)} op_sel:[1,1,0] op_sel_hi:[0,1,1] neg_lo:[1,0,0]")

    cnt = [0]

    def emit(row, src):
        p = 52 + 2 * (cnt[0] & 1)
        cnt[0] += 1
        for m in range(2):
            k(f"v_cvt_pk_bf16_f32 v{p+m}, v{src(m)}, v{src(m)+1}")
        k(f"ds_write_b64 v56, {v(p,2)} offset:{row*K1_KPITCH}")

    def readfr(F):
        for ks in range(8):
            k(f"ds_read_b128 {v(F+4*ks,4)}, v57 offset:{ks*64}")

    LF, HF = 96, 128
    k("v_mov_b32 v60, 0x3f80")
    k("v_mov_b32 v61, 0x3f80")
    k("ds_write_b64 v56, v[60:61]")
    emit(1, G8)
    cmul2(LC, G8, G8)
    emit(2, LC)
    for b in range(3, 16):
        cmul2(LC, LC, G8)
        emit(b, LC)
    readfr(LF)
    Rq = lambda q: (lambda m: R(q, m))

    def mf(D, transposed):
        k("s_waitcnt lgkmcnt(0)")
        for ks in range(8):
            A_, B_ = v(HF + 4 * ks, 4), v(LF + 4 * ks, 4)
            if transposed:
                A_, B_ = B_, A_
            c = "0" if ks == 0 else v(D, 4)
            k(f"v_mfma_f32_16x16x32_bf16 {v(D,4)}, {A_}, {B_}, {c}")

    emit(0, Rq(0))
    for q in range(1, 8):
        cmul2(Rq(q), Rq(q - 1), G1)
        emit(q, Rq(q))
    for q in range(8):
        cmul2(Rq(q), Rq(q), G128)
        emit(8 + q, Rq(q))
    readfr(HF)
    row = 0
    for rep in range(2):
        for q in (0, 2, 4, 6):
            cmul2(Rq(q), Rq(q), G128)
            if row == 0:
                pass
            emit(row, Rq(q))
            row += 1
        if rep == 0:
            mf(160, False)
    for rep in range(4):
        for q in (0, 4):
            cmul2(Rq(q), Rq(q), G128)
            emit(row, Rq(q))
            row += 1
    readfr(HF)
    for row in range(9):
        cmul2(Rq(0), Rq(0), G128)
        emit(row, Rq(0))
        if row == 3:
            mf(164, False)
    readfr(HF)
    k(f"""
    v_and_b32 v2, 15, v0            ; b
    v_lshrrev_b32 v3, 4, v0         ; g
    v_lshrrev_b32 v4, 5, v0         ; g>>1
    v_and_b32 v5, 1, v3
    v_lshlrev_b32 v6, 8, v4
    v_lshl_add_u32 v6, v2, 4, v6
    v_lshl_add_u32 v6, v5, 3, v6
    v_sub_u32 v7, 3, v4             ; g<2 ? 3 : 2
    v_lshlrev_b32 v7, v7, v2
    v_lshl_add_u32 v7, v3, 7, v7
    v_mul_u32_u24 v10, 60, v4
    v_add3_u32 v10, v10, v7, 4      ; addrB - 512
    v_lshlrev_b32 v11, 5, v2
    v_lshl_add_u32 v11, v3, 3, v11
    v_cmp_eq_u32 vcc, 0, v0
    s_nop 1
    v_cndmask_b32 v9, 0, v9, vcc
    v_add_f32 v160, v160, v9
    v_cvt_pk_bf16_f32 v12, v160, v161
    v_cvt_pk_bf16_f32 v13, v162, v163
    buffer_store_dwordx2 v[12:13], v6, s[44:47], s11 offen
    v_cvt_pk_bf16_f32 v14, v164, v165
    v_cvt_pk_bf16_f32 v15, v166, v167
    buffer_store_dword v14, v7, s[44:47], s11 offen offset:512
    buffer_store_dword v15, v10, s[44:47], s11 offen offset:512
    """)
    mf(168, True)
    k("""
    s_nop 7
    v_cvt_pk_bf16_f32 v16, v168, v169
    v_cvt_pk_bf16_f32 v17, v170, v171
    buffer_store_dwordx2 v[16:17], v11, s[44:47], s11 offen offset:1024
    """)
    n = len(k.L)
    pos = [int(n * (i + 1) / 8.0) for i in range(7)]
    out = []
    for i, line in enumerate(k.L):
        if i in pos:
            out.append("    s_barrier")
        out.append(line)
    a.L.extend(out)
    a("s_endpgm")

    a.lab("k1_woi")
    a(f"""
    s_lshl_b32 s6, s2, 1
    s_add_u32 s6, s6, s3
    s_sub_u32 s6, s6, 6             ; id
    s_lshr_b32 s7, s6, 5            ; nb
    s_and_b32 s8, s6, 31            ; hd
    s_lshl_b32 s8, s8, 14
    s_lshl_b32 s7, s7, 6
    s_add_u32 s7, s7, s8
    v_and_b32 v1, 3, v0
    v_bfe_u32 v2, v0, 3, 2
    v_lshl_add_u32 v1, v2, 2, v1
    v_bfe_u32 v2, v0, 2, 1
    v_lshl_add_u32 v1, v2, 4, v1    ; n local
    v_lshrrev_b32 v2, 5, v0
    v_lshlrev_b32 v2, 12, v2
    v_lshl_add_u32 v1, v1, 1, v2
    v_add_u32 v1, s7, v1
    v_add_u32 v2, 8192, v1
    """)
    for e in range(8):
        a(f"global_load_ushort v{4+e}, v{1+e//4}, s[38:39] offset:{(e%4)*1024}")
    a(f"""
    s_lshl_b32 s6, s6, 10
    s_add_u32 s6, s6, {WOI}
    v_lshlrev_b32 v3, 4, v0
    s_waitcnt vmcnt(0)
    v_lshl_or_b32 v12, v5, 16, v4
    v_lshl_or_b32 v13, v7, 16, v6
    v_lshl_or_b32 v14, v9, 16, v8
    v_lshl_or_b32 v15, v11, 16, v10
    buffer_store_dwordx4 v[12:15], v3, s[44:47], s6 offen
    """)
    a.lab("k1_end")
    a("s_endpgm")
    return a, desc("k1_kernel", 176)


CV_BASE = 131072
CV_KS = 4160
CV_U = 8320
CV_CH = 12928
K2_LDS = 163840


def gen_k2():
    a = Asm()
    head(a, "k2_kernel")
    a(f"""
    s_cmp_ge_u32 s2, 256
    s_cbranch_scc1 k2_end
    s_load_dwordx2 s[16:17], s[0:1], 0
    s_load_dwordx2 s[18:19], s[0:1], 96
    s_load_dwordx2 s[40:41], s[0:1], 112
    v_lshrrev_b32 v1, 6, v0
    v_and_b32 v0, 63, v0
    s_and_b32 s4, s2, 7
    v_readfirstlane_b32 s3, v1
    s_lshr_b32 s5, s2, 3
    v_lshlrev_b32 v1, 4, v0
    s_waitcnt lgkmcnt(0)
    """)
    srd(a, 44, 40, WS_BYTES)
    a("""
    s_cmp_ge_u32 s3, 8
    s_cbranch_scc1 k2_conv
    """)
    Q, K, V0, V1, IDX, KA, VA = 4, 8, 12, 16, 20, 21, 22
    NEGM, S0, S1, O = 32, 48, 64, 80
    a(f"""
    s_lshl_b32 s6, s4, 2
    s_lshr_b32 s7, s5, 3
    s_add_u32 s6, s6, s7            ; head
    s_and_b32 s7, s5, 7
    s_lshl_b32 s7, s7, 3
    s_add_u32 s7, s7, s3            ; qt
    s_lshl_b32 s8, s6, 17
    s_add_u32 s8, s8, {KVI}
    s_mul_i32 s9, s3, 3072
    s_mov_b32 m0, s9
    s_add_u32 s10, s8, s9
    buffer_load_dwordx4 v1, s[44:47], s10 offen lds
    buffer_load_dwordx4 v1, s[44:47], s10 offen offset:1024 lds
    buffer_load_dwordx4 v1, s[44:47], s10 offen offset:2048 lds
    s_lshl_b32 s11, s6, 16
    s_lshl_b32 s12, s7, 10
    s_add_u32 s11, s11, s12
    s_add_u32 s11, s11, {QI}
    buffer_load_dwordx4 {v(Q,4)}, v1, s[44:47], s11 offen
    s_lshl_b32 s9, s3, 12
    s_add_u32 s9, s9, {24*1024}
    s_mov_b32 m0, s9
    s_add_u32 s10, s8, s9
    buffer_load_dwordx4 v1, s[44:47], s10 offen lds
    buffer_load_dwordx4 v1, s[44:47], s10 offen offset:1024 lds
    buffer_load_dwordx4 v1, s[44:47], s10 offen offset:2048 lds
    buffer_load_dwordx4 v1, s[44:47], s10 offen offset:3072 lds
    s_mul_i32 s9, s3, 9216
    s_add_u32 s9, s9, {56*1024}
    """)
    for grp in range(3):
        a(f"""
        s_mov_b32 m0, s9
        s_add_u32 s10, s8, s9
        buffer_load_dwordx4 v1, s[44:47], s10 offen lds
        buffer_load_dwordx4 v1, s[44:47], s10 offen offset:1024 lds
        buffer_load_dwordx4 v1, s[44:47], s10 offen offset:2048 lds
        s_add_u32 s9, s9, 3072
        """)
    a(f"""
    s_lshl_b32 s12, s7, 15
    s_lshl_b32 s13, s6, 10
    s_add_u32 s12, s12, s13
    s_add_u32 s12, s12, {OI}        ; O dest
    s_mov_b32 s20, 0x0000ffff
    s_mov_b32 s21, 0x0000ffff
    s_mov_b32 s22, 1
    s_mov_b32 s23, 3
    s_mov_b32 s24, 0
    v_mov_b32 v{IDX}, 0xdddddddd
    v_and_b32 v23, 15, v0
    v_lshrrev_b32 v24, 5, v0
    v_lshlrev_b32 v23, 4, v23
    v_lshl_add_u32 v2, v24, 8, v23
    v_add_u32 v2, 1024, v2
    v_and_b32 v23, 27, v0
    v_cmp_eq_u32 vcc, 16, v23
    v_mov_b32 v24, 0x3f803f80
    s_nop 0
    v_cndmask_b32 v23, 0, v24, vcc
    """)
    for r in range(8):
        a(f"v_mov_b32 v{V0+r}, v23")
    a(f"""
    s_waitcnt vmcnt(13)
    s_barrier
    ds_read_b128 {v(K,4)}, v1
    s_waitcnt lgkmcnt(0)
    v_mfma_f32_32x32x16_bf16 {v(S0,16)}, {v(K,4)}, {v(Q,4)}, 0
    s_nop 11
    v_max3_f32 v23, v{S0}, v{S0+1}, v{S0+2}
    """)
    for j in range(3, 15, 2):
        a(f"v_max3_f32 v23, v23, v{S0+j}, v{S0+j+1}")
    a(f"v_max_f32 v23, v23, v{S0+15}")
    a.lab("k2_start")
    a(f"""
    v_mov_b32 v24, v23
    v_mov_b32 v{KA}, v1
    v_mov_b32 v{VA}, v2
    v_permlane32_swap_b32 v23, v24
    s_mov_b64 exec, s[20:21]
    ds_read_b128 {v(V0,4)}, v{VA}
    ds_read_b128 {v(V1,4)}, v{VA} offset:512
    s_mov_b64 exec, -1
    v_max_f32 v23, v23, v24
    """)
    for j in range(16):
        a(f"v_sub_f32 v{NEGM+j}, 0, v23")
    for j in range(16):
        a(f"v_mov_b32 v{O+j}, 0")
    a(f"""
    v_mfma_f32_32x32x16_bf16 {v(S0,16)}, {v(K,4)}, {v(Q,4)}, {v(NEGM,16)}
    ds_read_b128 {v(K,4)}, v{KA} offset:2048
    s_mov_b32 s25, 0
    s_waitcnt lgkmcnt(0)
    s_nop 4
    """)
    a.lab("k2_loop")
    a(f"""
    s_cmp_eq_u32 s25, s22
    s_cbranch_scc1 k2_bar1
    s_cmp_eq_u32 s25, s23
    s_cbranch_scc1 k2_bar2
    """)
    a.lab("k2_body")
    U = 8
    for i in range(U):
        Sc, Sn = (S0, S1) if i % 2 == 0 else (S1, S0)
        a(f"""
        s_waitcnt lgkmcnt(2)
        v_mfma_f32_32x32x16_bf16 {v(Sn,16)}, {v(K,4)}, {v(Q,4)}, {v(NEGM,16)}
        ds_read_b128 {v(K,4)}, v{KA} offset:{(i+2)*2048}
        """)
        for j in range(10):
            a(f"v_exp_f32 v{Sc+j}, v{Sc+j}")
        a(f"""
        s_waitcnt lgkmcnt(2)
        v_smfmac_f32_32x32x32_bf16 {v(O,16)}, {v(V0,4)}, {v(Sc,8)}, v{IDX}
        s_mov_b64 exec, s[20:21]
        ds_read_b128 {v(V0,4)}, v{VA} offset:{(i+1)*2048}
        s_mov_b64 exec, -1
        """)
        for j in range(10, 16):
            a(f"v_exp_f32 v{Sc+j}, v{Sc+j}")
        a(f"""
        s_waitcnt lgkmcnt(2)
        s_nop 0
        v_smfmac_f32_32x32x32_bf16 {v(O,16)}, {v(V1,4)}, {v(Sc+8,8)}, v{IDX}
        s_mov_b64 exec, s[20:21]
        ds_read_b128 {v(V1,4)}, v{VA} offset:{(i+1)*2048+512}
        s_mov_b64 exec, -1
        """)
    a(f"""
    v_add_u32 v{KA}, {U*2048}, v{KA}
    v_add_u32 v{VA}, {U*2048}, v{VA}
    s_add_u32 s25, s25, 1
    s_cmp_lt_u32 s25, {64//U}
    s_cbranch_scc1 k2_loop
    s_nop 7
    s_waitcnt lgkmcnt(0)
    v_mul_f32 v23, 0, v{O+8}
    """)
    for j in range(8):
        a(f"v_fma_f32 v23, 0, v{O+j}, v23")
    a(f"""
    v_add_f32 v23, v23, v{O+8}
    v_mov_b32 v24, {fl(2.0**100)}
    v_cmp_nlt_f32 vcc, v23, v24
    v_rcp_f32 v25, v{O+8}
    s_cmp_lg_u32 s24, 0
    s_cbranch_scc1 k2_store
    s_cmp_lg_u64 vcc, 0
    s_cbranch_scc1 k2_fallback
    """)
    a.lab("k2_store")
    for j in range(8):
        a(f"v_mul_f32 v{O+j}, v25, v{O+j}")
    for j in range(4):
        a(f"v_cvt_pk_bf16_f32 v{26+j}, v{O+2*j}, v{O+2*j+1}")
    a("buffer_store_dwordx4 v[26:29], v1, s[44:47], s12 offen")
    a("s_endpgm")
    a.lab("k2_bar1")
    a("""
    s_waitcnt vmcnt(9)
    s_barrier
    s_branch k2_body
    """)
    a.lab("k2_bar2")
    a("""
    s_waitcnt vmcnt(0)
    s_barrier
    s_branch k2_body
    """)
    a.lab("k2_fallback")
    a(f"""
    s_mov_b32 s24, 1
    s_mov_b32 s22, 1000
    s_mov_b32 s23, 1000
    s_mov_b32 s25, 0
    v_mov_b32 v23, 0xff800000
    v_add_u32 v{KA}, {63*2048}, v1
    """)
    a.lab("k2_fb_loop")
    a(f"""
    ds_read_b128 {v(K,4)}, v{KA}
    v_subrev_u32 v{KA}, 2048, v{KA}
    s_waitcnt lgkmcnt(0)
    v_mfma_f32_32x32x16_bf16 {v(S0,16)}, {v(K,4)}, {v(Q,4)}, 0
    s_nop 11
    """)
    for j in range(0, 16, 2):
        a(f"v_max3_f32 v23, v23, v{S0+j}, v{S0+j+1}")
    a(f"""
    s_add_u32 s25, s25, 1
    s_cmp_lt_u32 s25, 64
    s_cbranch_scc1 k2_fb_loop
    s_branch k2_start
    """)

    a.lab("k2_conv")
    srd(a, 48, 16, 2048 * 512 * 2)
    srd(a, 52, 18, 2048 * 1024 * 2)
    a(f"""
    s_sub_u32 s3, s3, 8             ; j
    s_lshl_b32 s6, s4, 6
    s_lshl_b32 s7, s5, 1
    s_add_u32 s6, s6, s7            ; d0
    s_barrier
    s_lshl_b32 s8, s3, 19           ; 512j*1024
    s_lshl_b32 s9, s6, 1
    s_add_u32 s8, s8, s9
    v_lshlrev_b32 v2, 10, v0
    """)
    for i in range(8):
        a(f"buffer_load_dword v{64+i}, v2, s[48:51], s8 offen")
        if i < 7:
            a(f"s_add_u32 s8, s8, 65536")
    a(f"""
    s_and_b32 s10, s3, 1
    s_add_u32 s11, s6, s10
    s_mul_i32 s11, s11, {KD_PITCH}
    s_add_u32 s11, s11, {KD}
    v_lshlrev_b32 v3, 3, v0
    v_lshlrev_b32 v4, 2, v0
    buffer_load_dwordx3 v[72:74], v3, s[44:47], s11 offen
    buffer_load_dwordx2 v[76:77], v4, s[44:47], s11 offen offset:512
    buffer_load_dwordx2 v[78:79], v4, s[44:47], s11 offen offset:768
    buffer_load_dwordx2 v[80:81], v4, s[44:47], s11 offen offset:1024
    s_mul_i32 s12, s10, {CV_CH}
    s_add_u32 s12, s12, {CV_BASE}
    s_lshl_b32 s13, s3, 10
    s_sub_u32 s13, {CV_BASE + CV_U + 2*2047 - 128*7}, s13
    v_lshlrev_b32 v5, 1, v0
    v_sub_u32 v5, s13, v5
    s_mov_b32 s14, 0x01000100
    s_mov_b32 s15, 0x03020302
    s_mov_b32 s26, 0x05040302
    s_barrier
    s_waitcnt vmcnt(4)
    """)
    for i in range(8):
        a(f"ds_write_b16 v5, v{64+i} offset:{128*(7-i)}")
        a(f"ds_write_b16_d16_hi v5, v{64+i} offset:{128*(7-i)+CV_CH}")
    a(f"""
    s_cmp_ge_u32 s3, 2
    s_cbranch_scc1 k2_cv_zero
    s_waitcnt vmcnt(0)
    v_add_u32 v3, s12, v3
    v_add_u32 v6, s12, v1
    v_lshlrev_b32 v7, 5, v0
    v_add_u32 v7, s12, v7
    """)
    EE = lambda d, r: a(f"v_perm_b32 v{d}, v{r}, v{r}, s14")
    OO = lambda d, r: a(f"v_perm_b32 v{d}, v{r}, v{r}, s15")
    EO = lambda d, r: a(f"v_mov_b32 v{d}, v{r}")
    OE = lambda d, r: a(f"v_perm_b32 v{d}, v{r+1}, v{r}, s26")
    FF = lambda d, r: a(f"v_perm_b32 v{d}, v{r+1}, v{r+1}, s14")
    a(f"ds_write_b64 v3, v[72:73] offset:32")
    OE(8, 72)
    OE(9, 73)
    a(f"ds_write_b64 v3, v[8:9] offset:{32+CV_KS}")
    EE(10, 76); OE(11, 76); EO(12, 76); FF(13, 76)
    a(f"ds_write_b64 v3, v[10:11] offset:{32+512}")
    a(f"ds_write_b64 v3, v[12:13] offset:{32+512+CV_KS}")
    for d, f in zip(range(16, 24), (EE, EO, OO, FF, EE, OO, OE, FF)):
        f(d, 78)
    a(f"ds_write_b128 v6, v[16:19] offset:{32+1024}")
    a(f"ds_write_b128 v6, v[20:23] offset:{32+1024+CV_KS}")
    for d, f in zip(range(24, 40), (EE, EE, EO, OO, OO, OO, FF, FF, EE, EE, OO, OO, OO, OE, FF, FF)):
        f(d, 80)
    a(f"ds_write_b128 v7, v[24:27] offset:{32+2048}")
    a(f"ds_write_b128 v7, v[28:31] offset:{32+2048+16}")
    a(f"ds_write_b128 v7, v[32:35] offset:{32+2048+CV_KS}")
    a(f"ds_write_b128 v7, v[36:39] offset:{32+2048+16+CV_KS}")
    a(f"""
    v_mov_b32 v40, 0
    v_mov_b32 v41, 0
    v_mov_b32 v42, 0
    v_mov_b32 v43, 0
    v_mov_b32 v44, 0
    v_mov_b32 v45, 0
    v_mov_b32 v46, 0
    v_lshlrev_b32 v47, 16, v72
    s_mov_b64 exec, 1
    ds_write_b128 v6, v[40:43]
    ds_write_b128 v6, v[40:43] offset:16
    ds_write_b128 v6, v[40:43] offset:{CV_KS}
    ds_write_b128 v6, v[44:47] offset:{CV_KS+16}
    s_mov_b64 exec, -1
    s_branch k2_cv_go
    """)
    a.lab("k2_cv_zero")
    a(f"""
    v_add_u32 v3, s12, v3
    v_mov_b32 v40, 0
    v_mov_b32 v41, 0
    ds_write_b64 v3, v[40:41] offset:{CV_U+4096}
    """)
    a.lab("k2_cv_go")
    a(f"""
    v_and_b32 v13, 15, v0           ; r / c
    v_lshrrev_b32 v14, 4, v0        ; g
    v_add_u32 v15, 1, v13
    v_lshrrev_b32 v16, 1, v15
    v_lshl_add_u32 v16, v14, 2, v16
    v_lshlrev_b32 v16, 2, v16
    v_and_b32 v15, 1, v15           ; r even
    v_mul_u32_u24 v15, {CV_KS}, v15
    v_add3_u32 v4, v15, v16, s27
    """.replace("s27", "0"))
    a(f"v_add_u32 v4, {CV_BASE}, v4")
    for ch in range(2):
        for mp in range(4):
            if ch == 0 and mp == 0:
                continue
            a(f"v_add_u32 v{4+4*ch+mp}, {ch*CV_CH + mp*1024}, v4")
    a(f"""
    v_lshlrev_b32 v15, 5, v13
    v_lshlrev_b32 v16, 4, v14
    v_sub_u32 v12, v16, v15
    v_add_u32 v12, {CV_BASE + CV_U + 480}, v12
    v_lshlrev_b32 v13, 15, v13
    v_lshl_add_u32 v13, v14, 13, v13
    """)
    for j in range(16):
        a(f"v_mov_b32 v{96+j}, 0")
    a(f"""
    s_mov_b32 s25, 0
    s_waitcnt vmcnt(0) lgkmcnt(0)
    s_barrier
    s_cmp_eq_u32 s3, 1
    s_cbranch_scc1 k2_cv1
    s_cmp_eq_u32 s3, 2
    s_cbranch_scc1 k2_cv2
    s_cmp_eq_u32 s3, 3
    s_cbranch_scc1 k2_cv3
    """)
    AF, BF, AC = 32, 64, 96
    for j in range(4):
        c1, c2 = j, 7 - j
        a.lab(f"k2_cv{j}")
        for ch in range(2):
            for m in range(c2 + 1):
                base = 4 + 4 * ch + m // 2
                o = 128 * (m & 1)
                a(f"ds_read2_b32 {v(AF+4*m,2)}, v{base} offset0:{o} offset1:{o+1}")
                a(f"ds_read2_b32 {v(AF+4*m+2,2)}, v{base} offset0:{o+2} offset1:{o+3}")
                kk = c2 - m
                a(f"ds_read_b128 {v(BF+4*kk,4)}, v12 offset:{512*(7-kk)+ch*CV_CH}")
            a("s_waitcnt lgkmcnt(0)")
            d1, d2 = v(AC + 8 * ch, 4), v(AC + 8 * ch + 4, 4)
            seq = [(d2, m, c2 - m) for m in range(c2 + 1)]
            seq1 = [(d1, m, c1 - m) for m in range(c1 + 1)]
            merged = []
            while seq or seq1:
                if seq:
                    merged.append(seq.pop(0))
                if seq1:
                    merged.append(seq1.pop(0))
            for d, m, kk in merged:
                a(f"v_mfma_f32_16x16x32_bf16 {d}, {v(AF+4*m,4)}, {v(BF+4*kk,4)}, {d}")
        for r in range(4, 13):
            a(f"v_add_u32 v{r}, 64, v{r}")
        a(f"""
        s_add_u32 s25, s25, 1
        s_cmp_lt_u32 s25, 8
        s_cbranch_scc1 k2_cv{j}
        s_lshl_b32 s9, s6, 1
        s_add_u32 s8, s9, {c1*256*2048}
        s_add_u32 s9, s9, {c2*256*2048}
        s_branch k2_cv_out
        """)
    a.lab("k2_cv_out")
    a("""
    s_add_u32 s10, s8, 4096
    s_add_u32 s11, s9, 4096
    """)
    for cb in range(2):
        for jj in range(4):
            a(f"v_cvt_pk_bf16_f32 v{16+4*cb+jj}, v{AC+4*cb+jj}, v{AC+8+4*cb+jj}")
    for cb in range(2):
        for jj in range(4):
            so = 8 + cb + 2 * (jj // 2)
            a(f"buffer_store_dword v{16+4*cb+jj}, v13, s[52:55], s{so} offen offset:{(jj%2)*2048}")
    a.lab("k2_end")
    a("s_endpgm")
    return a, desc("k2_kernel", 112)


K3_LDS = 131072


def gen_k3():
    a = Asm()
    head(a, "k3_kernel")
    a(f"""
    s_cmp_ge_u32 s2, 256
    s_cbranch_scc1 k3_end
    s_load_dwordx2 s[18:19], s[0:1], 96
    s_load_dwordx2 s[40:41], s[0:1], 112
    v_lshrrev_b32 v1, 6, v0
    v_and_b32 v0, 63, v0
    s_and_b32 s4, s2, 7
    v_readfirstlane_b32 s3, v1
    s_lshr_b32 s5, s2, 3
    v_lshlrev_b32 v1, 4, v0
    s_lshl_b32 s6, s4, 2
    s_lshr_b32 s7, s5, 3
    s_add_u32 s6, s6, s7            ; rt
    s_and_b32 s7, s5, 7             ; ct
    s_lshl_b32 s8, s6, 16
    s_add_u32 s8, s8, {OI}
    s_lshl_b32 s9, s7, 16
    s_add_u32 s9, s9, {WOI - 65536}
    s_cmp_ge_u32 s3, 2
    s_cselect_b32 s8, s9, s8
    s_lshl_b32 s9, s3, 15
    s_add_u32 s8, s8, s9
    s_waitcnt lgkmcnt(0)
    """)
    srd(a, 44, 40, WS_BYTES)
    srd(a, 52, 18, 2048 * 1024 * 2)
    for grp in range(8):
        a(f"""
        s_mov_b32 m0, s9
        s_add_u32 s9, s9, 4096
        buffer_load_dwordx4 v1, s[44:47], s8 offen lds
        buffer_load_dwordx4 v1, s[44:47], s8 offen offset:1024 lds
        buffer_load_dwordx4 v1, s[44:47], s8 offen offset:2048 lds
        buffer_load_dwordx4 v1, s[44:47], s8 offen offset:3072 lds
        s_add_u32 s8, s8, 4096
        """)
    a(f"""
    s_and_b32 s10, s3, 1            ; qh
    s_lshr_b32 s11, s3, 1           ; nh
    s_lshl_b32 s12, s10, 15
    s_lshl_b32 s13, s11, 15
    s_add_u32 s13, s13, 65536
    v_add_u32 v2, s12, v1
    v_add_u32 v3, s13, v1
    s_lshl_b32 s12, s6, 1
    s_add_u32 s12, s12, s10
    s_lshl_b32 s12, s12, 16         ; (2rt+qh)*32*2048
    s_lshl_b32 s13, s7, 1
    s_add_u32 s13, s13, s11
    s_lshl_b32 s13, s13, 6
    s_add_u32 s12, s12, s13
    s_add_u32 s12, s12, 1024
    v_and_b32 v4, 31, v0
    v_lshlrev_b32 v4, 11, v4
    v_lshrrev_b32 v5, 5, v0
    v_lshl_add_u32 v4, v5, 5, v4
    """)
    D = 80
    for c in range(4):
        a(f"s_waitcnt vmcnt({24-8*c})")
        a("s_barrier")
        for i in range(8):
            hd = 8 * c + i
            a(f"ds_read_b128 {v(16+8*i,4)}, v2 offset:{hd*1024}")
            a(f"ds_read_b128 {v(20+8*i,4)}, v3 offset:{hd*1024}")
        for i in range(8):
            a(f"s_waitcnt lgkmcnt({14-2*i})")
            cc = "0" if (c == 0 and i == 0) else v(D, 16)
            a(f"v_mfma_f32_32x32x16_bf16 {v(D,16)}, {v(20+8*i,4)}, {v(16+8*i,4)}, {cc}")
    a("s_nop 11")
    for j in range(8):
        a(f"v_cvt_pk_bf16_f32 v{8+j}, v{D+2*j}, v{D+2*j+1}")
    a("""
    buffer_store_dwordx4 v[8:11], v4, s[52:55], s12 offen
    buffer_store_dwordx4 v[12:15], v4, s[52:55], s12 offen offset:16
    """)
    a.lab("k3_end")
    a("s_endpgm")
    return a, desc("k3_kernel", 96)


def build(extra_empty=0):
    ks = [gen_k1(), gen_k2(), gen_k3()]
    hdr = [
        "; generated by work/gen.py",
        f"; @launch kernel=k1_kernel grid=(256,1,1) block=(512,1,1) lds={K1_LDS}",
        f"; @launch kernel=k2_kernel grid=(256,1,1) block=(768,1,1) lds={K2_LDS}",
        f"; @launch kernel=k3_kernel grid=(256,1,1) block=(256,1,1) lds={K3_LDS}",
    ]
    for i in range(extra_empty):
        hdr.append("; @launch kernel=kz_kernel grid=(256,1,1) block=(256,1,1) lds=0")
    out = "\n".join(hdr) + "\n"
    out += '.amdgcn_target "amdgcn-amd-amdhsa--gfx950"\n.text\n'
    for a, d in ks:
        out += a.text()
    if extra_empty:
        z = Asm()
        head(z, "kz_kernel")
        z("s_endpgm")
        out += z.text()
    out += '.section .rodata,"a"\n'
    for a, d in ks:
        out += d
    if extra_empty:
        out += desc("kz_kernel", 8)
    return out


if __name__ == "__main__":
    path = sys.argv[1] if len(sys.argv) > 1 else f"cdna_kernels/{NAME}.s"
    extra = int(sys.argv[2]) if len(sys.argv) > 2 else 0
    open(path, "w").write(build(extra))
    print("wrote", path)
```

```python
import sys, struct, math

NAME = "concat_heads__ssm_conv_s4__mha_block__prompt"

QI = 0x000000
KVI = 0x200000
OI = 0x600000
UT = 0xA00000
KD = 0x880000
KD_PITCH = 1536
WS_BYTES = 0x1000000

LOG2E = 1.4426950408889634


def f2u(x):
    return struct.unpack("<I", struct.pack("<f", x))[0]


def fl(x):
    return "0x%08x" % f2u(x)


def v(a, n=1):
    return f"v[{a}:{a+n-1}]" if n > 1 else f"v{a}"


def s(a, n=1):
    return f"s[{a}:{a+n-1}]" if n > 1 else f"s{a}"


class Asm:
    def __init__(self):
        self.L = []

    def __call__(self, txt):
        for line in txt.strip().split("\n"):
            line = line.strip()
            if line:
                self.L.append("    " + line)

    def lab(self, name):
        self.L.append(name + ":")

    def ext(self, other):
        self.L.extend(other.L)

    def text(self):
        return "\n".join(self.L) + "\n"


def srd(a, dst, lo, nbytes):
    a(f"""
    s_mov_b32 s{dst}, s{lo}
    s_and_b32 s{dst+1}, s{lo+1}, 0xffff
    s_mov_b32 s{dst+2}, {hex(nbytes)}
    s_mov_b32 s{dst+3}, 0x00020000
    """)


import os
DBG = int(os.environ.get("DBG", "0"))


def dbg_start(a):
    if not DBG:
        return
    a("""
    s_memtime s[88:89]
    s_memrealtime s[90:91]
    """)
    for k in range(8):
        a(f"s_mov_b32 s{64+2*k}, 0")


def dbg_ts(a, k):
    if not DBG:
        return
    a(f"s_memtime s[{64+2*k}:{65+2*k}]")


TL = 0xC00000
def dbg_end(a, kid):
    if not DBG:
        return
    a(f"""
    s_waitcnt vmcnt(0)
    s_memtime s[80:81]
    s_memrealtime s[82:83]
    s_getreg_b32 s84, hwreg(HW_REG_HW_ID)
    s_getreg_b32 s85, hwreg(HW_REG_XCC_ID)
    s_lshl_b32 s86, s2, 4
    s_add_u32 s86, s86, s94
    s_lshl_b32 s86, s86, 6
    s_add_u32 s86, s86, {TL + kid*0x40000}
    s_mov_b64 exec, -1
    s_waitcnt lgkmcnt(0)
    v_mov_b32 v2, s90
    v_mov_b32 v3, s82
    v_mov_b32 v4, s84
    v_mov_b32 v5, s85
    buffer_store_dwordx4 v[2:5], off, s[44:47], s86
    v_mov_b32 v6, s64
    v_mov_b32 v7, s66
    v_mov_b32 v8, s68
    v_mov_b32 v9, s70
    buffer_store_dwordx4 v[6:9], off, s[44:47], s86 offset:16
    v_mov_b32 v10, s72
    v_mov_b32 v11, s74
    v_mov_b32 v12, s76
    v_mov_b32 v13, s78
    buffer_store_dwordx4 v[10:13], off, s[44:47], s86 offset:32
    v_mov_b32 v14, s88
    v_mov_b32 v15, s80
    buffer_store_dwordx2 v[14:15], off, s[44:47], s86 offset:48
    """)


def head(a, name):
    a.L.append(f".globl {name}")
    a.L.append(".p2align 8")
    a.L.append(f".type {name},@function")
    a.lab(name)


def desc(name, nv, ns=102):
    acc = (nv + 3) // 4 * 4
    return f""".p2align 6
.amdhsa_kernel {name}
  .amdhsa_next_free_vgpr {acc}
  .amdhsa_next_free_sgpr {ns}
  .amdhsa_accum_offset {acc}
  .amdhsa_group_segment_fixed_size 0
  .amdhsa_kernarg_size 120
  .amdhsa_user_sgpr_count 2
  .amdhsa_user_sgpr_kernarg_segment_ptr 1
  .amdhsa_system_sgpr_workgroup_id_x 1
.end_amdhsa_kernel
"""
```

```python
from genlib import *

E = lambda k, d: int(os.environ.get(k, str(d)))

K1_SLOT = 28672
K1_NS = 4
K1_KBUF = K1_SLOT * K1_NS
K1_KPITCH = 528
K1_UBUF = K1_KBUF + 4 * 16 * K1_KPITCH
K1_LDS = K1_UBUF + 8192


def cost(line):
    t = line.strip()
    if t.startswith(("v_exp", "v_sin", "v_cos", "v_rcp")):
        return 8
    if t.startswith("v_mfma"):
        return 16
    if t.startswith("s_waitcnt"):
        return 100
    return 4


def splice(lines, nbar):
    tot = sum(cost(l) for l in lines)
    out, acc, k = [], 0, 1
    for l in lines:
        if k <= nbar and acc >= tot * k / (nbar + 1):
            out.append("    s_barrier")
            k += 1
        out.append(l)
        acc += cost(l)
    assert k == nbar + 1
    return out


def gen_k1():
    a = Asm()
    head(a, "k1_kernel")
    a(f"""
    s_cmp_ge_u32 s2, 256
    s_cbranch_scc1 k1_end
    """)
    dbg_start(a)
    a(f"""
    s_load_dwordx8 s[32:39], s[0:1], 64
    s_load_dwordx16 s[16:31], s[0:1], 0
    s_load_dwordx2 s[40:41], s[0:1], 112
    v_lshrrev_b32 v1, 6, v0
    v_and_b32 v0, 63, v0
    s_and_b32 s4, s2, 7             ; xcd
    v_readfirstlane_b32 s3, v1
    v_readfirstlane_b32 s94, v1
    s_lshr_b32 s5, s2, 3            ; idx
    s_and_b32 s15, s3, 3
    s_lshr_b32 s14, s3, 2
    s_cmp_eq_u32 s14, 1
    s_cbranch_scc1 k1_kgen
    s_and_b32 s6, s4, 1
    s_lshl_b32 s6, s6, 3
    s_and_b32 s7, s5, 7
    s_add_u32 s6, s6, s7            ; fg
    s_lshr_b32 s7, s4, 1
    s_lshl_b32 s7, s7, 2
    s_lshr_b32 s8, s5, 3
    s_add_u32 s7, s7, s8            ; tt
    s_lshl_b32 s8, s7, 2
    s_add_u32 s8, s8, s15
    s_lshl_b32 s9, s8, 15
    s_lshl_b32 s12, s15, 12
    v_lshrrev_b32 v1, 3, v0         ; lane>>3
    v_and_b32 v7, 7, v0             ; lane&7
    v_lshrrev_b32 v8, 4, v0         ; lane>>4
    v_xor_b32 v7, v7, v8
    v_lshlrev_b32 v1, 10, v1
    v_lshl_add_u32 v2, v7, 4, v1    ; q=0
    v_xor_b32 v3, 64, v2            ; chunk^4
    v_add_u32 v3, 7168, v3          ; q=1
    v_add_u32 v4, {2*7168}, v2      ; q=2
    v_add_u32 v5, {2*7168}, v3      ; q=3
    v_lshrrev_b32 v13, 5, v0        ; h
    v_bfe_u32 v14, v0, 2, 2         ; (i>>2)
    v_lshl_add_u32 v14, v13, 3, v14 ; 8h + (i>>2)
    v_lshlrev_b32 v12, 6, v14
    v_bfe_u32 v14, v0, 4, 1
    v_lshl_add_u32 v12, v14, 5, v12
    v_and_b32 v14, 3, v0
    v_lshl_add_u32 v12, v14, 3, v12
    s_cmp_eq_u32 s14, 2
    s_cbranch_scc1 k1_load
    s_waitcnt lgkmcnt(0)
    """)

    def dma_x(st):
        slot = (st % K1_NS) * K1_SLOT
        a(f"""
        s_add_u32 m0, s12, {slot}
        s_add_u32 s14, s9, {st*128}
        buffer_load_dwordx4 v2, s[48:51], s14 offen lds
        buffer_load_dwordx4 v3, s[48:51], s14 offen offset:1024 lds
        buffer_load_dwordx4 v4, s[48:51], s14 offen offset:2048 lds
        buffer_load_dwordx4 v5, s[48:51], s14 offen offset:3072 lds
        """)

    def dma_w(st):
        slot = (st % K1_NS) * K1_SLOT
        a(f"""
        s_add_u32 m0, s13, {slot}
        s_mov_b32 s14, {st*64*3072}
        buffer_load_dwordx4 v6, s[52:55], s14 offen lds
        buffer_load_dwordx4 v6, s[52:55], s14 offen offset:1024 lds
        buffer_load_dwordx4 v6, s[52:55], s14 offen offset:2048 lds
        """)

    srd(a, 48, 34, 2048 * 512 * 2)
    for st in range(K1_NS):
        dma_x(st)
    srd(a, 44, 40, WS_BYTES)
    a(f"""
    v_and_b32 v7, 31, v0            ; s
    v_bfe_u32 v14, v0, 1, 3         ; (s>>1)&7
    v_xor_b32 v14, v14, v13         ; h ^ f
    v_lshlrev_b32 v15, 7, v7
    v_add_u32 v15, s12, v15         ; w*4096 + s*128
    v_lshl_add_u32 v8, v14, 4, v15
    v_xor_b32 v9, 32, v8
    v_xor_b32 v10, 64, v8
    v_xor_b32 v11, 96, v8
    v_add_u32 v13, {2*K1_SLOT}, v8
    v_add_u32 v14, {2*K1_SLOT}, v9
    v_add_u32 v15, {2*K1_SLOT}, v10
    v_add_u32 v16, {2*K1_SLOT}, v11
    v_add_u32 v17, {2*K1_SLOT}, v12
    """)
    FA, FB = 20, 36
    ACC = [64, 80, 96]

    def reads(st, kk, F):
        sl = st % K1_NS
        xb = (8 if sl < 2 else 13) + kk
        wb = 12 if sl < 2 else 17
        so = (sl % 2) * K1_SLOT
        a(f"ds_read_b128 {v(F,4)}, v{xb} offset:{so}")
        for seg in range(3):
            for half in range(2):
                off = so + 16384 + kk * 3072 + seg * 1024 + half * 256
                a(f"ds_read_b64_tr_b16 {v(F+4+4*seg+2*half,2)}, v{wb} offset:{off}")

    def mfmas(F, first):
        x = v(F, 4)
        for seg in range(3):
            w = v(F + 4 + 4 * seg, 4)
            d = v(ACC[seg], 16)
            c = "0" if first else d
            if seg < 2:
                a(f"v_mfma_f32_32x32x16_bf16 {d}, {w}, {x}, {c}")
            else:
                a(f"v_mfma_f32_32x32x16_bf16 {d}, {x}, {w}, {c}")

    a(f"""
    s_lshl_b32 s10, s6, 17          ; fg*2*65536
    s_lshl_b32 s11, s8, 10
    s_add_u32 s10, s10, s11
    s_add_u32 s10, s10, {QI}        ; Q head A
    s_add_u32 s11, s10, 65536       ; Q head B
    s_lshl_b32 s12, s6, 18          ; fg*2*131072
    s_lshl_b32 s13, s8, 11
    s_add_u32 s12, s12, s13
    s_add_u32 s12, s12, {KVI}
    s_add_u32 s13, s12, 131072
    v_lshlrev_b32 v1, 4, v0         ; lane*16
    v_and_b32 v2, 0x33, v0
    v_bfe_u32 v3, v0, 2, 1
    v_lshl_or_b32 v2, v3, 3, v2
    v_bfe_u32 v3, v0, 3, 1
    v_lshl_or_b32 v2, v3, 2, v2
    v_lshlrev_b32 v2, 4, v2         ; K voffset
    v_and_b32 v3, 15, v0
    v_lshlrev_b32 v3, 4, v3
    v_lshrrev_b32 v4, 5, v0
    v_lshl_add_u32 v3, v4, 8, v3
    v_bfe_u32 v4, v0, 4, 1
    v_lshl_add_u32 v3, v4, 17, v3   ; V voffset
    s_mov_b32 s14, {fl(0.25*LOG2E)}
    """)
    a(f"s_waitcnt vmcnt({4*(K1_NS-1)})")
    dbg_ts(a, 0)
    a("s_barrier")
    dbg_ts(a, 1)
    reads(0, 0, FA)
    for st in range(8):
        reads(st, 1, FB)
        a("s_waitcnt lgkmcnt(7)")
        mfmas(FA, st == 0)
        reads(st, 2, FA)
        a("s_waitcnt lgkmcnt(7)")
        mfmas(FB, False)
        reads(st, 3, FB)
        a("s_waitcnt lgkmcnt(7)")
        mfmas(FA, False)
        if st < 7:
            if st + 1 < K1_NS:
                a(f"s_waitcnt vmcnt({4*(K1_NS-2-st)}) lgkmcnt(0)")
            else:
                a("s_waitcnt lgkmcnt(0)")
            a("s_barrier")
            if st in (0, 2, 4, 6):
                dbg_ts(a, 2 + st // 2)
            reads(st + 1, 0, FA)
            mfmas(FB, False)
        else:
            a("s_waitcnt lgkmcnt(0)")
            mfmas(FB, False)
    dbg_ts(a, 6)
    a("s_nop 9")
    for j in range(16):
        a(f"v_mul_f32 v{64+j}, s14, v{64+j}")
    for seg in range(3):
        for j in range(8):
            a(f"v_cvt_pk_bf16_f32 v{20+8*seg+j}, v{ACC[seg]+2*j}, v{ACC[seg]+2*j+1}")
        if seg == 0:
            a(f"buffer_store_dwordx4 v[20:23], v1, s[44:47], s10 offen{STF}")
            a(f"buffer_store_dwordx4 v[24:27], v1, s[44:47], s11 offen{STF}")
        elif seg == 1:
            a(f"buffer_store_dwordx4 v[28:31], v2, s[44:47], s12 offen{STF}")
            a(f"buffer_store_dwordx4 v[32:35], v2, s[44:47], s13 offen{STF}")
        else:
            a(f"buffer_store_dwordx4 v[36:39], v3, s[44:47], s12 offen offset:1024{STF}")
            a(f"buffer_store_dwordx4 v[40:43], v3, s[44:47], s12 offen offset:1536{STF}")
    dbg_end(a, 0)
    a("s_endpgm")

    a.lab("k1_load")
    a(f"""
    s_mul_i32 s10, s15, {16*3072}
    s_lshl_b32 s11, s6, 6
    s_add_u32 s10, s10, s11
    s_mul_i32 s13, s15, 3072
    s_add_u32 s13, s13, 16384
    v_lshrrev_b32 v1, 2, v0
    v_mul_u32_u24 v8, 3072, v1
    v_and_b32 v7, 3, v0
    v_lshl_add_u32 v6, v7, 4, v8
    v_add_u32 v6, s10, v6           ; W voffset
    v_sub_u32 v1, 15, v1
    v_lshlrev_b32 v1, 10, v1
    v_lshl_add_u32 v9, v7, 4, v1    ; u voffset: (15 - l/4)*1024 + (l%4)*16
    s_lshr_b32 s10, s15, 1
    s_lshl_b32 s11, s5, 1
    s_add_u32 s10, s10, s11
    s_lshl_b32 s10, s10, 5          ; t0
    s_and_b32 s11, s15, 1
    s_lshl_b32 s8, s4, 1
    s_add_u32 s11, s11, s8
    s_lshl_b32 s11, s11, 5          ; c0
    s_lshl_b32 s7, s10, 10
    s_lshl_b32 s8, s11, 1
    s_add_u32 s7, s7, s8
    s_lshl_b32 s8, s15, 11
    s_add_u32 s8, s8, {K1_UBUF}     ; u scratch
    s_waitcnt lgkmcnt(0)
    """)
    srd(a, 52, 36, 512 * 1536 * 2)
    for st in range(K1_NS):
        dma_w(st)
    srd(a, 56, 16, 2048 * 512 * 2)
    a(f"""
    s_mov_b32 m0, s8
    s_add_u32 s14, s7, 16384
    buffer_load_dwordx4 v9, s[56:59], s14 offen lds
    s_add_u32 m0, s8, 1024
    s_lshl_b32 s11, s11, 12
    buffer_load_dwordx4 v9, s[56:59], s7 offen lds
    s_lshl_b32 s10, s10, 1
    s_sub_u32 s11, s11, s10
    s_add_u32 s11, s11, {UT + 2016*2}
    v_add_u32 v12, s8, v12
    v_and_b32 v10, 31, v0
    v_lshlrev_b32 v10, 12, v10
    v_lshl_add_u32 v10, v13, 4, v10
    """)
    srd(a, 48, 34, 2048 * 512 * 2)
    srd(a, 44, 40, WS_BYTES)
    a("s_waitcnt vmcnt(11)")
    dbg_ts(a, 0)
    a("""
    s_barrier
    s_waitcnt vmcnt(8)
    s_barrier
    """)
    dma_x(4); dma_w(4)
    a("""
    s_waitcnt vmcnt(12)
    s_barrier
    """)
    dma_x(5); dma_w(5)
    a("""
    s_waitcnt vmcnt(14)
    s_barrier
    """)
    dbg_ts(a, 1)
    dma_x(6); dma_w(6)
    a(f"""
    ds_read_b64_tr_b16 v[16:17], v12
    ds_read_b64_tr_b16 v[18:19], v12 offset:256
    ds_read_b64_tr_b16 v[20:21], v12 offset:1024
    ds_read_b64_tr_b16 v[22:23], v12 offset:1280
    s_waitcnt lgkmcnt(2)
    buffer_store_dwordx4 v[16:19], v10, s[44:47], s11 offen{STF}
    s_waitcnt lgkmcnt(0)
    buffer_store_dwordx4 v[20:23], v10, s[44:47], s11 offen offset:32{STF}
    s_waitcnt vmcnt(16)
    """)
    dbg_ts(a, 2)
    a("s_barrier")
    dma_x(7); dma_w(7)
    a("s_waitcnt vmcnt(16)")
    dbg_ts(a, 3)
    a("""
    s_barrier
    s_waitcnt vmcnt(9)
    """)
    dbg_ts(a, 4)
    a("""
    s_barrier
    s_waitcnt vmcnt(0)
    """)
    dbg_ts(a, 5)
    dbg_end(a, 0)
    a("s_endpgm")

    a.lab("k1_kgen")
    a(f"""
    s_lshl_b32 s6, s4, 6
    s_lshl_b32 s7, s5, 1
    s_add_u32 s6, s6, s7
    s_lshr_b32 s7, s15, 1
    s_add_u32 s6, s6, s7            ; channel d
    s_lshl_b32 s8, s6, 8
    s_lshl_b32 s9, s6, 1
    v_lshl_add_u32 v1, v0, 2, s8
    v_mov_b32 v10, s9
    s_mul_i32 s10, s15, {16*K1_KPITCH}
    s_add_u32 s10, s10, {K1_KBUF}
    v_lshl_add_u32 v56, v0, 3, s10
    v_and_b32 v57, 15, v0
    v_mul_u32_u24 v57, {K1_KPITCH}, v57
    v_lshrrev_b32 v58, 4, v0
    v_lshl_add_u32 v57, v58, 4, v57
    v_add_u32 v57, s10, v57
    s_mul_i32 s11, s6, {KD_PITCH}
    s_add_u32 s11, s11, {KD}
    s_mov_b32 s12, 0xffff0000
    s_mov_b32 s13, {fl(LOG2E)}
    s_mov_b32 s14, {fl(1.0/(2*math.pi))}
    s_waitcnt lgkmcnt(0)
    global_load_ushort v8, v10, s[30:31]
    global_load_dword v2, v1, s[18:19]
    global_load_dword v3, v1, s[20:21]
    global_load_dword v4, v1, s[22:23]
    global_load_dword v5, v1, s[24:25]
    global_load_dword v6, v1, s[26:27]
    global_load_dword v7, v1, s[28:29]
    global_load_ushort v9, v10, s[32:33]
    """)
    srd(a, 44, 40, WS_BYTES)
    a("""
    s_bitcmp1_b32 s15, 0
    s_barrier
    s_cbranch_scc1 k1_kgen_b
    """)
    R = lambda q, m: 64 + 4 * q + 2 * m
    G1 = lambda m: 32 + 2 * m
    G8 = lambda m: 36 + 2 * m
    G128 = lambda m: 40 + 2 * m
    LC = lambda m: 44 + 2 * m
    T = lambda m: 48 + 2 * m
    Rq = lambda q: (lambda m: R(q, m))

    def kgen(role):
        k = Asm()
        k("""
        s_waitcnt vmcnt(0)
        v_lshlrev_b32 v8, 16, v8
        v_mul_f32 v8, s13, v8
        v_exp_f32 v8, v8
        """)
        for i in range(6):
            k(f"v_lshlrev_b32 v{12+i}, 16, v{2+i}")
            k(f"v_and_b32 v{18+i}, s12, v{2+i}")
        k("""
        v_cvt_pk_bf16_f32 v8, v8, v8
        v_lshlrev_b32 v9, 16, v9
        v_lshlrev_b32 v8, 16, v8
        """)
        for m in range(2):
            b = 12 + 6 * m
            for i in range(4):
                k(f"v_mul_f32 v{b+i}, v8, v{b+i}")
        for m in range(2):
            b = 12 + 6 * m
            k(f"v_mul_f32 v{b}, s13, v{b}")
            k(f"v_mul_f32 v{b+1}, s14, v{b+1}")
            k(f"v_mul_f32 v{R(0,m)}, v{b+4}, v{b+2}")
            k(f"v_mul_f32 v{R(0,m)+1}, v{b+4}, v{b+3}")
            k(f"v_fma_f32 v{R(0,m)}, -v{b+5}, v{b+3}, v{R(0,m)}")
            k(f"v_fma_f32 v{R(0,m)+1}, v{b+5}, v{b+2}, v{R(0,m)+1}")
        pw = ((1024.0, G1, False), (128.0, G128, False), (8.0, G8, True)) if role == 0 else \
             ((1.0, G1, False), (128.0, G128, False))
        for (x, G, neg) in pw:
            for m in range(2):
                b = 12 + 6 * m
                t0, t1 = 24 + 4 * m, 25 + 4 * m
                k(f"v_mul_f32 v{t0}, {fl(x)}, v{b}")
                k(f"v_mul_f32 v{t1}, {fl(x)}, v{b+1}")
                k(f"v_exp_f32 v{t0}, v{t0}")
                k(f"v_fract_f32 v{t1}, v{t1}")
                k(f"v_cos_f32 v{G(m)}, v{t1}")
                k(f"v_sin_f32 v{G(m)+1}, v{t1}")
            for m in range(2):
                t0 = 24 + 4 * m
                k(f"v_mul_f32 v{G(m)}, v{t0}, v{G(m)}")
                if neg:
                    k(f"v_mul_f32_e64 v{G(m)+1}, -v{t0}, v{G(m)+1}")
                else:
                    k(f"v_mul_f32 v{G(m)+1}, v{t0}, v{G(m)+1}")

        def cmul2(dst, src, mul):
            for m in range(2):
                k(f"v_pk_mul_f32 {v(T(m),2)}, {v(src(m),2)}, {v(mul(m),2)} op_sel:[0,0] op_sel_hi:[1,0]")
            for m in range(2):
                k(f"v_pk_fma_f32 {v(dst(m),2)}, {v(src(m),2)}, {v(mul(m),2)}, {v(T(m),2)} op_sel:[1,1,0] op_sel_hi:[0,1,1] neg_lo:[1,0,0]")

        cnt = [0]

        def emit(row, src):
            p = 52 + 2 * (cnt[0] & 1)
            cnt[0] += 1
            for m in range(2):
                k(f"v_cvt_pk_bf16_f32 v{p+m}, v{src(m)}, v{src(m)+1}")
            k(f"ds_write_b64 v56, {v(p,2)} offset:{row*K1_KPITCH}")

        def readfr(kk, F, addr=57):
            for ks in range(8):
                kk(f"ds_read_b128 {v(F+4*ks,4)}, v{addr} offset:{ks*64}")

        t = Asm()
        if role == 0:
            HF, LF = 96, 128
            cmul2(Rq(0), Rq(0), G1)
            emit(0, Rq(0))
            for row in range(1, 9):
                cmul2(Rq(0), Rq(0), G128)
                emit(row, Rq(0))
            readfr(k, HF)
            k("v_mov_b32 v60, 0x3f80")
            k("v_mov_b32 v61, 0x3f80")
            k("ds_write_b64 v56, v[60:61]")
            emit(1, G8)
            cmul2(LC, G8, G8)
            emit(2, LC)
            for b in range(3, 16):
                cmul2(LC, LC, G8)
                emit(b, LC)
            readfr(k, LF)
            k("""
            v_and_b32 v2, 15, v0
            v_lshrrev_b32 v3, 4, v0
            v_lshlrev_b32 v11, 5, v2
            v_lshl_add_u32 v11, v3, 3, v11
            s_waitcnt lgkmcnt(0)
            """)
            t("s_barrier")
            for ks in range(8):
                c = "0" if ks == 0 else v(160, 4)
                t(f"v_mfma_f32_16x16x32_bf16 {v(160,4)}, {v(LF+4*ks,4)}, {v(HF+4*ks,4)}, {c}")
            t(f"""
            s_nop 7
            v_cvt_pk_bf16_f32 v16, v160, v161
            v_cvt_pk_bf16_f32 v17, v162, v163
            buffer_store_dwordx2 v[16:17], v11, s[44:47], s11 offen offset:1024
            """)
        else:
            H0, H1, LF = 96, 128, 64
            emit(0, Rq(0))
            for q in range(1, 8):
                cmul2(Rq(q), Rq(q - 1), G1)
                emit(q, Rq(q))
            for q in range(8):
                cmul2(Rq(q), Rq(q), G128)
                emit(8 + q, Rq(q))
            readfr(k, H0)
            row = 0
            for rep in range(2):
                for q in (0, 2, 4, 6):
                    cmul2(Rq(q), Rq(q), G128)
                    emit(row, Rq(q))
                    row += 1
            for rep in range(4):
                for q in (0, 4):
                    cmul2(Rq(q), Rq(q), G128)
                    emit(row, Rq(q))
                    row += 1
            readfr(k, H1)
            k(f"v_subrev_u32 v58, {16*K1_KPITCH}, v57")
            t("s_barrier")
            readfr(t, LF, 58)
            t(f"""
            v_and_b32 v2, 15, v0            ; b
            v_lshrrev_b32 v3, 4, v0         ; g
            v_lshrrev_b32 v4, 5, v0         ; g>>1
            v_and_b32 v5, 1, v3
            v_lshlrev_b32 v6, 8, v4
            v_lshl_add_u32 v6, v2, 4, v6
            v_lshl_add_u32 v6, v5, 3, v6
            v_sub_u32 v7, 3, v4             ; g<2 ? 3 : 2
            v_lshlrev_b32 v7, v7, v2
            v_lshl_add_u32 v7, v3, 7, v7
            v_mul_u32_u24 v10, 60, v4
            v_add3_u32 v10, v10, v7, 4      ; addrB - 512
            v_cmp_eq_u32 vcc, 0, v0
            s_nop 1
            v_cndmask_b32 v9, 0, v9, vcc
            """)
            for ks in range(8):
                t(f"s_waitcnt lgkmcnt({7-ks})")
                for D, H in ((160, H0), (164, H1)):
                    c = "0" if ks == 0 else v(D, 4)
                    t(f"v_mfma_f32_16x16x32_bf16 {v(D,4)}, {v(H+4*ks,4)}, {v(LF+4*ks,4)}, {c}")
            t(f"""
            s_nop 6
            v_add_f32 v160, v160, v9
            v_cvt_pk_bf16_f32 v12, v160, v161
            v_cvt_pk_bf16_f32 v13, v162, v163
            buffer_store_dwordx2 v[12:13], v6, s[44:47], s11 offen
            v_cvt_pk_bf16_f32 v14, v164, v165
            v_cvt_pk_bf16_f32 v15, v166, v167
            buffer_store_dword v14, v7, s[44:47], s11 offen offset:512
            buffer_store_dword v15, v10, s[44:47], s11 offen offset:512
            """)
        nb = E("KG_NB", 4)
        a.L.extend(splice(k.L, nb))
        dbg_ts(a, 0)
        a.ext(t)
        dbg_end(a, 0)
        a("s_endpgm")

    kgen(0)
    a.lab("k1_kgen_b")
    kgen(1)
    a.lab("k1_end")
    a("s_endpgm")
    return a, desc("k1_kernel", 168)


STF = os.environ.get("STF", "")
if STF:
    STF = " " + STF

TP = 2064
CV_BASE = 64 * TP
CV_KS = 4160
CV_U = 8320
CV_CH = 12928
K2_LDS = 163840


def gen_k2():
    a = Asm()
    head(a, "k2_kernel")
    a(f"""
    s_cmp_ge_u32 s2, 256
    s_cbranch_scc1 k2_end
    """)
    dbg_start(a)
    a(f"""
    s_load_dwordx2 s[40:41], s[0:1], 112
    s_load_dwordx4 s[16:19], s[0:1], 88
    v_lshrrev_b32 v1, 6, v0
    v_and_b32 v0, 63, v0
    s_and_b32 s4, s2, 7
    v_readfirstlane_b32 s3, v1
    v_readfirstlane_b32 s94, v1
    s_lshr_b32 s5, s2, 3
    v_lshlrev_b32 v1, 4, v0
    s_lshl_b32 s6, s4, 2
    s_lshr_b32 s7, s5, 3
    s_add_u32 s6, s6, s7            ; head
    s_lshl_b32 s8, s6, 17
    s_add_u32 s8, s8, {KVI}         ; kv base
    s_mul_i32 s9, s3, {TP}
    s_lshl_b32 s10, s3, 11
    s_add_u32 s10, s10, s8
    s_mov_b32 m0, s9
    s_mov_b32 s46, {hex(WS_BYTES)}
    s_mov_b32 s47, 0x00020000
    s_and_b32 s7, s5, 7
    s_lshl_b32 s7, s7, 3
    s_add_u32 s7, s7, s3            ; qt
    s_lshl_b32 s11, s6, 16
    s_lshl_b32 s12, s7, 10
    s_add_u32 s11, s11, s12
    s_add_u32 s11, s11, {QI}
    s_cmp_ge_u32 s3, 8
    s_waitcnt lgkmcnt(0)
    s_mov_b32 s44, s40
    s_and_b32 s45, s41, 0xffff
    s_cbranch_scc1 k2_conv
    """.replace("s_and_b32 s45, s41, 0xffff\n    s_cbranch_scc1 k2_conv", "s_and_b32 s45, s41, 0xffff\n    s_cmp_ge_u32 s3, 8\n    s_cbranch_scc1 k2_conv"))

    def tile_dma():
        a(f"""
        buffer_load_dwordx4 v1, s[44:47], s10 offen lds
        buffer_load_dwordx4 v1, s[44:47], s10 offen offset:1024 lds
        s_add_u32 m0, m0, {TP}
        s_add_u32 s10, s10, 2048
        """)

    Q, IDX, KA, VA0, VA1 = 4, 2, 3, 28, 29
    KB = [8, 12]
    V0B = [16, 96]
    V1B = [20, 100]
    NEGM, O = 32, 80
    SB = [48, 64]
    NA = E("K2_NA", 3)
    NC = (64 - 12 - 8 * NA) // 4
    NC0 = E("K2_NC0", 3)
    assert 12 + 8 * NA + 4 * NC == 64
    a(f"""
    buffer_load_dwordx4 v1, s[44:47], s10 offen lds
    buffer_load_dwordx4 {v(Q,4)}, v1, s[44:47], s11 offen
    buffer_load_dwordx4 v1, s[44:47], s10 offen offset:1024 lds
    s_lshl_b32 s12, s7, 15
    s_lshl_b32 s13, s6, 10
    s_add_u32 s12, s12, s13
    s_add_u32 s12, s12, {OI}        ; O dest
    s_mov_b32 s22, 1
    s_mov_b32 s23, {E("K2_B2", 2)}
    s_mov_b32 s24, 0
    v_mov_b32 v{IDX}, 0xdddddddd
    v_and_b32 v23, 15, v0
    v_lshrrev_b32 v24, 5, v0
    v_lshlrev_b32 v23, 4, v23
    v_lshl_add_u32 v30, v24, 8, v23
    v_add_u32 v30, 1024, v30
    v_add_u32 v31, 512, v30
    v_and_b32 v23, 16, v0
    v_cmp_eq_u32 vcc, 16, v23
    v_mov_b32 v24, 2048
    s_mul_i32 s9, s3, {NA}
    s_add_u32 s9, s9, 12
    v_cndmask_b32 v30, v30, v24, vcc
    v_cndmask_b32 v31, v31, v24, vcc
    s_lshl_b32 s10, s9, 11
    s_add_u32 s10, s10, s8
    s_mul_i32 s9, s9, {TP}
    s_mov_b32 m0, s9
    s_nop 0
    """)
    for i in range(NA):
        tile_dma()
    if E("K2_PRIO", 0) == 1:
        a("""
        s_cmp_lt_u32 s3, 4
        s_cbranch_scc1 k2_np
        s_setprio 1
        """)
        a.lab("k2_np")
    a(f"s_waitcnt vmcnt({2*NA})")
    dbg_ts(a, 0)
    a(f"""
    s_barrier
    ds_read_b128 {v(KB[0],4)}, v1
    """)
    dbg_ts(a, 1)
    a(f"""
    s_waitcnt lgkmcnt(0)
    v_mfma_f32_32x32x16_bf16 {v(SB[0],16)}, {v(KB[0],4)}, {v(Q,4)}, 0
    s_nop 11
    v_max3_f32 v23, v{SB[0]}, v{SB[0]+1}, v{SB[0]+2}
    """)
    for j in range(3, 15, 2):
        a(f"v_max3_f32 v23, v23, v{SB[0]+j}, v{SB[0]+j+1}")
    a(f"v_max_f32 v23, v23, v{SB[0]+15}")
    a.lab("k2_start")
    a(f"""
    v_mov_b32 v24, v23
    v_mov_b32 v{KA}, v1
    v_mov_b32 v{VA0}, v30
    v_permlane32_swap_b32 v23, v24
    v_mov_b32 v{VA1}, v31
    ds_read_b128 {v(KB[1],4)}, v{KA} offset:{TP}
    ds_read_b128 {v(V0B[0],4)}, v{VA0}
    v_max_f32 v23, v23, v24
    """)
    for j in range(16):
        a(f"v_sub_f32 v{NEGM+j}, 0, v23")
    a(f"ds_read_b128 {v(V1B[0],4)}, v{VA1}")
    for j in range(4):
        a(f"v_mov_b32 v{V1B[1]+j}, 0")
    a(f"v_mfma_f32_32x32x16_bf16 {v(SB[0],16)}, {v(KB[0],4)}, {v(Q,4)}, {v(NEGM,16)}")
    for j in range(8):
        a(f"v_mov_b32 v{SB[1]+8+j}, 0")
    for j in range(16):
        a(f"v_mov_b32 v{O+j}, 0")
    a("s_mov_b32 s25, 0")
    a.lab("k2_loop")
    a(f"""
    s_cmp_eq_u32 s25, s22
    s_cbranch_scc1 k2_bar1
    s_cmp_eq_u32 s25, s23
    s_cbranch_scc1 k2_bar2
    """)
    a.lab("k2_body")
    U = 8
    for i in range(U):
        p, q = i % 2, (i + 1) % 2
        Sc, Sn = SB[p], SB[q]
        ex = lambda j: a(f"v_exp_f32 v{Sc+j}, v{Sc+j}")
        ex(0); ex(1)
        a("s_waitcnt lgkmcnt(0)")
        a(f"v_smfmac_f32_32x32x32_bf16 {v(O,16)}, {v(V1B[q],4)}, {v(Sn+8,8)}, v{IDX}")
        a(f"ds_read_b128 {v(KB[p],4)}, v{KA} offset:{(i+2)*TP}")
        ex(2)
        a(f"ds_read_b128 {v(V0B[q],4)}, v{VA0} offset:{(i+1)*TP}")
        ex(3)
        a(f"ds_read_b128 {v(V1B[q],4)}, v{VA1} offset:{(i+1)*TP}")
        ex(4)
        a(f"v_mfma_f32_32x32x16_bf16 {v(Sn,16)}, {v(KB[q],4)}, {v(Q,4)}, {v(NEGM,16)}")
        for j in range(5, 10):
            ex(j)
        a(f"v_smfmac_f32_32x32x32_bf16 {v(O,16)}, {v(V0B[p],4)}, {v(Sc,8)}, v{IDX}")
        for j in range(10, 16):
            ex(j)
    a(f"""
    v_add_u32 v{KA}, {U*TP}, v{KA}
    v_add_u32 v{VA0}, {U*TP}, v{VA0}
    v_add_u32 v{VA1}, {U*TP}, v{VA1}
    s_add_u32 s25, s25, 1
    s_cmp_lt_u32 s25, {64//U}
    s_cbranch_scc1 k2_loop
    v_smfmac_f32_32x32x32_bf16 {v(O,16)}, {v(V1B[1],4)}, {v(SB[1]+8,8)}, v{IDX}
    s_waitcnt lgkmcnt(0)
    s_nop 10
    v_mul_f32 v23, 0, v{O+8}
    """)
    dbg_ts(a, 4)
    for j in range(8):
        a(f"v_fma_f32 v23, 0, v{O+j}, v23")
    a(f"""
    v_add_f32 v23, v23, v{O+8}
    v_mov_b32 v24, {fl(2.0**100)}
    v_cmp_nlt_f32 vcc, v23, v24
    v_rcp_f32 v25, v{O+8}
    s_cmp_lg_u32 s24, 0
    s_cbranch_scc1 k2_store
    s_cmp_lg_u64 vcc, 0
    s_cbranch_scc1 k2_fallback
    """)
    a.lab("k2_store")
    for j in range(8):
        a(f"v_mul_f32 v{O+j}, v25, v{O+j}")
    for j in range(4):
        a(f"v_cvt_pk_bf16_f32 v{24+j}, v{O+2*j}, v{O+2*j+1}")
    a(f"buffer_store_dwordx4 v[24:27], v1, s[44:47], s12 offen{STF}")
    dbg_end(a, 1)
    a("s_endpgm")
    a.lab("k2_bar1")
    a("""
    s_waitcnt vmcnt(0)
    s_barrier
    """)
    dbg_ts(a, 2)
    a("s_branch k2_body")
    a.lab("k2_bar2")
    a("s_barrier")
    dbg_ts(a, 3)
    a("s_branch k2_body")
    a.lab("k2_fallback")
    a(f"""
    s_mov_b32 s24, 1
    s_mov_b32 s22, 1000
    s_mov_b32 s23, 1000
    s_mov_b32 s25, 0
    v_mov_b32 v23, 0xff800000
    v_add_u32 v{KA}, {63*TP}, v1
    """)
    a.lab("k2_fb_loop")
    a(f"""
    ds_read_b128 {v(KB[0],4)}, v{KA}
    v_subrev_u32 v{KA}, {TP}, v{KA}
    s_waitcnt lgkmcnt(0)
    v_mfma_f32_32x32x16_bf16 {v(SB[0],16)}, {v(KB[0],4)}, {v(Q,4)}, 0
    s_nop 11
    """)
    for j in range(0, 16, 2):
        a(f"v_max3_f32 v23, v23, v{SB[0]+j}, v{SB[0]+j+1}")
    a(f"""
    s_add_u32 s25, s25, 1
    s_cmp_lt_u32 s25, 64
    s_cbranch_scc1 k2_fb_loop
    s_branch k2_start
    """)

    a.lab("k2_conv")
    a(f"""
    buffer_load_dwordx4 v1, s[44:47], s10 offen lds
    buffer_load_dwordx4 v1, s[44:47], s10 offen offset:1024 lds
    s_sub_u32 s3, s3, 8             ; j
    v_mov_b32 v4, {TP}
    v_mul_u32_u24 v4, v4, v0
    v_mov_b32 v8, 0x3f803f80
    v_mov_b32 v9, 0x3f803f80
    v_mov_b32 v10, 0x3f803f80
    v_mov_b32 v11, 0x3f803f80
    ds_write_b128 v4, v[8:11] offset:2048
    s_mul_i32 s9, s3, {NC}
    s_add_u32 s9, s9, {12 + 8*NA}
    s_lshl_b32 s10, s9, 11
    s_add_u32 s10, s10, s8
    s_mul_i32 s9, s9, {TP}
    s_mov_b32 m0, s9
    s_lshl_b32 s6, s4, 6
    s_lshl_b32 s7, s5, 1
    s_add_u32 s6, s6, s7            ; d0
    """)
    for i in range(NC0):
        tile_dma()
    a(f"""
    s_waitcnt vmcnt({2*NC0}) lgkmcnt(0)
    s_barrier
    """)
    for i in range(NC - NC0):
        tile_dma()
    srd(a, 52, 18, 2048 * 1024 * 2)
    srd(a, 48, 16, 512 * 512 * 2)
    a(f"""
    s_and_b32 s10, s3, 1
    s_add_u32 s11, s6, s10
    s_mul_i32 s12, s10, {CV_CH}
    s_add_u32 s12, s12, {CV_BASE}
    s_lshr_b32 s13, s3, 1
    s_lshl_b32 s13, s13, 11
    s_add_u32 m0, s12, s13
    s_lshl_b32 s14, s11, 12
    s_add_u32 s14, s14, s13
    s_add_u32 s14, s14, {UT - CV_U}
    s_add_u32 m0, m0, {CV_U}
    s_add_u32 s14, s14, {CV_U}
    buffer_load_dwordx4 v1, s[44:47], s14 offen lds
    buffer_load_dwordx4 v1, s[44:47], s14 offen offset:1024 lds
    s_mul_i32 s11, s11, {KD_PITCH}
    s_add_u32 s11, s11, {KD}
    v_lshlrev_b32 v3, 3, v0
    v_lshlrev_b32 v4, 2, v0
    s_mov_b32 s14, 0x01000100
    s_mov_b32 s15, 0x03020302
    s_mov_b32 s26, 0x05040302
    s_cmp_ge_u32 s3, 2
    s_cbranch_scc1 k2_cv_zero
    buffer_load_dwordx3 v[72:74], v3, s[44:47], s11 offen
    buffer_load_dwordx2 v[76:77], v4, s[44:47], s11 offen offset:512
    buffer_load_dwordx2 v[78:79], v4, s[44:47], s11 offen offset:768
    buffer_load_dwordx2 v[80:81], v4, s[44:47], s11 offen offset:1024
    v_add_u32 v3, s12, v3
    v_add_u32 v6, s12, v1
    v_lshlrev_b32 v7, 5, v0
    v_add_u32 v7, s12, v7
    s_waitcnt vmcnt(6)
    s_barrier
    s_waitcnt vmcnt(0)
    """)
    EE = lambda d, r: a(f"v_perm_b32 v{d}, v{r}, v{r}, s14")
    OO = lambda d, r: a(f"v_perm_b32 v{d}, v{r}, v{r}, s15")
    EO = lambda d, r: a(f"v_mov_b32 v{d}, v{r}")
    OE = lambda d, r: a(f"v_perm_b32 v{d}, v{r+1}, v{r}, s26")
    FF = lambda d, r: a(f"v_perm_b32 v{d}, v{r+1}, v{r+1}, s14")
    a(f"ds_write_b64 v3, v[72:73] offset:32")
    OE(8, 72)
    OE(9, 73)
    a(f"ds_write_b64 v3, v[8:9] offset:{32+CV_KS}")
    EE(10, 76); OE(11, 76); EO(12, 76); FF(13, 76)
    a(f"ds_write_b64 v3, v[10:11] offset:{32+512}")
    a(f"ds_write_b64 v3, v[12:13] offset:{32+512+CV_KS}")
    for d, f in zip(range(16, 24), (EE, EO, OO, FF, EE, OO, OE, FF)):
        f(d, 78)
    a(f"ds_write_b128 v6, v[16:19] offset:{32+1024}")
    a(f"ds_write_b128 v6, v[20:23] offset:{32+1024+CV_KS}")
    for d, f in zip(range(24, 40), (EE, EE, EO, OO, OO, OO, FF, FF, EE, EE, OO, OO, OO, OE, FF, FF)):
        f(d, 80)
    a(f"ds_write_b128 v7, v[24:27] offset:{32+2048}")
    a(f"ds_write_b128 v7, v[28:31] offset:{32+2048+16}")
    a(f"ds_write_b128 v7, v[32:35] offset:{32+2048+CV_KS}")
    a(f"ds_write_b128 v7, v[36:39] offset:{32+2048+16+CV_KS}")
    a(f"""
    v_mov_b32 v40, 0
    v_mov_b32 v41, 0
    v_mov_b32 v42, 0
    v_mov_b32 v43, 0
    v_mov_b32 v44, 0
    v_mov_b32 v45, 0
    v_mov_b32 v46, 0
    v_lshlrev_b32 v47, 16, v72
    s_mov_b64 exec, 1
    ds_write_b128 v6, v[40:43]
    ds_write_b128 v6, v[40:43] offset:16
    ds_write_b128 v6, v[40:43] offset:{CV_KS}
    ds_write_b128 v6, v[44:47] offset:{CV_KS+16}
    s_mov_b64 exec, -1
    s_branch k2_cv_go
    """)
    a.lab("k2_cv_zero")
    a(f"""
    v_add_u32 v3, s12, v3
    v_mov_b32 v40, 0
    v_mov_b32 v41, 0
    ds_write_b64 v3, v[40:41] offset:{CV_U+4096}
    s_waitcnt vmcnt(2)
    s_barrier
    """)
    a.lab("k2_cv_go")
    dbg_ts(a, 0)
    a(f"""
    v_and_b32 v13, 15, v0           ; r / c
    v_lshrrev_b32 v14, 4, v0        ; g
    v_add_u32 v15, 1, v13
    v_lshrrev_b32 v16, 1, v15
    v_lshl_add_u32 v16, v14, 2, v16
    v_lshlrev_b32 v16, 2, v16
    v_and_b32 v15, 1, v15           ; r even
    v_mul_u32_u24 v15, {CV_KS}, v15
    v_add_u32 v4, v15, v16
    v_add_u32 v4, {CV_BASE}, v4
    """)
    for ch in range(2):
        for mp in range(4):
            if ch == 0 and mp == 0:
                continue
            a(f"v_add_u32 v{4+4*ch+mp}, {ch*CV_CH + mp*1024}, v4")
    a(f"""
    v_lshlrev_b32 v15, 5, v13
    v_lshlrev_b32 v16, 4, v14
    v_sub_u32 v12, v16, v15
    v_add_u32 v12, {CV_BASE + CV_U + 480}, v12
    v_lshlrev_b32 v13, 15, v13
    v_lshl_add_u32 v13, v14, 13, v13
    """)
    for j in range(16):
        a(f"v_mov_b32 v{96+j}, 0")
    a(f"""
    s_mov_b32 s25, 0
    s_lshl_b32 s11, s2, 2
    s_add_u32 s11, s11, s3
    s_lshl_b32 s11, s11, 9
    v_lshlrev_b32 v3, 3, v0
    s_waitcnt vmcnt(0) lgkmcnt(0)
    s_barrier
    buffer_load_dwordx2 v[112:113], v3, s[48:51], s11 offen
    """)
    if E("K2_CPRIO", 2):
        a(f"s_setprio {E('K2_CPRIO', 2)}")
    dbg_ts(a, 1)
    a(f"""
    s_cmp_eq_u32 s3, 1
    s_cbranch_scc1 k2_cv1
    s_cmp_eq_u32 s3, 2
    s_cbranch_scc1 k2_cv2
    s_cmp_eq_u32 s3, 3
    s_cbranch_scc1 k2_cv3
    """)
    AF, BF, AC = 32, 64, 96
    for j in range(4):
        c1, c2 = j, 7 - j
        a.lab(f"k2_cv{j}")
        for ch in range(2):
            for m in range(c2 + 1):
                base = 4 + 4 * ch + m // 2
                o = 128 * (m & 1)
                a(f"ds_read2_b32 {v(AF+4*m,2)}, v{base} offset0:{o} offset1:{o+1}")
                a(f"ds_read2_b32 {v(AF+4*m+2,2)}, v{base} offset0:{o+2} offset1:{o+3}")
                kk = c2 - m
                a(f"ds_read_b128 {v(BF+4*kk,4)}, v12 offset:{512*(7-kk)+ch*CV_CH}")
            a("s_waitcnt lgkmcnt(0)")
            d1, d2 = v(AC + 8 * ch, 4), v(AC + 8 * ch + 4, 4)
            seq = [(d2, m, c2 - m) for m in range(c2 + 1)]
            seq1 = [(d1, m, c1 - m) for m in range(c1 + 1)]
            merged = []
            while seq or seq1:
                if seq:
                    merged.append(seq.pop(0))
                if seq1:
                    merged.append(seq1.pop(0))
            for d, m, kk in merged:
                a(f"v_mfma_f32_16x16x32_bf16 {d}, {v(AF+4*m,4)}, {v(BF+4*kk,4)}, {d}")
        for ch in range(2):
            for mp in range(c2 // 2 + 1):
                a(f"v_add_u32 v{4+4*ch+mp}, 64, v{4+4*ch+mp}")
        a(f"""
        v_add_u32 v12, 64, v12
        s_add_u32 s25, s25, 1
        s_cmp_lt_u32 s25, 8
        s_cbranch_scc1 k2_cv{j}
        s_lshl_b32 s9, s6, 1
        s_add_u32 s8, s9, {c1*256*2048}
        s_add_u32 s9, s9, {c2*256*2048}
        s_branch k2_cv_out
        """)
    a.lab("k2_cv_out")
    dbg_ts(a, 2)
    a("""
    s_add_u32 s10, s8, 4096
    s_add_u32 s11, s9, 4096
    """)
    for cb in range(2):
        for jj in range(4):
            a(f"v_cvt_pk_bf16_f32 v{16+4*cb+jj}, v{AC+4*cb+jj}, v{AC+8+4*cb+jj}")
    for cb in range(2):
        for jj in range(4):
            so = 8 + cb + 2 * (jj // 2)
            a(f"buffer_store_dword v{16+4*cb+jj}, v13, s[52:55], s{so} offen offset:{(jj%2)*2048}")
    dbg_end(a, 1)
    a.lab("k2_end")
    a("s_endpgm")
    return a, desc("k2_kernel", 116)


K3_LDS = 131072


def gen_k3():
    a = Asm()
    head(a, "k3_kernel")
    a(f"""
    s_cmp_ge_u32 s2, 256
    s_cbranch_scc1 k3_end
    """)
    dbg_start(a)
    a(f"""
    s_load_dwordx2 s[40:41], s[0:1], 112
    s_load_dwordx4 s[16:19], s[0:1], 88
    v_lshrrev_b32 v1, 6, v0
    v_and_b32 v0, 63, v0
    s_and_b32 s4, s2, 7
    v_readfirstlane_b32 s3, v1
    v_readfirstlane_b32 s94, v1
    s_lshr_b32 s5, s2, 3
    v_lshlrev_b32 v1, 4, v0
    s_lshl_b32 s6, s4, 2
    s_lshr_b32 s7, s5, 3
    s_add_u32 s6, s6, s7            ; rt
    s_and_b32 s7, s5, 7             ; ct
    s_and_b32 s10, s3, 3            ; stream
    s_lshr_b32 s11, s3, 2           ; half
    s_lshl_b32 s9, s10, 15
    s_lshl_b32 s12, s11, 11
    s_add_u32 s9, s9, s12
    s_mov_b32 m0, s9
    s_cmp_ge_u32 s10, 2
    s_cbranch_scc1 k3_w
    s_lshl_b32 s8, s6, 16
    s_add_u32 s8, s8, s9
    s_add_u32 s8, s8, {OI}
    s_waitcnt lgkmcnt(0)
    """)
    srd(a, 44, 40, WS_BYTES)
    for c in range(8):
        a(f"""
        buffer_load_dwordx4 v1, s[44:47], s8 offen lds
        buffer_load_dwordx4 v1, s[44:47], s8 offen offset:1024 lds
        """)
        if c < 7:
            a("""
            s_add_u32 m0, m0, 4096
            s_add_u32 s8, s8, 4096
            """)
    a("s_branch k3_go")
    a.lab("k3_w")
    a(f"""
    v_lshrrev_b32 v2, 2, v0
    v_and_b32 v3, 3, v0
    v_lshlrev_b32 v2, 10, v2
    v_lshl_add_u32 v2, v3, 4, v2
    v_add_u32 v3, {16384-1024}, v2
    s_lshl_b32 s8, s7, 7
    s_and_b32 s12, s10, 1
    s_lshl_b32 s12, s12, 6
    s_add_u32 s8, s8, s12
    s_lshl_b32 s12, s11, 15
    s_add_u32 s8, s8, s12
    s_waitcnt lgkmcnt(0)
    """)
    srd(a, 48, 16, 512 * 512 * 2)
    for c in range(8):
        a(f"""
        buffer_load_dwordx4 v2, s[48:51], s8 offen lds
        buffer_load_dwordx4 v3, s[48:51], s8 offen offset:1024 lds
        """)
        if c < 7:
            a("""
            s_add_u32 m0, m0, 4096
            s_add_u32 s8, s8, 65536
            """)
    if DBG:
        srd(a, 44, 40, WS_BYTES)
    a.lab("k3_go")
    dbg_ts(a, 0)
    a("""
    s_cmp_ge_u32 s3, 4
    s_cbranch_scc1 k3_ld
    """)
    srd(a, 52, 18, 2048 * 1024 * 2)
    a(f"""
    s_and_b32 s10, s3, 1            ; qh
    s_lshr_b32 s11, s3, 1           ; nh
    s_lshl_b32 s12, s10, 15
    s_lshl_b32 s13, s11, 15
    s_add_u32 s13, s13, 65536
    v_add_u32 v2, s12, v1
    v_lshrrev_b32 v5, 5, v0         ; h
    v_bfe_u32 v3, v0, 2, 2
    v_lshl_add_u32 v3, v5, 2, v3    ; row = 4h + (i>>2)
    v_lshlrev_b32 v3, 6, v3
    v_and_b32 v4, 1, v0
    v_lshl_add_u32 v3, v4, 5, v3    ; + 16*(c&1) cols
    v_bfe_u32 v4, v0, 4, 1
    v_lshl_add_u32 v3, v4, 4, v3    ; + 8G cols
    v_bfe_u32 v4, v0, 1, 1
    v_lshl_add_u32 v3, v4, 3, v3    ; + 4*(c>>1) cols
    v_add_u32 v3, s13, v3
    s_lshl_b32 s12, s6, 1
    s_add_u32 s12, s12, s10
    s_lshl_b32 s12, s12, 16         ; (2rt+qh)*32*2048
    s_lshl_b32 s13, s7, 1
    s_add_u32 s13, s13, s11
    s_lshl_b32 s13, s13, 6
    s_add_u32 s12, s12, s13
    s_add_u32 s12, s12, 1024
    v_and_b32 v4, 31, v0
    v_lshlrev_b32 v4, 11, v4
    v_lshl_add_u32 v4, v5, 5, v4
    """)
    D = 80
    for c in range(8):
        a(f"s_waitcnt vmcnt({14-2*c})")
        a("s_barrier")
        if c in (0, 4, 7):
            dbg_ts(a, {0: 1, 4: 2, 7: 3}[c])
        F = 16 + 32 * (c % 2)
        for i in range(4):
            hd = 4 * c + i
            a(f"ds_read_b128 {v(F+8*i,4)}, v2 offset:{hd*1024}")
            a(f"ds_read_b64_tr_b16 {v(F+8*i+4,2)}, v3 offset:{hd*1024}")
            a(f"ds_read_b64_tr_b16 {v(F+8*i+6,2)}, v3 offset:{hd*1024+512}")
        for i in range(4):
            a(f"s_waitcnt lgkmcnt({9-3*i})")
            cc = "0" if (c == 0 and i == 0) else v(D, 16)
            a(f"v_mfma_f32_32x32x16_bf16 {v(D,16)}, {v(F+8*i+4,4)}, {v(F+8*i,4)}, {cc}")
    a("s_nop 11")
    dbg_ts(a, 4)
    for j in range(8):
        a(f"v_cvt_pk_bf16_f32 v{8+j}, v{D+2*j}, v{D+2*j+1}")
    a("""
    buffer_store_dwordx4 v[8:11], v4, s[52:55], s12 offen
    buffer_store_dwordx4 v[12:15], v4, s[52:55], s12 offen offset:16
    """)
    dbg_end(a, 2)
    a("s_endpgm")
    a.lab("k3_ld")
    for c in range(7):
        a(f"s_waitcnt vmcnt({14-2*c})")
        a("s_barrier")
    a("s_waitcnt vmcnt(0)")
    dbg_end(a, 2)
    a.lab("k3_end")
    a("s_endpgm")
    return a, desc("k3_kernel", 96)


def build():
    ks = [gen_k1(), gen_k2(), gen_k3()]
    hdr = [
        "; generated by work/gen.py",
        f"; @launch kernel=k1_kernel grid=(256,1,1) block=(768,1,1) lds={K1_LDS}",
        f"; @launch kernel=k2_kernel grid=(256,1,1) block=(768,1,1) lds={K2_LDS}",
        f"; @launch kernel=k3_kernel grid=(256,1,1) block=(512,1,1) lds={K3_LDS}",
    ]
    out = "\n".join(hdr) + "\n"
    out += '.amdgcn_target "amdgcn-amd-amdhsa--gfx950"\n.text\n'
    for a, d in ks:
        out += a.text()
    out += '.section .rodata,"a"\n'
    for a, d in ks:
        out += d
    return out


if __name__ == "__main__":
    path = sys.argv[1] if len(sys.argv) > 1 else f"cdna_kernels/{NAME}.s"
    open(path, "w").write(build())
    print("wrote", path)
```

```python
from genlib import *

E = lambda k, d: int(os.environ.get(k, str(d)))

K1_SLOT = 32768
K1_NS = 4
K1_TAB = 0
K1_XB = 8192
K1_UBUF = 16384
K1_RING = 24576
K1_LDS = K1_RING + K1_SLOT * K1_NS


def cost(line):
    t = line.strip()
    if t.startswith(("v_exp", "v_sin", "v_cos", "v_rcp", "v_mfma")):
        return 8
    if t.startswith(("v_cvt_pk", "v_fma_", "v_pk")) or "_dpp" in t:
        return 5
    return 4


def splice(lines, marks):
    out, acc, k = [], 0, 0
    nbar = len(marks)
    for l in lines:
        if k < nbar and acc >= marks[k]:
            out.append("    s_barrier")
            k += 1
        out.append(l)
        acc += cost(l)
    out += ["    s_barrier"] * (nbar - k)
    return out


def gen_k1():
    a = Asm()
    head(a, "k1_kernel")
    a(f"""
    s_cmp_ge_u32 s2, 256
    s_cbranch_scc1 k1_end
    """)
    dbg_start(a)
    a(f"""
    s_load_dwordx8 s[32:39], s[0:1], 64
    s_load_dwordx16 s[16:31], s[0:1], 0
    s_load_dwordx2 s[40:41], s[0:1], 112
    v_lshrrev_b32 v1, 6, v0
    v_and_b32 v0, 63, v0
    s_and_b32 s4, s2, 7             ; xcd
    v_readfirstlane_b32 s3, v1
    v_readfirstlane_b32 s94, v1
    s_lshr_b32 s5, s2, 3            ; idx
    s_and_b32 s15, s3, 3
    s_lshr_b32 s14, s3, 2
    s_cmp_eq_u32 s14, 1
    s_cbranch_scc1 k1_kgen
    s_and_b32 s6, s4, 1
    s_lshl_b32 s6, s6, 2
    s_and_b32 s7, s5, 3
    s_add_u32 s6, s6, s7
    s_lshr_b32 s7, s4, 1
    s_lshl_b32 s7, s7, 3
    s_lshr_b32 s8, s5, 2
    s_add_u32 s7, s7, s8
    s_and_b32 s12, s15, 1           ; rb
    s_lshr_b32 s13, s15, 1          ; hb
    s_lshl_b32 s8, s7, 1
    s_add_u32 s8, s8, s12
    s_lshl_b32 s12, s12, 12
    v_lshrrev_b32 v13, 5, v0        ; h
    s_cmp_eq_u32 s14, 0
    s_cbranch_scc1 k1_load
    """)

    def dma_stage(st):
        slot = K1_RING + (st % K1_NS) * K1_SLOT
        a(f"""
        s_add_u32 m0, s12, {slot}
        s_lshl_b32 s14, s60, 7
        s_add_u32 s14, s14, s9
        buffer_load_dwordx4 v2, s[48:51], s14 offen lds
        buffer_load_dwordx4 v3, s[48:51], s14 offen offset:1024 lds
        s_add_u32 m0, s13, {slot}
        s_mul_i32 s14, s60, {64*3072}
        buffer_load_dwordx4 v6, s[52:55], s14 offen lds
        buffer_load_dwordx4 v6, s[52:55], s14 offen offset:1024 lds
        buffer_load_dwordx4 v6, s[52:55], s14 offen offset:2048 lds
        s_add_u32 m0, s13, {slot + 3072}
        s_add_u32 s14, s14, {8*3072}
        buffer_load_dwordx4 v6, s[52:55], s14 offen lds
        buffer_load_dwordx4 v6, s[52:55], s14 offen offset:1024 lds
        buffer_load_dwordx4 v6, s[52:55], s14 offen offset:2048 lds
        s_add_u32 s60, s60, 1
        s_and_b32 s60, s60, 7
        """)

    a(f"""
    v_and_b32 v7, 31, v0            ; s
    v_bfe_u32 v14, v0, 1, 3         ; (s>>1)&7
    v_xor_b32 v14, v14, v13         ; h ^ f
    v_lshlrev_b32 v15, 7, v7
    s_add_u32 s12, s12, {K1_RING}
    v_add_u32 v15, s12, v15         ; rb*4096 + s*128
    v_lshl_add_u32 v8, v14, 4, v15
    v_xor_b32 v9, 32, v8
    v_xor_b32 v10, 64, v8
    v_xor_b32 v11, 96, v8
    v_mul_u32_u24 v12, 3072, v13    ; h*3072
    v_bfe_u32 v14, v0, 2, 2         ; r
    v_lshl_add_u32 v12, v14, 7, v12
    v_bfe_u32 v14, v0, 3, 1         ; r>>1
    v_xor_b32 v14, s13, v14
    v_lshl_add_u32 v12, v14, 6, v12
    v_bfe_u32 v14, v0, 4, 1
    v_lshl_add_u32 v12, v14, 5, v12
    v_and_b32 v14, 3, v0
    v_lshl_add_u32 v12, v14, 3, v12
    v_add_u32 v12, {K1_RING}, v12
    v_add_u32 v13, {2*K1_SLOT}, v8
    v_add_u32 v14, {2*K1_SLOT}, v9
    v_add_u32 v15, {2*K1_SLOT}, v10
    v_add_u32 v16, {2*K1_SLOT}, v11
    v_add_u32 v17, {2*K1_SLOT}, v12
    s_lshl_b32 s6, s6, 1
    s_add_u32 s6, s6, s13
    """)
    FR = [20, 36, 112, 128, 144]
    fr = lambda g: FR[g % 3] if g < 29 else FR[g - 27]
    ACC = [64, 80, 96]

    def reads(g):
        st, kk = g // 4, g % 4
        F = fr(g)
        sl = st % K1_NS
        xb = (8 if sl < 2 else 13) + kk
        wb = 12 if sl < 2 else 17
        so = (sl % 2) * K1_SLOT
        L = [f"ds_read_b128 {v(F,4)}, v{xb} offset:{so}"]
        for seg in range(3):
            for half in range(2):
                off = so + 8192 + kk * 6144 + seg * 1024 + half * 512
                L.append(f"ds_read_b64_tr_b16 {v(F+4+4*seg+2*half,2)}, v{wb} offset:{off}")
        return L

    def mfmas(g):
        F = fr(g)
        x = v(F, 4)
        L = []
        for seg in range(3):
            w = v(F + 4 + 4 * seg, 4)
            d = v(ACC[seg], 16)
            c = "0" if g == 0 else d
            if seg < 2:
                L.append(f"v_mfma_f32_32x32x16_bf16 {d}, {w}, {x}, {c}")
            else:
                L.append(f"v_mfma_f32_32x32x16_bf16 {d}, {x}, {w}, {c}")
        return L

    a(f"""
    s_lshl_b32 s10, s6, 17          ; fg*2*65536
    s_lshl_b32 s11, s8, 10
    s_add_u32 s10, s10, s11
    s_add_u32 s10, s10, {QI}        ; Q head A
    s_add_u32 s11, s10, 65536       ; Q head B
    s_lshl_b32 s12, s6, 18          ; fg*2*131072
    s_lshl_b32 s13, s8, 11
    s_add_u32 s12, s12, s13
    s_add_u32 s12, s12, {KVI}
    s_add_u32 s13, s12, 131072
    v_lshlrev_b32 v1, 4, v0         ; lane*16
    v_and_b32 v2, 0x33, v0
    v_bfe_u32 v3, v0, 2, 1
    v_lshl_or_b32 v2, v3, 3, v2
    v_bfe_u32 v3, v0, 3, 1
    v_lshl_or_b32 v2, v3, 2, v2
    v_lshlrev_b32 v2, 4, v2         ; K voffset
    v_and_b32 v3, 15, v0
    v_lshlrev_b32 v3, 4, v3
    v_lshrrev_b32 v4, 5, v0
    v_lshl_add_u32 v3, v4, 8, v3
    v_bfe_u32 v4, v0, 4, 1
    v_lshl_add_u32 v3, v4, 17, v3   ; V voffset
    s_mov_b32 s14, {fl(0.25*LOG2E)}
    """)
    a("s_waitcnt lgkmcnt(0)")
    srd(a, 44, 40, WS_BYTES)
    if E("K1_GPRIO", 2):
        a(f"s_setprio {E('K1_GPRIO', 2)}")
    dbg_ts(a, 0)
    a("s_barrier")
    dbg_ts(a, 1)
    for l in reads(0) + reads(1):
        a(l)
    for g in range(26):
        M = mfmas(g)
        R = reads(g + 2)
        a(f"s_waitcnt lgkmcnt(7)")
        a(M[0])
        if g % 4 == 2:
            a("s_waitcnt lgkmcnt(0)")
            a("s_barrier")
            st = g // 4
            if st in (0, 2, 4):
                dbg_ts(a, 2 + st // 2)
        for l in R[0:3]:
            a(l)
        a(M[1])
        for l in R[3:5]:
            a(l)
        a(M[2])
        for l in R[5:7]:
            a(l)
    RD = {g: reads(g) for g in range(28, 32)}
    order = [28, 30, 31, 29]
    rq = []
    for g in order:
        rq += RD[g][0:3]
    for seg in (1, 2):
        for g in order:
            rq += RD[g][1 + 2 * seg:3 + 2 * seg]
    M26, M27 = mfmas(26), mfmas(27)
    a("s_waitcnt lgkmcnt(7)")
    a(M26[0])
    a("s_waitcnt lgkmcnt(0)")
    a("s_barrier")
    dbg_ts(a, 5)
    issued = 0

    def rd(n):
        nonlocal issued
        for l in rq[issued:issued + n]:
            a(l)
        issued = min(len(rq), issued + n)

    for m in (M26[1], M26[2], M27[0], M27[1], M27[2]):
        rd(3)
        a(m)
    O = 4
    def epi(seg):
        L = []
        base = {0: 52, 1: 8, 2: 52}[seg]
        for j in range(8):
            if seg == 0:
                L.append(f"v_mul_f32 v{64+2*j}, s14, v{64+2*j}")
                L.append(f"v_mul_f32 v{65+2*j}, s14, v{65+2*j}")
            L.append(f"v_cvt_pk_bf16_f32 v{base+j}, v{ACC[seg]+2*j}, v{ACC[seg]+2*j+1}")
            if j == 3:
                L.append({0: f"buffer_store_dwordx4 {v(base,4)}, v1, s[44:47], s10 offen{STF}",
                          1: f"buffer_store_dwordx4 {v(base,4)}, v2, s[44:47], s12 offen{STF}",
                          2: f"buffer_store_dwordx4 {v(base,4)}, v3, s[44:47], s12 offen offset:1024{STF}"}[seg])
            if j == 7:
                L.append({0: f"buffer_store_dwordx4 {v(base+4,4)}, v1, s[44:47], s11 offen{STF}",
                          1: f"buffer_store_dwordx4 {v(base+4,4)}, v2, s[44:47], s13 offen{STF}",
                          2: f"buffer_store_dwordx4 {v(base+4,4)}, v3, s[44:47], s12 offen offset:1536{STF}"}[seg])
        return L

    need = {0: lambda i: 3 * (i + 1), 1: lambda i: 12 + 2 * (i + 1), 2: lambda i: 20 + 2 * (i + 1)}
    for seg in range(3):
        fill = epi(seg - 1) if seg else []
        per = (len(fill) + 2) // 3
        for i, g in enumerate(order):
            rd(3)
            w = issued - need[seg](i)
            assert w >= 0
            a(f"s_waitcnt lgkmcnt({min(w, 15)})")
            a(mfmas(g)[seg])
            if i >= 1:
                for l in fill[(i - 1) * per:i * per]:
                    a(l)
    dbg_ts(a, 6)
    a("s_nop 11")
    if not DBG:
        a("s_nop 1")
    for l in epi(2):
        a(l)
    dbg_end(a, 0)
    a("s_endpgm")

    a.lab("k1_load")
    a(f"""
    s_lshl_b32 s9, s8, 15
    s_lshl_b32 s10, s13, 14
    s_add_u32 s9, s9, s10
    s_lshl_b32 s10, s13, 11
    s_add_u32 s12, s12, s10
    v_lshrrev_b32 v1, 3, v0         ; lane>>3
    v_and_b32 v7, 7, v0             ; lane&7
    v_lshrrev_b32 v8, 4, v0         ; lane>>4
    v_xor_b32 v4, v7, v8
    v_lshlrev_b32 v5, 10, v1
    v_lshl_add_u32 v2, v4, 4, v5    ; q even
    v_xor_b32 v3, 64, v2            ; chunk^4
    v_add_u32 v3, 7168, v3          ; q odd
    s_mul_i32 s10, s15, {16*3072}
    s_lshl_b32 s11, s6, 7
    s_add_u32 s10, s10, s11
    s_mul_i32 s13, s15, 6144
    s_add_u32 s13, s13, 8192
    v_and_b32 v8, 1, v8
    v_lshlrev_b32 v8, 2, v8
    v_xor_b32 v7, v7, v8
    v_mul_u32_u24 v8, 3072, v1
    v_lshl_add_u32 v6, v7, 4, v8
    v_add_u32 v6, s10, v6           ; W voffset
    s_lshl_b32 s60, s6, 1
    s_add_u32 s60, s60, s7
    s_and_b32 s60, s60, {7 if E("K1_ROT", 1) else 0}
    s_mov_b32 s50, {hex(2048*512*2)}
    s_mov_b32 s51, 0x00020000
    s_mov_b32 s54, {hex(512*1536*2)}
    s_mov_b32 s55, 0x00020000
    s_waitcnt lgkmcnt(0)
    s_mov_b32 s48, s34
    s_and_b32 s49, s35, 0xffff
    s_mov_b32 s52, s36
    s_and_b32 s53, s37, 0xffff
    """)
    LA = E("K1_LA", 3)
    q = []

    def issue(tag, n):
        q.extend([tag] * n)

    def wait_for(tag):
        last = max(i for i, t in enumerate(q) if t == tag)
        a(f"s_waitcnt vmcnt({len(q) - 1 - last})")

    def u_load():
        a(f"""
        s_mov_b32 m0, s8
        s_add_u32 s14, s7, 16384
        buffer_load_dwordx4 v9, s[56:59], s14 offen lds
        s_add_u32 m0, s8, 1024
        s_nop 0
        buffer_load_dwordx4 v9, s[56:59], s7 offen lds
        """)
        issue("u", 2)

    nxt = 0
    for st in range(LA):
        dma_stage(st); issue(st, 8); nxt += 1
    srd(a, 56, 16, 2048 * 512 * 2)
    srd(a, 44, 40, WS_BYTES)
    a(f"""
    v_lshrrev_b32 v1, 2, v0
    v_and_b32 v7, 3, v0
    v_sub_u32 v1, 15, v1
    v_lshlrev_b32 v1, 10, v1
    v_lshl_add_u32 v9, v7, 4, v1    ; u voffset: (15 - l/4)*1024 + (l%4)*16
    s_lshr_b32 s10, s15, 1
    s_lshl_b32 s11, s5, 1
    s_add_u32 s10, s10, s11
    s_lshl_b32 s10, s10, 5          ; t0
    s_and_b32 s11, s15, 1
    s_lshl_b32 s8, s4, 1
    s_add_u32 s11, s11, s8
    s_lshl_b32 s11, s11, 5          ; c0
    s_lshl_b32 s7, s10, 10
    s_lshl_b32 s8, s11, 1
    s_add_u32 s7, s7, s8
    s_lshl_b32 s8, s15, 11
    s_add_u32 s8, s8, {K1_UBUF}     ; u scratch
    s_lshl_b32 s11, s11, 12
    s_lshl_b32 s10, s10, 1
    s_sub_u32 s11, s11, s10
    s_add_u32 s11, s11, {UT + 2016*2}
    v_bfe_u32 v14, v0, 2, 2         ; (i>>2)
    v_lshl_add_u32 v14, v13, 3, v14 ; 8h + (i>>2)
    v_lshlrev_b32 v12, 6, v14
    v_bfe_u32 v14, v0, 4, 1
    v_lshl_add_u32 v12, v14, 5, v12
    v_lshl_add_u32 v12, v7, 3, v12
    v_add_u32 v12, s8, v12
    v_and_b32 v10, 31, v0
    v_lshlrev_b32 v10, 12, v10
    v_lshl_add_u32 v10, v13, 4, v10
    """)
    for b in range(8):
        wait_for(b)
        if b < 6:
            dbg_ts(a, b)
        a("s_barrier")
        while nxt < 8 and nxt - K1_NS <= b - 1 and nxt <= b + LA:
            dma_stage(nxt); issue(nxt, 8); nxt += 1
            if nxt == 8:
                u_load()
    assert nxt == 8
    a(f"""
    s_waitcnt vmcnt(0)
    ds_read_b64_tr_b16 v[16:17], v12
    ds_read_b64_tr_b16 v[18:19], v12 offset:256
    ds_read_b64_tr_b16 v[20:21], v12 offset:1024
    ds_read_b64_tr_b16 v[22:23], v12 offset:1280
    s_waitcnt lgkmcnt(2)
    buffer_store_dwordx4 v[16:19], v10, s[44:47], s11 offen{STF}
    s_waitcnt lgkmcnt(0)
    buffer_store_dwordx4 v[20:23], v10, s[44:47], s11 offen offset:32{STF}
    """)
    dbg_end(a, 0)
    a("s_endpgm")

    a.lab("k1_kgen")
    XA, XY, XC, XAD = 64, 65, 66, 67
    SA, SB, SC, SD, SE = 68, 69, 70, 71, 72
    a(f"""
    s_setprio 3
    s_lshl_b32 s6, s4, 6
    s_lshl_b32 s7, s5, 1
    s_add_u32 s6, s6, s7
    s_lshr_b32 s7, s15, 1
    s_add_u32 s6, s6, s7            ; channel d
    s_lshl_b32 s8, s6, 8
    s_and_b32 s9, s15, 1
    s_lshl_b32 s9, s9, 7
    s_add_u32 s8, s8, s9            ; d*256 + half*128
    s_lshl_b32 s9, s6, 1
    v_lshl_add_u32 v1, v0, 1, s8
    v_mov_b32 v10, s9
    s_lshl_b32 s12, s7, 12
    s_add_u32 s12, s12, {K1_XB}
    v_lshl_add_u32 v{XAD}, v0, 4, s12
    """)
    for i in range(2, 10):
        a(f"v_mov_b32 v{i}, 0")
    a(f"""
    ds_write_b32 v{XAD}, v2 offset:3072
    s_mul_i32 s11, s6, {KD_PITCH}
    s_add_u32 s11, s11, {KD}
    s_mov_b32 s13, {fl(LOG2E)}
    s_mov_b32 s14, {fl(1.0/(2*math.pi))}
    v_and_b32 v20, 15, v0           ; i / j
    v_lshrrev_b32 v21, 4, v0        ; g / G
    v_and_b32 v22, 1, v0
    v_cvt_f32_u32 v{XA}, v20
    v_mul_f32 v{XY}, 16.0, v{XA}
    v_and_b32 v23, 3, v0
    v_lshlrev_b32 v23, 2, v23
    v_lshrrev_b32 v24, 2, v20
    v_lshl_add_u32 v23, v24, 8, v23
    v_add_u32 v23, 512, v23         ; i<8 : 512 + 4(i&3) + 256(i>>2)
    v_lshlrev_b32 v24, 3, v22
    v_lshrrev_b32 v25, 1, v20
    v_lshl_add_u32 v24, v25, 8, v24 ; i>=8: 8(i&1) + 256(i>>1)
    v_cmp_gt_u32 vcc, 8, v20
    v_sub_u32 v{SE}, 63, v0
    v_cndmask_b32 v23, v24, v23, vcc
    v_cvt_f32_u32 v{XC}, v23
    v_lshlrev_b32 v{SE}, 2, v{SE}
    v_lshlrev_b32 v{SB}, 5, v20
    v_lshl_add_u32 v{SB}, v21, 3, v{SB}     ; seg0: 32j + 8G
    v_lshrrev_b32 v24, 5, v0                ; G>>1
    v_sub_u32 v25, 3, v24
    v_lshlrev_b32 v25, v25, v20
    v_lshl_add_u32 v{SC}, v21, 7, v25       ; seg2/3 A - 768
    v_mul_u32_u24 v24, 60, v24
    v_add3_u32 v{SD}, v24, v{SC}, 4         ; B - 768
    v_lshrrev_b32 v{SA}, 1, v{SB}           ; seg1: 16j + 4G
    v_cmp_eq_u32 vcc, 0, v0
    s_waitcnt lgkmcnt(0)
    global_load_short_d16_hi v8, v10, s[30:31]
    global_load_short_d16_hi v2, v1, s[18:19]
    global_load_short_d16_hi v3, v1, s[20:21]
    global_load_short_d16_hi v4, v1, s[22:23]
    global_load_short_d16_hi v5, v1, s[24:25]
    global_load_short_d16_hi v6, v1, s[26:27]
    global_load_short_d16_hi v7, v1, s[28:29]
    global_load_short_d16_hi v9, v10, s[32:33]
    """)
    srd(a, 44, 40, WS_BYTES)
    a(f"s_setprio {E('KG_PRIO', 2)}")
    PP, PW, WR, WI, CR, CI, KL = 12, 13, 14, 15, 16, 17, 18
    DPP = lambda j: f"row_newbcast:{j} row_mask:0xf bank_mask:0xf"
    k = Asm()
    k(f"""
    s_waitcnt vmcnt(7)
    v_mul_f32 v8, s13, v8
    v_exp_f32 v8, v8
    s_nop 0
    v_cvt_pk_bf16_f32 v8, v8, v8
    v_lshlrev_b32 v8, 16, v8                ; dt
    s_waitcnt vmcnt(5)
    v_mul_f32 v2, v8, v2
    v_mul_f32 v3, v8, v3
    v_mul_f32 v{PP}, s13, v2                ; p
    v_mul_f32 v{PW}, s14, v3                ; w
    v_rndne_f32 v3, v{PW}
    v_sub_f32 v{PW}, v{PW}, v3
    v_mul_f32 v20, {fl(256.0)}, v{PP}
    v_mul_f32 v21, {fl(256.0)}, v{PW}
    v_mul_f32 v22, {fl(2048.0)}, v{PP}
    v_mul_f32 v23, {fl(2048.0)}, v{PW}
    v_exp_f32 v20, v20
    v_exp_f32 v22, v22
    v_fract_f32 v23, v23
    v_cos_f32 v{CR}, v21
    v_sin_f32 v{CI}, v21
    v_cos_f32 v18, v23
    v_sin_f32 v19, v23
    s_waitcnt vmcnt(1)
    v_mul_f32 v4, v8, v4
    v_mul_f32 v5, v8, v5
    v_mul_f32 v{WR}, v6, v4
    v_mul_f32_e64 v{WI}, -v6, v5
    v_fma_f32 v{WR}, -v7, v5, v{WR}         ; Re W
    v_fma_f32 v{WI}, -v7, v4, v{WI}         ; -Im W
    v_mul_f32 v{CR}, v20, v{CR}
    v_mul_f32 v{CI}, v20, v{CI}
    v_mul_f32 v18, v{WR}, v18
    v_fmac_f32 v18, v{WI}, v19
    v_mul_f32 v{KL}, v22, v18               ; Re(W g^2048)
    """)
    red = [f"v_add_f32_dpp v{KL}, v{KL}, v{KL} {m}" for m in (
        "row_ror:1 row_mask:0xf bank_mask:0xf", "row_ror:2 row_mask:0xf bank_mask:0xf",
        "row_ror:4 row_mask:0xf bank_mask:0xf", "row_ror:8 row_mask:0xf bank_mask:0xf",
        "row_bcast:15 row_mask:0xa bank_mask:0xf", "row_bcast:31 row_mask:0xc bank_mask:0xf")]
    D0, D1, D2 = 20, 24, 28
    FX0, FX1, FX2, FY = 32, 36, 40, 44
    T = lambda q: 48 + q
    U = lambda q: 52 + q
    C = lambda q: 56 + q
    S = lambda q: 60 + q
    A_ = lambda q: 76 + q
    B_ = lambda q: 80 + q
    for ks in range(4):
        J = lambda q: 4 * ks + q

        def polar(X, fract):
            for q in range(4):
                k(f"v_mul_f32_dpp v{T(q)}, v{PP}, v{X} {DPP(J(q))}")
                k(f"v_mul_f32_dpp v{U(q)}, v{PW}, v{X} {DPP(J(q))}")
            if red:
                k(red.pop(0))
            for q in range(4):
                k(f"v_exp_f32 v{T(q)}, v{T(q)}")
                if fract:
                    k(f"v_fract_f32 v{U(q)}, v{U(q)}")
            for q in range(4):
                k(f"v_cos_f32 v{C(q)}, v{U(q)}")
                k(f"v_sin_f32 v{S(q)}, v{U(q)}")

        def mf(D, F):
            c = "0" if ks == 0 else v(D, 4)
            k(f"v_mfma_f32_16x16x32_bf16 {v(D,4)}, {v(F,4)}, {v(FY,4)}, {c}")

        polar(XY, False)
        for q in range(4):
            k(f"v_mul_f32_dpp v{A_(q)}, v{WR}, v{T(q)} {DPP(J(q))}")
            k(f"v_mul_f32_dpp v{B_(q)}, v{WI}, v{T(q)} {DPP(J(q))}")
        for q in range(4):
            k(f"v_mul_f32 v{T(q)}, v{A_(q)}, v{C(q)}")
            k(f"v_mul_f32 v{U(q)}, v{B_(q)}, v{C(q)}")
        for q in range(4):
            k(f"v_fmac_f32 v{T(q)}, v{B_(q)}, v{S(q)}")
            k(f"v_fma_f32 v{U(q)}, -v{A_(q)}, v{S(q)}, v{U(q)}")
        for q in range(4):
            k(f"v_cvt_pk_bf16_f32 v{FY+q}, v{T(q)}, v{U(q)}")
        polar(XC, True)
        for q in range(4):
            k(f"v_mul_f32 v{C(q)}, v{T(q)}, v{C(q)}")
            k(f"v_mul_f32 v{S(q)}, v{T(q)}, v{S(q)}")
        for q in range(4):
            k(f"v_cvt_pk_bf16_f32 v{FX2+q}, v{C(q)}, v{S(q)}")
        polar(XA, False)
        mf(D2, FX2)
        for q in range(4):
            k(f"v_mul_f32 v{C(q)}, v{T(q)}, v{C(q)}")
            k(f"v_mul_f32 v{S(q)}, v{T(q)}, v{S(q)}")
        for q in range(4):
            k(f"v_cvt_pk_bf16_f32 v{FX0+q}, v{C(q)}, v{S(q)}")
        for q in range(4):
            k(f"v_mul_f32_dpp v{T(q)}, v{CR}, v{C(q)} {DPP(J(q))}")
            k(f"v_mul_f32_dpp v{U(q)}, v{CI}, v{C(q)} {DPP(J(q))}")
        mf(D0, FX0)
        for q in range(4):
            k(f"v_fmac_f32_dpp v{T(q)}, -v{CI}, v{S(q)} {DPP(J(q))}")
            k(f"v_fmac_f32_dpp v{U(q)}, v{CR}, v{S(q)} {DPP(J(q))}")
        for q in range(4):
            k(f"v_cvt_pk_bf16_f32 v{FX1+q}, v{T(q)}, v{U(q)}")
        k("s_nop 1")
        mf(D1, FX1)
    k("""
    s_waitcnt vmcnt(0)
    v_cndmask_b32 v9, 0, v9, vcc
    """)
    m0, m1, sg = E("KG_M0", 450), E("KG_M1", 300), E("KG_SEG", 370)
    a.L.extend(splice(k.L, [m0] + [m0 + m1 + sg * i for i in range(7)]))
    print("kgen cost", sum(cost(l) for l in k.L), file=sys.stderr)
    dbg_ts(a, 2)
    a(f"""
    s_bitcmp1_b32 s15, 0
    s_cbranch_scc0 k1_kg_fin
    ds_write_b128 v{XAD}, {v(D2,4)} offset:2048
    ds_write_b128 v{XAD}, {v(D0,4)}
    v_mov_b32 v2, 1
    s_nop 2
    v_mov_b32 v{D1+1}, v{KL}
    ds_write_b128 v{XAD}, {v(D1,4)} offset:1024
    ds_write_b32 v{XAD}, v2 offset:3072
    s_waitcnt lgkmcnt(0)
    """)
    dbg_end(a, 0)
    a("s_endpgm")
    a.lab("k1_kg_fin")
    a(f"""
    ds_read_b32 v2, v{XAD} offset:3072
    ds_read_b128 v[32:35], v{XAD}
    ds_read_b128 v[36:39], v{XAD} offset:1024
    ds_read_b128 v[40:43], v{XAD} offset:2048
    s_waitcnt lgkmcnt(0)
    v_readfirstlane_b32 s9, v2
    s_nop 0
    s_cmp_eq_u32 s9, 0
    s_cbranch_scc1 k1_kg_fin
    v_add_f32 v{D0}, v{D0}, v9
    v_mov_b32 v{D1+1}, v{KL}
    """)
    dbg_ts(a, 3)
    for j in range(12):
        if j != 7:
            a(f"v_add_f32 v{20+j}, v{20+j}, v{32+j}")
    a(f"""
    v_cvt_pk_bf16_f32 v12, v{D0}, v{D0+1}
    v_cvt_pk_bf16_f32 v13, v{D0+2}, v{D0+3}
    buffer_store_dwordx2 v[12:13], v{SB}, s[44:47], s11 offen{STF}
    v_cvt_pk_bf16_f32 v14, v{D1}, v{D1+2}
    v_cvt_pk_bf16_f32 v15, v{D2}, v{D2+1}
    v_cvt_pk_bf16_f32 v16, v{D2+2}, v{D2+3}
    v_cvt_pk_bf16_f32 v17, v{D1+1}, v{D1+1}
    buffer_store_dword v14, v{SA}, s[44:47], s11 offen offset:512{STF}
    buffer_store_dword v15, v{SC}, s[44:47], s11 offen offset:768{STF}
    buffer_store_dword v16, v{SD}, s[44:47], s11 offen offset:768{STF}
    buffer_store_dword v17, v{SE}, s[44:47], s11 offen offset:1280{STF}
    """)
    dbg_end(a, 0)
    a.lab("k1_end")
    a("s_endpgm")
    return a, desc("k1_kernel", 160)


STF = os.environ.get("STF", "")
if STF:
    STF = " " + STF

TP = 2064
CV_BASE = 64 * TP
CV_KS = 4160
CV_U = 8320
CV_CH = 12928
K2_LDS = 163840


def gen_k2():
    a = Asm()
    head(a, "k2_kernel")
    a(f"""
    s_cmp_ge_u32 s2, 256
    s_cbranch_scc1 k2_end
    """)
    dbg_start(a)
    a(f"""
    s_load_dwordx2 s[40:41], s[0:1], 112
    s_load_dwordx4 s[16:19], s[0:1], 88
    v_lshrrev_b32 v1, 6, v0
    v_and_b32 v0, 63, v0
    s_and_b32 s4, s2, 7
    v_readfirstlane_b32 s3, v1
    v_readfirstlane_b32 s94, v1
    s_lshr_b32 s5, s2, 3
    v_lshlrev_b32 v1, 4, v0
    s_lshl_b32 s6, s4, 2
    s_lshr_b32 s7, s5, 3
    s_add_u32 s6, s6, s7            ; head
    s_lshl_b32 s8, s6, 17
    s_add_u32 s8, s8, {KVI}         ; kv base
    s_mul_i32 s9, s3, {TP}
    s_lshl_b32 s10, s3, 11
    s_add_u32 s10, s10, s8
    s_mov_b32 m0, s9
    s_mov_b32 s46, {hex(WS_BYTES)}
    s_mov_b32 s47, 0x00020000
    s_and_b32 s7, s5, 7
    s_lshl_b32 s7, s7, 3
    s_add_u32 s7, s7, s3            ; qt
    s_lshl_b32 s11, s6, 16
    s_lshl_b32 s12, s7, 10
    s_add_u32 s11, s11, s12
    s_add_u32 s11, s11, {QI}
    s_cmp_ge_u32 s3, 8
    s_waitcnt lgkmcnt(0)
    s_mov_b32 s44, s40
    s_and_b32 s45, s41, 0xffff
    s_cbranch_scc1 k2_conv
    """.replace("s_and_b32 s45, s41, 0xffff\n    s_cbranch_scc1 k2_conv", "s_and_b32 s45, s41, 0xffff\n    s_cmp_ge_u32 s3, 8\n    s_cbranch_scc1 k2_conv"))

    def tile_dma():
        a(f"""
        buffer_load_dwordx4 v1, s[44:47], s10 offen lds
        buffer_load_dwordx4 v1, s[44:47], s10 offen offset:1024 lds
        s_add_u32 m0, m0, {TP}
        s_add_u32 s10, s10, 2048
        """)

    Q, IDX, KA, VA0, VA1 = 4, 2, 3, 28, 29
    KB = [8, 12]
    V0B = [16, 96]
    V1B = [20, 100]
    NEGM, O = 32, 80
    SB = [48, 64]
    NA = E("K2_NA", 3)
    NC = (64 - 12 - 8 * NA) // 4
    NC0 = E("K2_NC0", 3)
    assert 12 + 8 * NA + 4 * NC == 64
    a(f"""
    buffer_load_dwordx4 v1, s[44:47], s10 offen lds
    buffer_load_dwordx4 {v(Q,4)}, v1, s[44:47], s11 offen
    buffer_load_dwordx4 v1, s[44:47], s10 offen offset:1024 lds
    s_lshl_b32 s12, s7, 15
    s_lshl_b32 s13, s6, 10
    s_add_u32 s12, s12, s13
    s_add_u32 s12, s12, {OI}        ; O dest
    s_mov_b32 s22, 1
    s_mov_b32 s23, {E("K2_B2", 2)}
    s_mov_b32 s24, 0
    v_mov_b32 v{IDX}, 0xdddddddd
    v_and_b32 v23, 15, v0
    v_lshrrev_b32 v24, 5, v0
    v_lshlrev_b32 v23, 4, v23
    v_lshl_add_u32 v30, v24, 8, v23
    v_add_u32 v30, 1024, v30
    v_add_u32 v31, 512, v30
    v_and_b32 v23, 16, v0
    v_cmp_eq_u32 vcc, 16, v23
    v_mov_b32 v24, 2048
    s_mul_i32 s9, s3, {NA}
    s_add_u32 s9, s9, 12
    v_cndmask_b32 v30, v30, v24, vcc
    v_cndmask_b32 v31, v31, v24, vcc
    s_lshl_b32 s10, s9, 11
    s_add_u32 s10, s10, s8
    s_mul_i32 s9, s9, {TP}
    s_mov_b32 m0, s9
    s_nop 0
    """)
    for i in range(NA):
        tile_dma()
    if E("K2_PRIO", 0) == 1:
        a("""
        s_cmp_lt_u32 s3, 4
        s_cbranch_scc1 k2_np
        s_setprio 1
        """)
        a.lab("k2_np")
    a(f"s_waitcnt vmcnt({2*NA})")
    if DBG == 1:
        dbg_ts(a, 0)
    a(f"""
    s_barrier
    ds_read_b128 {v(KB[0],4)}, v1
    """)
    if DBG == 1:
        dbg_ts(a, 1)
    a(f"""
    s_waitcnt lgkmcnt(0)
    v_mfma_f32_32x32x16_bf16 {v(SB[0],16)}, {v(KB[0],4)}, {v(Q,4)}, 0
    s_nop 11
    v_max3_f32 v23, v{SB[0]}, v{SB[0]+1}, v{SB[0]+2}
    """)
    for j in range(3, 15, 2):
        a(f"v_max3_f32 v23, v23, v{SB[0]+j}, v{SB[0]+j+1}")
    a(f"v_max_f32 v23, v23, v{SB[0]+15}")
    a.lab("k2_start")
    a(f"""
    v_mov_b32 v24, v23
    v_mov_b32 v{KA}, v1
    v_mov_b32 v{VA0}, v30
    v_permlane32_swap_b32 v23, v24
    v_mov_b32 v{VA1}, v31
    ds_read_b128 {v(KB[1],4)}, v{KA} offset:{TP}
    ds_read_b128 {v(V0B[0],4)}, v{VA0}
    v_max_f32 v23, v23, v24
    """)
    for j in range(16):
        a(f"v_sub_f32 v{NEGM+j}, 0, v23")
    a(f"ds_read_b128 {v(V1B[0],4)}, v{VA1}")
    for j in range(4):
        a(f"v_mov_b32 v{V1B[1]+j}, 0")
    a(f"v_mfma_f32_32x32x16_bf16 {v(SB[0],16)}, {v(KB[0],4)}, {v(Q,4)}, {v(NEGM,16)}")
    for j in range(8):
        a(f"v_mov_b32 v{SB[1]+8+j}, 0")
    for j in range(16):
        a(f"v_mov_b32 v{O+j}, 0")
    a("s_mov_b32 s25, 0")
    a.lab("k2_loop")
    a(f"""
    s_cmp_eq_u32 s25, s22
    s_cbranch_scc1 k2_bar1
    s_cmp_eq_u32 s25, s23
    s_cbranch_scc1 k2_bar2
    """)
    a.lab("k2_body")
    if DBG == 2:
        for k in range(7):
            a(f"s_mov_b32 s{64+2*k}, s{66+2*k}")
        a("s_memtime s[78:79]")
    U = 8
    for i in range(U):
        p, q = i % 2, (i + 1) % 2
        Sc, Sn = SB[p], SB[q]
        ex = lambda j: a(f"v_exp_f32 v{Sc+j}, v{Sc+j}")
        ex(0); ex(1)
        a("s_waitcnt lgkmcnt(0)")
        a(f"v_smfmac_f32_32x32x32_bf16 {v(O,16)}, {v(V1B[q],4)}, {v(Sn+8,8)}, v{IDX}")
        a(f"ds_read_b128 {v(KB[p],4)}, v{KA} offset:{(i+2)*TP}")
        ex(2)
        a(f"ds_read_b128 {v(V0B[q],4)}, v{VA0} offset:{(i+1)*TP}")
        ex(3)
        a(f"ds_read_b128 {v(V1B[q],4)}, v{VA1} offset:{(i+1)*TP}")
        ex(4)
        a(f"v_mfma_f32_32x32x16_bf16 {v(Sn,16)}, {v(KB[q],4)}, {v(Q,4)}, {v(NEGM,16)}")
        for j in range(5, 10):
            ex(j)
        a(f"v_smfmac_f32_32x32x32_bf16 {v(O,16)}, {v(V0B[p],4)}, {v(Sc,8)}, v{IDX}")
        for j in range(10, 16):
            ex(j)
    a(f"""
    v_add_u32 v{KA}, {U*TP}, v{KA}
    v_add_u32 v{VA0}, {U*TP}, v{VA0}
    v_add_u32 v{VA1}, {U*TP}, v{VA1}
    s_add_u32 s25, s25, 1
    s_cmp_lt_u32 s25, {64//U}
    s_cbranch_scc1 k2_loop
    v_smfmac_f32_32x32x32_bf16 {v(O,16)}, {v(V1B[1],4)}, {v(SB[1]+8,8)}, v{IDX}
    s_waitcnt lgkmcnt(0)
    s_nop 10
    v_mul_f32 v23, 0, v{O+8}
    """)
    if DBG == 1:
        dbg_ts(a, 4)
    for j in range(8):
        a(f"v_fma_f32 v23, 0, v{O+j}, v23")
    a(f"""
    v_add_f32 v23, v23, v{O+8}
    v_mov_b32 v24, {fl(2.0**100)}
    v_cmp_nlt_f32 vcc, v23, v24
    v_rcp_f32 v25, v{O+8}
    s_cmp_lg_u32 s24, 0
    s_cbranch_scc1 k2_store
    s_cmp_lg_u64 vcc, 0
    s_cbranch_scc1 k2_fallback
    """)
    a.lab("k2_store")
    for j in range(8):
        a(f"v_mul_f32 v{O+j}, v25, v{O+j}")
    for j in range(4):
        a(f"v_cvt_pk_bf16_f32 v{24+j}, v{O+2*j}, v{O+2*j+1}")
    a(f"buffer_store_dwordx4 v[24:27], v1, s[44:47], s12 offen{STF}")
    dbg_end(a, 1)
    a("s_endpgm")
    a.lab("k2_bar1")
    a("""
    s_waitcnt vmcnt(0)
    s_barrier
    """)
    if DBG == 1:
        dbg_ts(a, 2)
    a("s_branch k2_body")
    a.lab("k2_bar2")
    a("s_barrier")
    if DBG == 1:
        dbg_ts(a, 3)
    a("s_branch k2_body")
    a.lab("k2_fallback")
    a(f"""
    s_mov_b32 s24, 1
    s_mov_b32 s22, 1000
    s_mov_b32 s23, 1000
    s_mov_b32 s25, 0
    v_mov_b32 v23, 0xff800000
    v_add_u32 v{KA}, {63*TP}, v1
    """)
    a.lab("k2_fb_loop")
    a(f"""
    ds_read_b128 {v(KB[0],4)}, v{KA}
    v_subrev_u32 v{KA}, {TP}, v{KA}
    s_waitcnt lgkmcnt(0)
    v_mfma_f32_32x32x16_bf16 {v(SB[0],16)}, {v(KB[0],4)}, {v(Q,4)}, 0
    s_nop 11
    """)
    for j in range(0, 16, 2):
        a(f"v_max3_f32 v23, v23, v{SB[0]+j}, v{SB[0]+j+1}")
    a(f"""
    s_add_u32 s25, s25, 1
    s_cmp_lt_u32 s25, 64
    s_cbranch_scc1 k2_fb_loop
    s_branch k2_start
    """)

    a.lab("k2_conv")
    a(f"""
    buffer_load_dwordx4 v1, s[44:47], s10 offen lds
    buffer_load_dwordx4 v1, s[44:47], s10 offen offset:1024 lds
    s_sub_u32 s3, s3, 8             ; j
    v_mov_b32 v4, {TP}
    v_mul_u32_u24 v4, v4, v0
    v_mov_b32 v8, 0x3f803f80
    v_mov_b32 v9, 0x3f803f80
    v_mov_b32 v10, 0x3f803f80
    v_mov_b32 v11, 0x3f803f80
    ds_write_b128 v4, v[8:11] offset:2048
    s_mul_i32 s9, s3, {NC}
    s_add_u32 s9, s9, {12 + 8*NA}
    s_lshl_b32 s10, s9, 11
    s_add_u32 s10, s10, s8
    s_mul_i32 s9, s9, {TP}
    s_mov_b32 m0, s9
    s_lshl_b32 s6, s4, 6
    s_lshl_b32 s7, s5, 1
    s_add_u32 s6, s6, s7            ; d0
    """)
    for i in range(NC0):
        tile_dma()
    a(f"""
    s_waitcnt vmcnt({2*NC0}) lgkmcnt(0)
    s_barrier
    """)
    for i in range(NC - NC0):
        tile_dma()
    srd(a, 52, 18, 2048 * 1024 * 2)
    srd(a, 48, 16, 512 * 512 * 2)
    a(f"""
    s_and_b32 s10, s3, 1
    s_add_u32 s11, s6, s10
    s_mul_i32 s12, s10, {CV_CH}
    s_add_u32 s12, s12, {CV_BASE}
    s_lshr_b32 s13, s3, 1
    s_lshl_b32 s13, s13, 11
    s_add_u32 m0, s12, s13
    s_lshl_b32 s14, s11, 12
    s_add_u32 s14, s14, s13
    s_add_u32 s14, s14, {UT - CV_U}
    s_add_u32 m0, m0, {CV_U}
    s_add_u32 s14, s14, {CV_U}
    buffer_load_dwordx4 v1, s[44:47], s14 offen lds
    buffer_load_dwordx4 v1, s[44:47], s14 offen offset:1024 lds
    s_mul_i32 s11, s11, {KD_PITCH}
    s_add_u32 s11, s11, {KD}
    v_lshlrev_b32 v3, 3, v0
    v_lshlrev_b32 v4, 2, v0
    s_mov_b32 s14, 0x01000100
    s_mov_b32 s15, 0x03020302
    s_mov_b32 s26, 0x05040302
    s_cmp_ge_u32 s3, 2
    s_cbranch_scc1 k2_cv_zero
    buffer_load_dwordx3 v[72:74], v3, s[44:47], s11 offen
    buffer_load_dwordx2 v[76:77], v4, s[44:47], s11 offen offset:512
    buffer_load_dwordx2 v[78:79], v4, s[44:47], s11 offen offset:768
    buffer_load_dwordx2 v[80:81], v4, s[44:47], s11 offen offset:1024
    v_add_u32 v3, s12, v3
    v_add_u32 v6, s12, v1
    v_lshlrev_b32 v7, 5, v0
    v_add_u32 v7, s12, v7
    s_waitcnt vmcnt(6)
    s_barrier
    s_waitcnt vmcnt(0)
    """)
    EE = lambda d, r: a(f"v_perm_b32 v{d}, v{r}, v{r}, s14")
    OO = lambda d, r: a(f"v_perm_b32 v{d}, v{r}, v{r}, s15")
    EO = lambda d, r: a(f"v_mov_b32 v{d}, v{r}")
    OE = lambda d, r: a(f"v_perm_b32 v{d}, v{r+1}, v{r}, s26")
    FF = lambda d, r: a(f"v_perm_b32 v{d}, v{r+1}, v{r+1}, s14")
    a(f"ds_write_b64 v3, v[72:73] offset:32")
    OE(8, 72)
    OE(9, 73)
    a(f"ds_write_b64 v3, v[8:9] offset:{32+CV_KS}")
    EE(10, 76); OE(11, 76); EO(12, 76); FF(13, 76)
    a(f"ds_write_b64 v3, v[10:11] offset:{32+512}")
    a(f"ds_write_b64 v3, v[12:13] offset:{32+512+CV_KS}")
    for d, f in zip(range(16, 24), (EE, EO, OO, FF, EE, OO, OE, FF)):
        f(d, 78)
    a(f"ds_write_b128 v6, v[16:19] offset:{32+1024}")
    a(f"ds_write_b128 v6, v[20:23] offset:{32+1024+CV_KS}")
    for d, f in zip(range(24, 40), (EE, EE, EO, OO, OO, OO, FF, FF, EE, EE, OO, OO, OO, OE, FF, FF)):
        f(d, 80)
    a(f"ds_write_b128 v7, v[24:27] offset:{32+2048}")
    a(f"ds_write_b128 v7, v[28:31] offset:{32+2048+16}")
    a(f"ds_write_b128 v7, v[32:35] offset:{32+2048+CV_KS}")
    a(f"ds_write_b128 v7, v[36:39] offset:{32+2048+16+CV_KS}")
    a(f"""
    v_mov_b32 v40, 0
    v_mov_b32 v41, 0
    v_mov_b32 v42, 0
    v_mov_b32 v43, 0
    v_mov_b32 v44, 0
    v_mov_b32 v45, 0
    v_mov_b32 v46, 0
    v_lshlrev_b32 v47, 16, v72
    s_mov_b64 exec, 1
    ds_write_b128 v6, v[40:43]
    ds_write_b128 v6, v[40:43] offset:16
    ds_write_b128 v6, v[40:43] offset:{CV_KS}
    ds_write_b128 v6, v[44:47] offset:{CV_KS+16}
    s_mov_b64 exec, -1
    s_branch k2_cv_go
    """)
    a.lab("k2_cv_zero")
    a(f"""
    v_add_u32 v3, s12, v3
    v_mov_b32 v40, 0
    v_mov_b32 v41, 0
    ds_write_b64 v3, v[40:41] offset:{CV_U+4096}
    s_waitcnt vmcnt(2)
    s_barrier
    """)
    a.lab("k2_cv_go")
    dbg_ts(a, 0)
    a(f"""
    v_and_b32 v13, 15, v0           ; r / c
    v_lshrrev_b32 v14, 4, v0        ; g
    v_add_u32 v15, 1, v13
    v_lshrrev_b32 v16, 1, v15
    v_lshl_add_u32 v16, v14, 2, v16
    v_lshlrev_b32 v16, 2, v16
    v_and_b32 v15, 1, v15           ; r even
    v_mul_u32_u24 v15, {CV_KS}, v15
    v_add_u32 v4, v15, v16
    v_add_u32 v4, {CV_BASE}, v4
    """)
    for ch in range(2):
        for mp in range(4):
            if ch == 0 and mp == 0:
                continue
            a(f"v_add_u32 v{4+4*ch+mp}, {ch*CV_CH + mp*1024}, v4")
    a(f"""
    v_lshlrev_b32 v15, 5, v13
    v_lshlrev_b32 v16, 4, v14
    v_sub_u32 v12, v16, v15
    v_add_u32 v12, {CV_BASE + CV_U + 480}, v12
    v_lshlrev_b32 v13, 15, v13
    v_lshl_add_u32 v13, v14, 13, v13
    """)
    for j in range(16):
        a(f"v_mov_b32 v{96+j}, 0")
    a(f"""
    s_mov_b32 s25, 0
    s_lshl_b32 s11, s2, 2
    s_add_u32 s11, s11, s3
    s_lshl_b32 s11, s11, 9
    v_lshlrev_b32 v3, 3, v0
    s_waitcnt vmcnt(0) lgkmcnt(0)
    s_barrier
    buffer_load_dwordx2 v[112:113], v3, s[48:51], s11 offen
    """)
    if E("K2_CPRIO", 2):
        a(f"s_setprio {E('K2_CPRIO', 2)}")
    dbg_ts(a, 1)
    if E("X_NOCONV", 0):
        a("s_endpgm")
    a(f"""
    s_cmp_eq_u32 s3, 1
    s_cbranch_scc1 k2_cv1
    s_cmp_eq_u32 s3, 2
    s_cbranch_scc1 k2_cv2
    s_cmp_eq_u32 s3, 3
    s_cbranch_scc1 k2_cv3
    """)
    AF, BF, AC = 32, 64, 96
    for j in range(4):
        c1, c2 = j, 7 - j
        a.lab(f"k2_cv{j}")
        for ch in range(2):
            for m in range(c2 + 1):
                base = 4 + 4 * ch + m // 2
                o = 128 * (m & 1)
                a(f"ds_read2_b32 {v(AF+4*m,2)}, v{base} offset0:{o} offset1:{o+1}")
                a(f"ds_read2_b32 {v(AF+4*m+2,2)}, v{base} offset0:{o+2} offset1:{o+3}")
                kk = c2 - m
                a(f"ds_read_b128 {v(BF+4*kk,4)}, v12 offset:{512*(7-kk)+ch*CV_CH}")
            a("s_waitcnt lgkmcnt(0)")
            d1, d2 = v(AC + 8 * ch, 4), v(AC + 8 * ch + 4, 4)
            seq = [(d2, m, c2 - m) for m in range(c2 + 1)]
            seq1 = [(d1, m, c1 - m) for m in range(c1 + 1)]
            merged = []
            while seq or seq1:
                if seq:
                    merged.append(seq.pop(0))
                if seq1:
                    merged.append(seq1.pop(0))
            for d, m, kk in merged:
                a(f"v_mfma_f32_16x16x32_bf16 {d}, {v(AF+4*m,4)}, {v(BF+4*kk,4)}, {d}")
        for ch in range(2):
            for mp in range(c2 // 2 + 1):
                a(f"v_add_u32 v{4+4*ch+mp}, 64, v{4+4*ch+mp}")
        a(f"""
        v_add_u32 v12, 64, v12
        s_add_u32 s25, s25, 1
        s_cmp_lt_u32 s25, 8
        s_cbranch_scc1 k2_cv{j}
        s_lshl_b32 s9, s6, 1
        s_add_u32 s8, s9, {c1*256*2048}
        s_add_u32 s9, s9, {c2*256*2048}
        s_branch k2_cv_out
        """)
    a.lab("k2_cv_out")
    dbg_ts(a, 2)
    a("""
    s_add_u32 s10, s8, 4096
    s_add_u32 s11, s9, 4096
    """)
    for cb in range(2):
        for jj in range(4):
            a(f"v_cvt_pk_bf16_f32 v{16+4*cb+jj}, v{AC+4*cb+jj}, v{AC+8+4*cb+jj}")
    for cb in range(2):
        for jj in range(4):
            so = 8 + cb + 2 * (jj // 2)
            a(f"buffer_store_dword v{16+4*cb+jj}, v13, s[52:55], s{so} offen offset:{(jj%2)*2048}")
    dbg_end(a, 1)
    a.lab("k2_end")
    a("s_endpgm")
    return a, desc("k2_kernel", 116)


K3_LDS = 131072


def gen_k3():
    a = Asm()
    head(a, "k3_kernel")
    a(f"""
    s_cmp_ge_u32 s2, 256
    s_cbranch_scc1 k3_end
    """)
    dbg_start(a)
    a(f"""
    s_load_dwordx2 s[40:41], s[0:1], 112
    s_load_dwordx4 s[16:19], s[0:1], 88
    v_lshrrev_b32 v1, 6, v0
    v_and_b32 v0, 63, v0
    s_and_b32 s4, s2, 7
    v_readfirstlane_b32 s3, v1
    v_readfirstlane_b32 s94, v1
    s_lshr_b32 s5, s2, 3
    v_lshlrev_b32 v1, 4, v0
    s_lshl_b32 s6, s4, 2
    s_lshr_b32 s7, s5, 3
    s_add_u32 s6, s6, s7            ; rt
    s_and_b32 s7, s5, 7             ; ct
    s_and_b32 s10, s3, 3            ; stream
    s_lshr_b32 s11, s3, 2           ; half
    s_lshl_b32 s9, s10, 15
    s_lshl_b32 s12, s11, 11
    s_add_u32 s9, s9, s12
    s_mov_b32 m0, s9
    s_cmp_ge_u32 s10, 2
    s_cbranch_scc1 k3_w
    s_lshl_b32 s8, s6, 16
    s_add_u32 s8, s8, s9
    s_add_u32 s8, s8, {OI}
    s_waitcnt lgkmcnt(0)
    """)
    srd(a, 44, 40, WS_BYTES)
    for c in range(8):
        a(f"""
        buffer_load_dwordx4 v1, s[44:47], s8 offen lds
        buffer_load_dwordx4 v1, s[44:47], s8 offen offset:1024 lds
        """)
        if c < 7:
            a("""
            s_add_u32 m0, m0, 4096
            s_add_u32 s8, s8, 4096
            """)
    a("s_branch k3_go")
    a.lab("k3_w")
    a(f"""
    v_lshrrev_b32 v2, 2, v0
    v_and_b32 v3, 3, v0
    v_lshlrev_b32 v2, 10, v2
    v_lshl_add_u32 v2, v3, 4, v2
    v_add_u32 v3, {16384-1024}, v2
    s_lshl_b32 s8, s7, 7
    s_and_b32 s12, s10, 1
    s_lshl_b32 s12, s12, 6
    s_add_u32 s8, s8, s12
    s_lshl_b32 s12, s11, 15
    s_add_u32 s8, s8, s12
    s_waitcnt lgkmcnt(0)
    """)
    srd(a, 48, 16, 512 * 512 * 2)
    for c in range(8):
        a(f"""
        buffer_load_dwordx4 v2, s[48:51], s8 offen lds
        buffer_load_dwordx4 v3, s[48:51], s8 offen offset:1024 lds
        """)
        if c < 7:
            a("""
            s_add_u32 m0, m0, 4096
            s_add_u32 s8, s8, 65536
            """)
    if DBG:
        srd(a, 44, 40, WS_BYTES)
    a.lab("k3_go")
    dbg_ts(a, 0)
    a("""
    s_cmp_ge_u32 s3, 4
    s_cbranch_scc1 k3_ld
    """)
    srd(a, 52, 18, 2048 * 1024 * 2)
    a(f"""
    s_and_b32 s10, s3, 1            ; qh
    s_lshr_b32 s11, s3, 1           ; nh
    s_lshl_b32 s12, s10, 15
    s_lshl_b32 s13, s11, 15
    s_add_u32 s13, s13, 65536
    v_add_u32 v2, s12, v1
    v_lshrrev_b32 v5, 5, v0         ; h
    v_bfe_u32 v3, v0, 2, 2
    v_lshl_add_u32 v3, v5, 2, v3    ; row = 4h + (i>>2)
    v_lshlrev_b32 v3, 6, v3
    v_and_b32 v4, 1, v0
    v_lshl_add_u32 v3, v4, 5, v3    ; + 16*(c&1) cols
    v_bfe_u32 v4, v0, 4, 1
    v_lshl_add_u32 v3, v4, 4, v3    ; + 8G cols
    v_bfe_u32 v4, v0, 1, 1
    v_lshl_add_u32 v3, v4, 3, v3    ; + 4*(c>>1) cols
    v_add_u32 v3, s13, v3
    s_lshl_b32 s12, s6, 1
    s_add_u32 s12, s12, s10
    s_lshl_b32 s12, s12, 16         ; (2rt+qh)*32*2048
    s_lshl_b32 s13, s7, 1
    s_add_u32 s13, s13, s11
    s_lshl_b32 s13, s13, 6
    s_add_u32 s12, s12, s13
    s_add_u32 s12, s12, 1024
    v_and_b32 v4, 31, v0
    v_lshlrev_b32 v4, 11, v4
    v_lshl_add_u32 v4, v5, 5, v4
    """)
    D = 80
    for c in range(8):
        a(f"s_waitcnt vmcnt({14-2*c})")
        a("s_barrier")
        if c in (0, 4, 7):
            dbg_ts(a, {0: 1, 4: 2, 7: 3}[c])
        F = 16 + 32 * (c % 2)
        for i in range(4):
            hd = 4 * c + i
            a(f"ds_read_b128 {v(F+8*i,4)}, v2 offset:{hd*1024}")
            a(f"ds_read_b64_tr_b16 {v(F+8*i+4,2)}, v3 offset:{hd*1024}")
            a(f"ds_read_b64_tr_b16 {v(F+8*i+6,2)}, v3 offset:{hd*1024+512}")
        for i in range(4):
            a(f"s_waitcnt lgkmcnt({9-3*i})")
            cc = "0" if (c == 0 and i == 0) else v(D, 16)
            a(f"v_mfma_f32_32x32x16_bf16 {v(D,16)}, {v(F+8*i+4,4)}, {v(F+8*i,4)}, {cc}")
    a("s_nop 11")
    dbg_ts(a, 4)
    for j in range(8):
        a(f"v_cvt_pk_bf16_f32 v{8+j}, v{D+2*j}, v{D+2*j+1}")
    a("""
    buffer_store_dwordx4 v[8:11], v4, s[52:55], s12 offen
    buffer_store_dwordx4 v[12:15], v4, s[52:55], s12 offen offset:16
    """)
    dbg_end(a, 2)
    a("s_endpgm")
    a.lab("k3_ld")
    for c in range(7):
        a(f"s_waitcnt vmcnt({14-2*c})")
        a("s_barrier")
    a("s_waitcnt vmcnt(0)")
    dbg_end(a, 2)
    a.lab("k3_end")
    a("s_endpgm")
    return a, desc("k3_kernel", 96)


def build():
    ks = [gen_k1(), gen_k2(), gen_k3()]
    hdr = [
        "; generated by work/gen.py",
        f"; @launch kernel=k1_kernel grid=(256,1,1) block=(768,1,1) lds={K1_LDS}",
        f"; @launch kernel=k2_kernel grid=(256,1,1) block=(768,1,1) lds={K2_LDS}",
        f"; @launch kernel=k3_kernel grid=(256,1,1) block=(512,1,1) lds={K3_LDS}",
    ]
    out = "\n".join(hdr) + "\n"
    out += '.amdgcn_target "amdgcn-amd-amdhsa--gfx950"\n.text\n'
    for a, d in ks:
        out += a.text()
    out += '.section .rodata,"a"\n'
    for a, d in ks:
        out += d
    return out


if __name__ == "__main__":
    path = sys.argv[1] if len(sys.argv) > 1 else f"cdna_kernels/{NAME}.s"
    open(path, "w").write(build())
    print("wrote", path)
```

```python
from genlib import *

E = lambda k, d: int(os.environ.get(k, str(d)))

K1_SLOT = 32768
K1_NS = 4
K1_TAB = 0
K1_XB = 8192
K1_UBUF = 16384
K1_RING = 24576
K1_LDS = K1_RING + K1_SLOT * K1_NS


def cost(line):
    t = line.strip()
    if t.startswith(("v_exp", "v_sin", "v_cos", "v_rcp", "v_mfma")):
        return 8
    if t.startswith(("v_cvt_pk", "v_fma_", "v_pk")) or "_dpp" in t:
        return 5
    return 4


def splice(lines, marks):
    out, acc, k = [], 0, 0
    nbar = len(marks)
    for l in lines:
        if k < nbar and acc >= marks[k]:
            out.append("    s_barrier")
            k += 1
        out.append(l)
        acc += cost(l)
    out += ["    s_barrier"] * (nbar - k)
    return out


def gen_k1():
    a = Asm()
    head(a, "k1_kernel")
    a(f"""
    s_cmp_ge_u32 s2, 256
    s_cbranch_scc1 k1_end
    """)
    dbg_start(a)
    a(f"""
    s_load_dwordx8 s[32:39], s[0:1], 64
    s_load_dwordx16 s[16:31], s[0:1], 0
    s_load_dwordx2 s[40:41], s[0:1], 112
    v_lshrrev_b32 v1, 6, v0
    v_and_b32 v0, 63, v0
    s_and_b32 s4, s2, 7             ; xcd
    v_readfirstlane_b32 s3, v1
    v_readfirstlane_b32 s94, v1
    s_lshr_b32 s5, s2, 3            ; idx
    s_and_b32 s15, s3, 3
    s_lshr_b32 s14, s3, 2
    s_cmp_eq_u32 s14, 1
    s_cbranch_scc1 k1_kgen
    s_and_b32 s6, s4, 1
    s_lshl_b32 s6, s6, 2
    s_and_b32 s7, s5, 3
    s_add_u32 s6, s6, s7
    s_lshr_b32 s7, s4, 1
    s_lshl_b32 s7, s7, 3
    s_lshr_b32 s8, s5, 2
    s_add_u32 s7, s7, s8
    s_and_b32 s12, s15, 1           ; rb
    s_lshr_b32 s13, s15, 1          ; hb
    s_lshl_b32 s8, s7, 1
    s_add_u32 s8, s8, s12
    s_lshl_b32 s12, s12, 12
    v_lshrrev_b32 v13, 5, v0        ; h
    s_cmp_eq_u32 s14, 0
    s_cbranch_scc1 k1_load
    """)

    def dma_stage(st):
        slot = K1_RING + (st % K1_NS) * K1_SLOT
        a(f"""
        s_add_u32 m0, s12, {slot}
        s_lshl_b32 s14, s60, 7
        s_add_u32 s14, s14, s9
        buffer_load_dwordx4 v2, s[48:51], s14 offen lds
        buffer_load_dwordx4 v3, s[48:51], s14 offen offset:1024 lds
        s_add_u32 m0, s13, {slot}
        s_mul_i32 s14, s60, {64*3072}
        buffer_load_dwordx4 v6, s[52:55], s14 offen lds
        buffer_load_dwordx4 v6, s[52:55], s14 offen offset:1024 lds
        buffer_load_dwordx4 v6, s[52:55], s14 offen offset:2048 lds
        s_add_u32 m0, s13, {slot + 3072}
        s_add_u32 s14, s14, {8*3072}
        buffer_load_dwordx4 v6, s[52:55], s14 offen lds
        buffer_load_dwordx4 v6, s[52:55], s14 offen offset:1024 lds
        buffer_load_dwordx4 v6, s[52:55], s14 offen offset:2048 lds
        s_add_u32 s60, s60, 1
        s_and_b32 s60, s60, 7
        """)

    a(f"""
    v_and_b32 v7, 31, v0            ; s
    v_bfe_u32 v14, v0, 1, 3         ; (s>>1)&7
    v_xor_b32 v14, v14, v13         ; h ^ f
    v_lshlrev_b32 v15, 7, v7
    s_add_u32 s12, s12, {K1_RING}
    v_add_u32 v15, s12, v15         ; rb*4096 + s*128
    v_lshl_add_u32 v8, v14, 4, v15
    v_xor_b32 v9, 32, v8
    v_xor_b32 v10, 64, v8
    v_xor_b32 v11, 96, v8
    v_mul_u32_u24 v12, 3072, v13    ; h*3072
    v_bfe_u32 v14, v0, 2, 2         ; r
    v_lshl_add_u32 v12, v14, 7, v12
    v_bfe_u32 v14, v0, 3, 1         ; r>>1
    v_xor_b32 v14, s13, v14
    v_lshl_add_u32 v12, v14, 6, v12
    v_bfe_u32 v14, v0, 4, 1
    v_lshl_add_u32 v12, v14, 5, v12
    v_and_b32 v14, 3, v0
    v_lshl_add_u32 v12, v14, 3, v12
    v_add_u32 v12, {K1_RING}, v12
    v_add_u32 v13, {2*K1_SLOT}, v8
    v_add_u32 v14, {2*K1_SLOT}, v9
    v_add_u32 v15, {2*K1_SLOT}, v10
    v_add_u32 v16, {2*K1_SLOT}, v11
    v_add_u32 v17, {2*K1_SLOT}, v12
    s_lshl_b32 s6, s6, 1
    s_add_u32 s6, s6, s13
    """)
    FR = [20, 36, 112, 128, 144]
    fr = lambda g: FR[g % 3] if g < 29 else FR[g - 27]
    ACC = [64, 80, 96]

    def reads(g):
        st, kk = g // 4, g % 4
        F = fr(g)
        sl = st % K1_NS
        xb = (8 if sl < 2 else 13) + kk
        wb = 12 if sl < 2 else 17
        so = (sl % 2) * K1_SLOT
        L = [f"ds_read_b128 {v(F,4)}, v{xb} offset:{so}"]
        for seg in range(3):
            for half in range(2):
                off = so + 8192 + kk * 6144 + seg * 1024 + half * 512
                L.append(f"ds_read_b64_tr_b16 {v(F+4+4*seg+2*half,2)}, v{wb} offset:{off}")
        return L

    def mfmas(g):
        F = fr(g)
        x = v(F, 4)
        L = []
        for seg in range(3):
            w = v(F + 4 + 4 * seg, 4)
            d = v(ACC[seg], 16)
            c = "0" if g == 0 else d
            if seg < 2:
                L.append(f"v_mfma_f32_32x32x16_bf16 {d}, {w}, {x}, {c}")
            else:
                L.append(f"v_mfma_f32_32x32x16_bf16 {d}, {x}, {w}, {c}")
        return L

    a(f"""
    s_lshl_b32 s10, s6, 17          ; fg*2*65536
    s_lshl_b32 s11, s8, 10
    s_add_u32 s10, s10, s11
    s_add_u32 s10, s10, {QI}        ; Q head A
    s_add_u32 s11, s10, 65536       ; Q head B
    s_lshl_b32 s12, s6, 18          ; fg*2*131072
    s_lshl_b32 s13, s8, 11
    s_add_u32 s12, s12, s13
    s_add_u32 s12, s12, {KVI}
    s_add_u32 s13, s12, 131072
    v_lshlrev_b32 v1, 4, v0         ; lane*16
    v_and_b32 v2, 0x33, v0
    v_bfe_u32 v3, v0, 2, 1
    v_lshl_or_b32 v2, v3, 3, v2
    v_bfe_u32 v3, v0, 3, 1
    v_lshl_or_b32 v2, v3, 2, v2
    v_lshlrev_b32 v2, 4, v2         ; K voffset
    v_and_b32 v3, 15, v0
    v_lshlrev_b32 v3, 4, v3
    v_lshrrev_b32 v4, 5, v0
    v_lshl_add_u32 v3, v4, 8, v3
    v_bfe_u32 v4, v0, 4, 1
    v_lshl_add_u32 v3, v4, 17, v3   ; V voffset
    s_mov_b32 s14, {fl(0.25*LOG2E)}
    """)
    a("s_waitcnt lgkmcnt(0)")
    srd(a, 44, 40, WS_BYTES)
    if E("K1_GPRIO", 2):
        a(f"s_setprio {E('K1_GPRIO', 2)}")
    dbg_ts(a, 0)
    a("s_barrier")
    dbg_ts(a, 1)
    for l in reads(0) + reads(1):
        a(l)
    for g in range(26):
        M = mfmas(g)
        R = reads(g + 2)
        a(f"s_waitcnt lgkmcnt(7)")
        a(M[0])
        if g % 4 == 2:
            a("s_waitcnt lgkmcnt(0)")
            a("s_barrier")
            st = g // 4
            if st in (0, 2, 4):
                dbg_ts(a, 2 + st // 2)
        for l in R[0:3]:
            a(l)
        a(M[1])
        for l in R[3:5]:
            a(l)
        a(M[2])
        for l in R[5:7]:
            a(l)
    RD = {g: reads(g) for g in range(28, 32)}
    order = [28, 30, 31, 29]
    rq = []
    for g in order:
        rq += RD[g][0:3]
    for seg in (1, 2):
        for g in order:
            rq += RD[g][1 + 2 * seg:3 + 2 * seg]
    M26, M27 = mfmas(26), mfmas(27)
    a("s_waitcnt lgkmcnt(7)")
    a(M26[0])
    a("s_waitcnt lgkmcnt(0)")
    a("s_barrier")
    dbg_ts(a, 5)
    issued = 0

    def rd(n):
        nonlocal issued
        for l in rq[issued:issued + n]:
            a(l)
        issued = min(len(rq), issued + n)

    for m in (M26[1], M26[2], M27[0], M27[1], M27[2]):
        rd(3)
        a(m)
    O = 4
    def epi(seg):
        L = []
        base = {0: 52, 1: 8, 2: 52}[seg]
        for j in range(8):
            if seg == 0:
                L.append(f"v_mul_f32 v{64+2*j}, s14, v{64+2*j}")
                L.append(f"v_mul_f32 v{65+2*j}, s14, v{65+2*j}")
            L.append(f"v_cvt_pk_bf16_f32 v{base+j}, v{ACC[seg]+2*j}, v{ACC[seg]+2*j+1}")
            if j == 3:
                L.append({0: f"buffer_store_dwordx4 {v(base,4)}, v1, s[44:47], s10 offen{STF}",
                          1: f"buffer_store_dwordx4 {v(base,4)}, v2, s[44:47], s12 offen{STF}",
                          2: f"buffer_store_dwordx4 {v(base,4)}, v3, s[44:47], s12 offen offset:1024{STF}"}[seg])
            if j == 7:
                L.append({0: f"buffer_store_dwordx4 {v(base+4,4)}, v1, s[44:47], s11 offen{STF}",
                          1: f"buffer_store_dwordx4 {v(base+4,4)}, v2, s[44:47], s13 offen{STF}",
                          2: f"buffer_store_dwordx4 {v(base+4,4)}, v3, s[44:47], s12 offen offset:1536{STF}"}[seg])
        return L

    need = {0: lambda i: 3 * (i + 1), 1: lambda i: 12 + 2 * (i + 1), 2: lambda i: 20 + 2 * (i + 1)}
    for seg in range(3):
        fill = epi(seg - 1) if seg else []
        per = (len(fill) + 2) // 3
        for i, g in enumerate(order):
            rd(3)
            w = issued - need[seg](i)
            assert w >= 0
            a(f"s_waitcnt lgkmcnt({min(w, 15)})")
            a(mfmas(g)[seg])
            if i >= 1:
                for l in fill[(i - 1) * per:i * per]:
                    a(l)
    dbg_ts(a, 6)
    a("s_nop 11")
    if not DBG:
        a("s_nop 1")
    for l in epi(2):
        a(l)
    dbg_end(a, 0)
    a("s_endpgm")

    a.lab("k1_load")
    a(f"""
    s_lshl_b32 s9, s8, 15
    s_lshl_b32 s10, s13, 14
    s_add_u32 s9, s9, s10
    s_lshl_b32 s10, s13, 11
    s_add_u32 s12, s12, s10
    v_lshrrev_b32 v1, 3, v0         ; lane>>3
    v_and_b32 v7, 7, v0             ; lane&7
    v_lshrrev_b32 v8, 4, v0         ; lane>>4
    v_xor_b32 v4, v7, v8
    v_lshlrev_b32 v5, 10, v1
    v_lshl_add_u32 v2, v4, 4, v5    ; q even
    v_xor_b32 v3, 64, v2            ; chunk^4
    v_add_u32 v3, 7168, v3          ; q odd
    s_mul_i32 s10, s15, {16*3072}
    s_lshl_b32 s11, s6, 7
    s_add_u32 s10, s10, s11
    s_mul_i32 s13, s15, 6144
    s_add_u32 s13, s13, 8192
    v_and_b32 v8, 1, v8
    v_lshlrev_b32 v8, 2, v8
    v_xor_b32 v7, v7, v8
    v_mul_u32_u24 v8, 3072, v1
    v_lshl_add_u32 v6, v7, 4, v8
    v_add_u32 v6, s10, v6           ; W voffset
    s_lshl_b32 s60, s6, 1
    s_add_u32 s60, s60, s7
    s_and_b32 s60, s60, {E("K1_ROT", 7)}
    s_mov_b32 s50, {hex(2048*512*2)}
    s_mov_b32 s51, 0x00020000
    s_mov_b32 s54, {hex(512*1536*2)}
    s_mov_b32 s55, 0x00020000
    s_waitcnt lgkmcnt(0)
    s_mov_b32 s48, s34
    s_and_b32 s49, s35, 0xffff
    s_mov_b32 s52, s36
    s_and_b32 s53, s37, 0xffff
    """)
    LA = E("K1_LA", 3)
    q = []

    def issue(tag, n):
        q.extend([tag] * n)

    def wait_for(tag):
        last = max(i for i, t in enumerate(q) if t == tag)
        a(f"s_waitcnt vmcnt({len(q) - 1 - last})")

    nxt = 0
    for st in range(LA):
        dma_stage(st); issue(st, 8); nxt += 1
    if DBG:
        srd(a, 44, 40, WS_BYTES)
    for b in range(8):
        wait_for(b)
        if b < 6:
            dbg_ts(a, b)
        a("s_barrier")
        while nxt < 8 and nxt - K1_NS <= b - 1 and nxt <= b + LA:
            dma_stage(nxt); issue(nxt, 8); nxt += 1
    assert nxt == 8
    dbg_end(a, 0)
    a("s_endpgm")

    a.lab("k1_kgen")
    XA, XY, XC, XAD = 64, 65, 66, 67
    SA, SB, SC, SD, SE = 68, 69, 70, 71, 72
    a(f"""
    s_setprio 3
    s_lshl_b32 s6, s4, 6
    s_lshl_b32 s7, s5, 1
    s_add_u32 s6, s6, s7
    s_lshr_b32 s7, s15, 1
    s_add_u32 s6, s6, s7            ; channel d
    s_lshl_b32 s8, s6, 8
    s_and_b32 s9, s15, 1
    s_lshl_b32 s9, s9, 7
    s_add_u32 s8, s8, s9            ; d*256 + half*128
    s_lshl_b32 s9, s6, 1
    v_lshl_add_u32 v1, v0, 1, s8
    v_mov_b32 v10, s9
    s_lshl_b32 s12, s7, 12
    s_add_u32 s12, s12, {K1_XB}
    v_lshl_add_u32 v{XAD}, v0, 4, s12
    """)
    for i in range(2, 10):
        a(f"v_mov_b32 v{i}, 0")
    a(f"""
    ds_write_b32 v{XAD}, v2 offset:3072
    s_mul_i32 s11, s6, {KD_PITCH}
    s_add_u32 s11, s11, {KD}
    s_mov_b32 s13, {fl(LOG2E)}
    s_mov_b32 s14, {fl(1.0/(2*math.pi))}
    v_and_b32 v20, 15, v0           ; i / j
    v_lshrrev_b32 v21, 4, v0        ; g / G
    v_and_b32 v22, 1, v0
    v_cvt_f32_u32 v{XA}, v20
    v_mul_f32 v{XY}, 16.0, v{XA}
    v_and_b32 v23, 3, v0
    v_lshlrev_b32 v23, 2, v23
    v_lshrrev_b32 v24, 2, v20
    v_lshl_add_u32 v23, v24, 8, v23
    v_add_u32 v23, 512, v23         ; i<8 : 512 + 4(i&3) + 256(i>>2)
    v_lshlrev_b32 v24, 3, v22
    v_lshrrev_b32 v25, 1, v20
    v_lshl_add_u32 v24, v25, 8, v24 ; i>=8: 8(i&1) + 256(i>>1)
    v_cmp_gt_u32 vcc, 8, v20
    v_sub_u32 v{SE}, 63, v0
    v_cndmask_b32 v23, v24, v23, vcc
    v_cvt_f32_u32 v{XC}, v23
    v_lshlrev_b32 v{SE}, 2, v{SE}
    v_lshlrev_b32 v{SB}, 5, v20
    v_lshl_add_u32 v{SB}, v21, 3, v{SB}     ; seg0: 32j + 8G
    v_lshrrev_b32 v24, 5, v0                ; G>>1
    v_sub_u32 v25, 3, v24
    v_lshlrev_b32 v25, v25, v20
    v_lshl_add_u32 v{SC}, v21, 7, v25       ; seg2/3 A - 768
    v_mul_u32_u24 v24, 60, v24
    v_add3_u32 v{SD}, v24, v{SC}, 4         ; B - 768
    v_lshrrev_b32 v{SA}, 1, v{SB}           ; seg1: 16j + 4G
    v_cmp_eq_u32 vcc, 0, v0
    s_waitcnt lgkmcnt(0)
    global_load_short_d16_hi v8, v10, s[30:31]
    global_load_short_d16_hi v2, v1, s[18:19]
    global_load_short_d16_hi v3, v1, s[20:21]
    global_load_short_d16_hi v4, v1, s[22:23]
    global_load_short_d16_hi v5, v1, s[24:25]
    global_load_short_d16_hi v6, v1, s[26:27]
    global_load_short_d16_hi v7, v1, s[28:29]
    global_load_short_d16_hi v9, v10, s[32:33]
    """)
    srd(a, 44, 40, WS_BYTES)
    a(f"s_setprio {E('KG_PRIO', 2)}")
    PP, PW, WR, WI, CR, CI, KL = 12, 13, 14, 15, 16, 17, 18
    DPP = lambda j: f"row_newbcast:{j} row_mask:0xf bank_mask:0xf"
    k = Asm()
    k(f"""
    s_waitcnt vmcnt(7)
    v_mul_f32 v8, s13, v8
    v_exp_f32 v8, v8
    s_nop 0
    v_cvt_pk_bf16_f32 v8, v8, v8
    v_lshlrev_b32 v8, 16, v8                ; dt
    s_waitcnt vmcnt(5)
    v_mul_f32 v2, v8, v2
    v_mul_f32 v3, v8, v3
    v_mul_f32 v{PP}, s13, v2                ; p
    v_mul_f32 v{PW}, s14, v3                ; w
    v_rndne_f32 v3, v{PW}
    v_sub_f32 v{PW}, v{PW}, v3
    v_mul_f32 v20, {fl(256.0)}, v{PP}
    v_mul_f32 v21, {fl(256.0)}, v{PW}
    v_mul_f32 v22, {fl(2048.0)}, v{PP}
    v_mul_f32 v23, {fl(2048.0)}, v{PW}
    v_exp_f32 v20, v20
    v_exp_f32 v22, v22
    v_fract_f32 v23, v23
    v_cos_f32 v{CR}, v21
    v_sin_f32 v{CI}, v21
    v_cos_f32 v18, v23
    v_sin_f32 v19, v23
    s_waitcnt vmcnt(1)
    v_mul_f32 v4, v8, v4
    v_mul_f32 v5, v8, v5
    v_mul_f32 v{WR}, v6, v4
    v_mul_f32_e64 v{WI}, -v6, v5
    v_fma_f32 v{WR}, -v7, v5, v{WR}         ; Re W
    v_fma_f32 v{WI}, -v7, v4, v{WI}         ; -Im W
    v_mul_f32 v{CR}, v20, v{CR}
    v_mul_f32 v{CI}, v20, v{CI}
    v_mul_f32 v18, v{WR}, v18
    v_fmac_f32 v18, v{WI}, v19
    v_mul_f32 v{KL}, v22, v18               ; Re(W g^2048)
    """)
    red = [f"v_add_f32_dpp v{KL}, v{KL}, v{KL} {m}" for m in (
        "row_ror:1 row_mask:0xf bank_mask:0xf", "row_ror:2 row_mask:0xf bank_mask:0xf",
        "row_ror:4 row_mask:0xf bank_mask:0xf", "row_ror:8 row_mask:0xf bank_mask:0xf",
        "row_bcast:15 row_mask:0xa bank_mask:0xf", "row_bcast:31 row_mask:0xc bank_mask:0xf")]
    D0, D1, D2 = 20, 24, 28
    FX0, FX1, FX2, FY = 32, 36, 40, 44
    T = lambda q: 48 + q
    U = lambda q: 52 + q
    C = lambda q: 56 + q
    S = lambda q: 60 + q
    A_ = lambda q: 76 + q
    B_ = lambda q: 80 + q
    for ks in range(4):
        J = lambda q: 4 * ks + q

        def polar(X, fract):
            for q in range(4):
                k(f"v_mul_f32_dpp v{T(q)}, v{PP}, v{X} {DPP(J(q))}")
                k(f"v_mul_f32_dpp v{U(q)}, v{PW}, v{X} {DPP(J(q))}")
            if red:
                k(red.pop(0))
            for q in range(4):
                k(f"v_exp_f32 v{T(q)}, v{T(q)}")
                if fract:
                    k(f"v_fract_f32 v{U(q)}, v{U(q)}")
            for q in range(4):
                k(f"v_cos_f32 v{C(q)}, v{U(q)}")
                k(f"v_sin_f32 v{S(q)}, v{U(q)}")

        def mf(D, F):
            c = "0" if ks == 0 else v(D, 4)
            k(f"v_mfma_f32_16x16x32_bf16 {v(D,4)}, {v(F,4)}, {v(FY,4)}, {c}")

        polar(XY, False)
        for q in range(4):
            k(f"v_mul_f32_dpp v{A_(q)}, v{WR}, v{T(q)} {DPP(J(q))}")
            k(f"v_mul_f32_dpp v{B_(q)}, v{WI}, v{T(q)} {DPP(J(q))}")
        for q in range(4):
            k(f"v_mul_f32 v{T(q)}, v{A_(q)}, v{C(q)}")
            k(f"v_mul_f32 v{U(q)}, v{B_(q)}, v{C(q)}")
        for q in range(4):
            k(f"v_fmac_f32 v{T(q)}, v{B_(q)}, v{S(q)}")
            k(f"v_fma_f32 v{U(q)}, -v{A_(q)}, v{S(q)}, v{U(q)}")
        for q in range(4):
            k(f"v_cvt_pk_bf16_f32 v{FY+q}, v{T(q)}, v{U(q)}")
        polar(XC, True)
        for q in range(4):
            k(f"v_mul_f32 v{C(q)}, v{T(q)}, v{C(q)}")
            k(f"v_mul_f32 v{S(q)}, v{T(q)}, v{S(q)}")
        for q in range(4):
            k(f"v_cvt_pk_bf16_f32 v{FX2+q}, v{C(q)}, v{S(q)}")
        polar(XA, False)
        mf(D2, FX2)
        for q in range(4):
            k(f"v_mul_f32 v{C(q)}, v{T(q)}, v{C(q)}")
            k(f"v_mul_f32 v{S(q)}, v{T(q)}, v{S(q)}")
        for q in range(4):
            k(f"v_cvt_pk_bf16_f32 v{FX0+q}, v{C(q)}, v{S(q)}")
        for q in range(4):
            k(f"v_mul_f32_dpp v{T(q)}, v{CR}, v{C(q)} {DPP(J(q))}")
            k(f"v_mul_f32_dpp v{U(q)}, v{CI}, v{C(q)} {DPP(J(q))}")
        mf(D0, FX0)
        for q in range(4):
            k(f"v_fmac_f32_dpp v{T(q)}, -v{CI}, v{S(q)} {DPP(J(q))}")
            k(f"v_fmac_f32_dpp v{U(q)}, v{CR}, v{S(q)} {DPP(J(q))}")
        for q in range(4):
            k(f"v_cvt_pk_bf16_f32 v{FX1+q}, v{T(q)}, v{U(q)}")
        k("s_nop 1")
        mf(D1, FX1)
    k("""
    s_waitcnt vmcnt(0)
    v_cndmask_b32 v9, 0, v9, vcc
    """)
    m0, m1, sg = E("KG_M0", 450), E("KG_M1", 300), E("KG_SEG", 370)
    a.L.extend(splice(k.L, [m0] + [m0 + m1 + sg * i for i in range(7)]))
    print("kgen cost", sum(cost(l) for l in k.L), file=sys.stderr)
    dbg_ts(a, 2)
    a(f"""
    s_bitcmp1_b32 s15, 0
    s_cbranch_scc0 k1_kg_fin
    ds_write_b128 v{XAD}, {v(D2,4)} offset:2048
    ds_write_b128 v{XAD}, {v(D0,4)}
    v_mov_b32 v2, 1
    s_nop 2
    v_mov_b32 v{D1+1}, v{KL}
    ds_write_b128 v{XAD}, {v(D1,4)} offset:1024
    ds_write_b32 v{XAD}, v2 offset:3072
    s_waitcnt lgkmcnt(0)
    """)
    dbg_end(a, 0)
    a("s_endpgm")
    a.lab("k1_kg_fin")
    a(f"""
    ds_read_b32 v2, v{XAD} offset:3072
    ds_read_b128 v[32:35], v{XAD}
    ds_read_b128 v[36:39], v{XAD} offset:1024
    ds_read_b128 v[40:43], v{XAD} offset:2048
    s_waitcnt lgkmcnt(0)
    v_readfirstlane_b32 s9, v2
    s_nop 0
    s_cmp_eq_u32 s9, 0
    s_cbranch_scc1 k1_kg_fin
    v_add_f32 v{D0}, v{D0}, v9
    v_mov_b32 v{D1+1}, v{KL}
    """)
    dbg_ts(a, 3)
    for j in range(12):
        if j != 7:
            a(f"v_add_f32 v{20+j}, v{20+j}, v{32+j}")
    a(f"""
    v_cvt_pk_bf16_f32 v12, v{D0}, v{D0+1}
    v_cvt_pk_bf16_f32 v13, v{D0+2}, v{D0+3}
    buffer_store_dwordx2 v[12:13], v{SB}, s[44:47], s11 offen{STF}
    v_cvt_pk_bf16_f32 v14, v{D1}, v{D1+2}
    v_cvt_pk_bf16_f32 v15, v{D2}, v{D2+1}
    v_cvt_pk_bf16_f32 v16, v{D2+2}, v{D2+3}
    v_cvt_pk_bf16_f32 v17, v{D1+1}, v{D1+1}
    buffer_store_dword v14, v{SA}, s[44:47], s11 offen offset:512{STF}
    buffer_store_dword v15, v{SC}, s[44:47], s11 offen offset:768{STF}
    buffer_store_dword v16, v{SD}, s[44:47], s11 offen offset:768{STF}
    buffer_store_dword v17, v{SE}, s[44:47], s11 offen offset:1280{STF}
    """)
    dbg_end(a, 0)
    a.lab("k1_end")
    a("s_endpgm")
    return a, desc("k1_kernel", 160)


STF = os.environ.get("STF", "")
if STF:
    STF = " " + STF

TP = 2080
CV_BASE = 64 * TP
CV_KS = 4160
CV_U = 8320
CV_CH = 12928
K2_FL = 163840 - 64
K2_LDS = 163840


def gen_k2():
    a = Asm()
    head(a, "k2_kernel")
    a(f"""
    s_cmp_ge_u32 s2, 256
    s_cbranch_scc1 k2_end
    """)
    dbg_start(a)
    a(f"""
    s_load_dwordx2 s[40:41], s[0:1], 112
    s_load_dwordx4 s[16:19], s[0:1], 88
    s_load_dwordx2 s[20:21], s[0:1], 0
    v_lshrrev_b32 v1, 6, v0
    v_and_b32 v0, 63, v0
    s_and_b32 s4, s2, 7
    v_readfirstlane_b32 s3, v1
    v_readfirstlane_b32 s94, v1
    s_lshr_b32 s5, s2, 3
    v_lshlrev_b32 v1, 4, v0
    s_lshl_b32 s6, s4, 2
    s_lshr_b32 s7, s5, 3
    s_add_u32 s6, s6, s7            ; head
    s_lshl_b32 s8, s6, 17
    s_add_u32 s8, s8, {KVI}
    s_mul_i32 s9, s3, {TP}
    s_lshl_b32 s10, s3, 11
    s_add_u32 s10, s10, s8
    s_mov_b32 m0, s9
    s_mov_b32 s46, {hex(WS_BYTES)}
    s_mov_b32 s47, 0x00020000
    s_cmp_ge_u32 s3, 8
    s_cbranch_scc1 k2_conv
    """)

    Q, IDX, KA, VA0, VA1 = 4, 2, 3, 28, 29
    KB = [8, 12]
    V0B = [16, 96]
    V1B = [20, 100]
    NEGM, O = 32, 80
    SB = [48, 64]
    FLV = 104
    a(f"""
    s_and_b32 s7, s5, 7
    s_lshl_b32 s7, s7, 3
    s_add_u32 s7, s7, s3            ; qt
    s_lshl_b32 s11, s6, 16
    s_lshl_b32 s12, s7, 10
    s_add_u32 s11, s11, s12
    s_add_u32 s11, s11, {QI}
    s_lshl_b32 s12, s7, 15
    s_lshl_b32 s13, s6, 10
    s_add_u32 s12, s12, s13
    s_add_u32 s12, s12, {OI}        ; O dest
    s_mov_b32 s24, 0
    v_mov_b32 v{IDX}, 0xdddddddd
    v_and_b32 v23, 15, v0
    v_lshrrev_b32 v24, 5, v0
    v_lshlrev_b32 v23, 4, v23
    v_lshl_add_u32 v30, v24, 8, v23
    v_add_u32 v30, 1024, v30
    v_add_u32 v31, 512, v30
    v_and_b32 v23, 16, v0
    v_cmp_eq_u32 vcc, 16, v23
    v_mov_b32 v24, 2064
    v_and_b32 v23, 27, v0
    v_mov_b32 v{FLV}, {K2_FL}
    v_cndmask_b32 v30, v30, v24, vcc
    v_cndmask_b32 v31, v31, v24, vcc
    v_cmp_eq_u32 vcc, 16, v23
    v_mov_b32 v24, 2048
    v_add_u32 v{KA}, s9, v1
    s_nop 0
    v_cndmask_b32 v30, v30, v24, vcc
    v_cndmask_b32 v31, v31, v24, vcc
    """)
    def zero_init():
        for j in range(4):
            a(f"v_mov_b32 v{V1B[1]+j}, 0")
        for j in range(8):
            a(f"v_mov_b32 v{SB[1]+8+j}, 0")
        for j in range(16):
            a(f"v_mov_b32 v{O+j}, 0")
    zero_init()
    if E("K2_PRIO", 1) == 1:
        a("""
        s_cmp_lt_u32 s3, 4
        s_cbranch_scc1 k2_np
        s_setprio 1
        """)
        a.lab("k2_np")
    a(f"""
    s_waitcnt lgkmcnt(0)
    s_mov_b32 s44, s40
    s_and_b32 s45, s41, 0xffff
    buffer_load_dwordx4 v1, s[44:47], s10 offen lds
    buffer_load_dwordx4 {v(Q,4)}, v1, s[44:47], s11 offen
    buffer_load_dwordx4 v1, s[44:47], s10 offen offset:1024 lds
    s_waitcnt vmcnt(1)
    ds_read_b128 {v(KB[0],4)}, v{KA}
    """)
    if DBG == 1:
        dbg_ts(a, 0)
    a(f"""
    s_waitcnt lgkmcnt(0)
    v_mfma_f32_32x32x16_bf16 {v(SB[0],16)}, {v(KB[0],4)}, {v(Q,4)}, 0
    s_nop 11
    v_max3_f32 v23, v{SB[0]}, v{SB[0]+1}, v{SB[0]+2}
    """)
    for j in range(3, 15, 2):
        a(f"v_max3_f32 v23, v23, v{SB[0]+j}, v{SB[0]+j+1}")
    a(f"v_max_f32 v23, v23, v{SB[0]+15}")
    a.lab("k2_start")
    a(f"""
    v_mov_b32 v24, v23
    v_mov_b32 v{KA}, v1
    v_mov_b32 v{VA0}, v30
    v_permlane32_swap_b32 v23, v24
    v_mov_b32 v{VA1}, v31
    s_mov_b32 s25, 0
    v_max_f32 v23, v23, v24
    """)
    a(f"v_sub_f32 v24, 0, v23")
    for j in range(0, 16, 2):
        a(f"v_pk_mov_b32 {v(NEGM+j,2)}, v[24:25], v[24:25] op_sel:[0,0]")
    a(f"""
    s_cmp_lg_u32 s24, 0
    s_cbranch_scc1 k2_nobar
    s_waitcnt vmcnt(0)
    s_barrier
    """)
    a.lab("k2_nobar")
    if DBG == 1:
        dbg_ts(a, 1)
    a(f"""
    ds_read_b128 {v(KB[0],4)}, v{KA}
    ds_read_b128 {v(KB[1],4)}, v{KA} offset:{TP}
    ds_read_b128 {v(V0B[0],4)}, v{VA0}
    ds_read_b128 {v(V1B[0],4)}, v{VA1}
    s_waitcnt lgkmcnt(3)
    v_mfma_f32_32x32x16_bf16 {v(SB[0],16)}, {v(KB[0],4)}, {v(Q,4)}, {v(NEGM,16)}
    s_nop 9
    """)
    a.lab("k2_loop")
    a(f"""
    s_bitcmp1_b32 0x0a, s25
    s_cbranch_scc1 k2_poll
    """)
    a.lab("k2_body")
    if DBG == 2:
        for k in range(7):
            a(f"s_mov_b32 s{64+2*k}, s{66+2*k}")
        a("s_memtime s[78:79]")
    U = 8
    PS = E("K2_PS", 46)
    for i in range(U):
        p, q = i % 2, (i + 1) % 2
        Sc, Sn = SB[p], SB[q]
        ex = lambda j: a(f"v_exp_f32 v{Sc+j}, v{Sc+j}")
        ex(0); ex(1)
        a("s_waitcnt lgkmcnt(0)")
        a(f"v_smfmac_f32_32x32x32_bf16 {v(O,16)}, {v(V1B[q],4)}, {v(Sn+8,8)}, v{IDX}")
        a(f"ds_read_b128 {v(KB[p],4)}, v{KA} offset:{(i+2)*TP}")
        ex(2)
        a(f"ds_read_b128 {v(V0B[q],4)}, v{VA0} offset:{(i+1)*TP}")
        ex(3)
        a(f"ds_read_b128 {v(V1B[q],4)}, v{VA1} offset:{(i+1)*TP}")
        ex(4)
        a(f"v_mfma_f32_32x32x16_bf16 {v(Sn,16)}, {v(KB[q],4)}, {v(Q,4)}, {v(NEGM,16)}")
        for j in range(5, 10):
            ex(j)
        a(f"v_smfmac_f32_32x32x32_bf16 {v(O,16)}, {v(V0B[p],4)}, {v(Sc,8)}, v{IDX}")
        for j in range(10, 16):
            ex(j)
            if j == 11 and i == PS % U and E("K2_PRIO", 1) == 1:
                a(f"""
                s_cmp_lg_u32 s25, {PS // U}
                s_cbranch_scc1 k2_ps
                s_setprio 0
                """)
                a.lab("k2_ps")
            if i == U - 1:
                if j == 11:
                    a(f"v_add_u32 v{KA}, {U*TP}, v{KA}")
                if j == 12:
                    a(f"v_add_u32 v{VA0}, {U*TP}, v{VA0}")
                if j == 13:
                    a(f"v_add_u32 v{VA1}, {U*TP}, v{VA1}")
                    a("s_add_u32 s25, s25, 1")
                if j == 14:
                    a(f"s_cmp_lt_u32 s25, {64//U}")
    a(f"""
    s_cbranch_scc1 k2_loop
    s_nop 0
    v_smfmac_f32_32x32x32_bf16 {v(O,16)}, {v(V1B[1],4)}, {v(SB[1]+8,8)}, v{IDX}
    s_waitcnt lgkmcnt(0)
    s_nop 10
    v_mul_f32 v23, 0, v{O+8}
    """)
    if DBG == 1:
        dbg_ts(a, 4)
    for j in range(8):
        a(f"v_fma_f32 v23, 0, v{O+j}, v23")
    a(f"""
    v_add_f32 v23, v23, v{O+8}
    v_mov_b32 v24, {fl(2.0**100)}
    v_cmp_nlt_f32 vcc, v23, v24
    v_rcp_f32 v25, v{O+8}
    s_cmp_lg_u32 s24, 0
    s_cbranch_scc1 k2_store
    s_cmp_lg_u64 vcc, 0
    s_cbranch_scc1 k2_fallback
    """)
    a.lab("k2_store")
    for j in range(8):
        a(f"v_mul_f32 v{O+j}, v25, v{O+j}")
    for j in range(4):
        a(f"v_cvt_pk_bf16_f32 v{24+j}, v{O+2*j}, v{O+2*j+1}")
    a(f"buffer_store_dwordx4 v[24:27], v1, s[44:47], s12 offen{STF}")
    dbg_end(a, 1)
    a("s_endpgm")
    a.lab("k2_poll")
    a(f"""
    ds_read_b64 v[{FLV+2}:{FLV+3}], v{FLV}
    s_waitcnt lgkmcnt(0)
    v_readfirstlane_b32 s26, v{FLV+2}
    v_readfirstlane_b32 s27, v{FLV+3}
    s_cmp_eq_u32 s25, 1
    s_cselect_b32 s26, s26, s27
    s_cmp_lt_u32 s26, 4
    s_cbranch_scc1 k2_poll
    """)
    if DBG == 1:
        a("s_mov_b32 s68, s70")
        dbg_ts(a, 3)
    a("s_branch k2_body")
    a.lab("k2_fallback")
    a(f"""
    s_mov_b32 s24, 1
    s_mov_b32 s25, 0
    v_mov_b32 v23, 0xff800000
    v_add_u32 v{KA}, {63*TP}, v1
    """)
    zero_init()
    a.lab("k2_fb_loop")
    a(f"""
    ds_read_b128 {v(KB[0],4)}, v{KA}
    v_subrev_u32 v{KA}, {TP}, v{KA}
    s_waitcnt lgkmcnt(0)
    v_mfma_f32_32x32x16_bf16 {v(SB[0],16)}, {v(KB[0],4)}, {v(Q,4)}, 0
    s_nop 11
    """)
    for j in range(0, 16, 2):
        a(f"v_max3_f32 v23, v23, v{SB[0]+j}, v{SB[0]+j+1}")
    a(f"""
    s_add_u32 s25, s25, 1
    s_cmp_lt_u32 s25, 64
    s_cbranch_scc1 k2_fb_loop
    s_branch k2_start
    """)

    NC0 = E("K2_NC0", 0)
    FA = E("K2_FA", 8)

    def tile_dma():
        a(f"""
        s_add_u32 m0, m0, {4*TP}
        s_add_u32 s10, s10, 8192
        buffer_load_dwordx4 v1, s[44:47], s10 offen lds
        buffer_load_dwordx4 v1, s[44:47], s10 offen offset:1024 lds
        """)

    def bump(off):
        a(f"""
        s_mov_b64 exec, 1
        ds_add_u32 v2, v3 offset:{off}
        s_mov_b64 exec, -1
        """)

    def poll(off, name, after):
        BK = E("K2_BK", 4)
        a(f"s_setprio {E('K2_PP', 0)}")
        a(f"s_branch {name}_in")
        a.lab(name)
        for _ in range(BK):
            a("s_nop 15")
        a.lab(name + "_in")
        a(f"""
        ds_read_b32 v15, v2 offset:{off}
        s_waitcnt lgkmcnt(0)
        v_readfirstlane_b32 s26, v15
        s_cmp_lt_u32 s26, 4
        s_cbranch_scc1 {name}
        s_setprio {after}
        """)

    a.lab("k2_conv")
    a(f"""
    s_sub_u32 s3, s3, 8             ; j
    s_and_b32 s22, s3, 1            ; channel
    s_lshr_b32 s23, s3, 1           ; half
    s_mul_i32 s12, s22, {CV_CH}
    s_add_u32 s12, s12, {CV_BASE}
    v_mov_b32 v2, {K2_FL}
    v_mov_b32 v3, 1
    v_mov_b32 v8, 0
    v_mov_b32 v9, 0
    v_mov_b32 v10, 0
    v_mov_b32 v11, 0
    v_lshlrev_b32 v5, 3, v0
    v_add_u32 v6, s12, v1
    v_add_u32 v14, s12, v5
    s_cmp_ge_u32 s3, 2
    s_cbranch_scc1 k2_cv_i1
    ds_write_b64 v14, v[8:9] offset:{CV_U+4096}
    s_mov_b64 exec, 3
    ds_write_b128 v6, v[8:11]
    ds_write_b128 v6, v[8:11] offset:{CV_KS}
    v_add_u32 v4, v2, v1
    ds_write_b128 v4, v[8:11]
    s_mov_b64 exec, -1
    s_branch k2_cv_i2
    """)
    a.lab("k2_cv_i1")
    a(f"""
    s_lshl_b32 s13, s22, 4
    v_mul_u32_u24 v4, {TP}, v0
    s_cmp_eq_u32 s22, 0
    s_cselect_b32 s14, 0x3f803f80, 0
    v_add_u32 v4, s13, v4
    v_mov_b32 v8, s14
    v_mov_b32 v9, s14
    v_mov_b32 v10, s14
    v_mov_b32 v11, s14
    ds_write_b128 v4, v[8:11] offset:2048
    """)
    a.lab("k2_cv_i2")
    a(f"""
    s_lshl_b32 s6, s4, 6
    s_lshl_b32 s7, s5, 1
    s_add_u32 s6, s6, s7            ; d0
    s_add_u32 s11, s6, s22
    s_mul_i32 s11, s11, {KD_PITCH}
    s_add_u32 s11, s11, {KD}
    v_lshlrev_b32 v4, 2, v0
    v_lshlrev_b32 v7, 5, v0
    v_add_u32 v7, s12, v7
    v_lshlrev_b32 v12, 13, v0       ; u voffset
    s_lshl_b32 s13, s3, 19
    s_lshl_b32 s14, s6, 1
    s_add_u32 s13, s13, s14         ; u soffset
    s_add_u32 s27, s13, 4096
    s_mov_b32 s14, 0x01000100
    s_mov_b32 s15, 0x03020302
    s_mov_b32 s28, 0x05040302
    s_mov_b32 s29, 0x05040100
    s_mov_b32 s30, 0x07060302
    s_waitcnt lgkmcnt(0)
    s_mov_b32 s44, s40
    s_and_b32 s45, s41, 0xffff
    buffer_load_dwordx4 v1, s[44:47], s10 offen lds
    buffer_load_dwordx4 v1, s[44:47], s10 offen offset:1024 lds
    """)
    for i in range(NC0):
        tile_dma()
    srd(a, 52, 18, 2048 * 1024 * 2)
    srd(a, 48, 16, 512 * 512 * 2)
    srd(a, 56, 20, 2048 * 512 * 2)
    a(f"""
    s_waitcnt vmcnt({2*NC0})
    s_barrier
    s_setprio {E('K2_CP0', 2)}
    """)
    for i in range(NC0, 13):
        tile_dma()
        if i + 1 == FA:
            a(f"s_waitcnt vmcnt({2*(FA-4)})")
            bump(0)
    UR = 64
    a(f"""
    s_cmp_lg_u32 s23, 0
    s_cbranch_scc1 k2_cv_l1
    buffer_load_dwordx3 v[72:74], v5, s[44:47], s11 offen
    buffer_load_dwordx2 v[76:77], v4, s[44:47], s11 offen offset:512
    buffer_load_dwordx2 v[78:79], v4, s[44:47], s11 offen offset:768
    s_waitcnt vmcnt(3)
    s_branch k2_cv_l2
    """)
    a.lab("k2_cv_l1")
    a(f"""
    buffer_load_dwordx2 v[80:81], v4, s[44:47], s11 offen offset:1024
    s_waitcnt vmcnt(1)
    """)
    a.lab("k2_cv_l2")
    bump(4)
    dbg_ts(a, 0)
    for e in range(8):
        a(f"buffer_load_dword v{UR+e}, v12, s[56:59], s{13 if e < 4 else 27} offen offset:{(e&3)*1024}")
    a(f"""
    s_waitcnt vmcnt(8)
    s_cbranch_scc1 k2_cv_e1
    """)
    EE = lambda d, r: a(f"v_perm_b32 v{d}, v{r}, v{r}, s14")
    OO = lambda d, r: a(f"v_perm_b32 v{d}, v{r}, v{r}, s15")
    EO = lambda d, r: a(f"v_mov_b32 v{d}, v{r}")
    OE = lambda d, r: a(f"v_perm_b32 v{d}, v{r+1}, v{r}, s28")
    FF = lambda d, r: a(f"v_perm_b32 v{d}, v{r+1}, v{r+1}, s14")
    a(f"ds_write_b64 v14, v[72:73] offset:32")
    OE(8, 72)
    OE(9, 73)
    a(f"ds_write_b64 v14, v[8:9] offset:{32+CV_KS}")
    EE(24, 76); OE(25, 76); EO(26, 76); FF(27, 76)
    a(f"ds_write_b64 v14, v[24:25] offset:{32+512}")
    a(f"ds_write_b64 v14, v[26:27] offset:{32+512+CV_KS}")
    for d, f in zip(range(16, 24), (EE, EO, OO, FF, EE, OO, OE, FF)):
        f(d, 78)
    a(f"ds_write_b128 v6, v[16:19] offset:{32+1024}")
    a(f"ds_write_b128 v6, v[20:23] offset:{32+1024+CV_KS}")
    a(f"""
    v_lshlrev_b32 v28, 16, v72
    s_mov_b64 exec, 1
    ds_write_b32 v6, v28 offset:{CV_KS+28}
    s_mov_b64 exec, -1
    s_branch k2_cv_e2
    """)
    a.lab("k2_cv_e1")
    for d, f in zip(range(24, 40), (EE, EE, EO, OO, OO, OO, FF, FF, EE, EE, OO, OO, OO, OE, FF, FF)):
        f(d, 80)
    a(f"ds_write_b128 v7, v[24:27] offset:{32+2048}")
    a(f"ds_write_b128 v7, v[28:31] offset:{32+2048+16}")
    a(f"ds_write_b128 v7, v[32:35] offset:{32+2048+CV_KS}")
    a(f"ds_write_b128 v7, v[36:39] offset:{32+2048+16+CV_KS}")
    a.lab("k2_cv_e2")
    AF, BF, AC = 32, 64, 96
    a(f"""
    s_lshl_b32 s13, s3, 10
    s_sub_u32 s13, {CV_BASE + CV_U + 4080}, s13
    v_sub_u32 v8, s13, v1
    v_and_b32 v13, 15, v0           ; r / c
    v_lshrrev_b32 v14, 4, v0        ; g
    v_add_u32 v15, 1, v13
    v_lshrrev_b32 v16, 1, v15
    v_lshl_add_u32 v16, v14, 2, v16
    v_lshlrev_b32 v16, 2, v16
    v_and_b32 v15, 1, v15           ; r even
    v_mul_u32_u24 v15, {CV_KS}, v15
    s_lshl_b32 s13, s23, 8
    s_add_u32 s13, s13, s12
    v_add3_u32 v4, v15, v16, s13
    v_add_u32 v5, 1024, v4
    v_add_u32 v6, 2048, v4
    v_add_u32 v7, 3072, v4
    v_lshlrev_b32 v15, 5, v13
    v_lshlrev_b32 v16, 4, v14
    v_sub_u32 v12, v16, v15
    s_add_u32 s13, s13, {CV_U + 480}
    v_add_u32 v12, s13, v12
    v_lshlrev_b32 v13, 15, v13
    v_lshl_add_u32 v13, v14, 13, v13
    s_lshl_b32 s11, s2, 2
    s_add_u32 s11, s11, s3
    s_lshl_b32 s11, s11, 9
    v_lshlrev_b32 v9, 3, v0
    s_waitcnt vmcnt(0)
    buffer_load_dwordx2 v[10:11], v9, s[48:51], s11 offen
    """)
    dbg_ts(a, 1)
    for d in range(4):
        a(f"v_perm_b32 v{16+d}, v{UR+6-2*d}, v{UR+7-2*d}, s29")
    for d in range(4):
        a(f"v_perm_b32 v{20+d}, v{UR+6-2*d}, v{UR+7-2*d}, s30")
    a(f"""
    ds_write_b128 v8, v[16:19]
    ds_write_b128 v8, v[20:23] offset:{CV_CH}
    s_waitcnt lgkmcnt(0)
    """)
    bump(8)
    poll(8, "k2_pc", E("K2_CPRIO", 0))
    dbg_ts(a, 2)
    if E("X_NOCONV", 0):
        a("s_branch k2_cv_out")
    PACE = E("K2_PACE", -1)
    for it in range(4):
        for m in range(8):
            base = 4 + m // 2
            o = 128 * (m & 1) + 16 * it
            a(f"ds_read2_b32 {v(AF+4*m,2)}, v{base} offset0:{o} offset1:{o+1}")
            a(f"ds_read2_b32 {v(AF+4*m+2,2)}, v{base} offset0:{o+2} offset1:{o+3}")
            a(f"ds_read_b128 {v(BF+4*m,4)}, v12 offset:{512*(7-m)+64*it}")
        for t in range(8):
            a(f"s_waitcnt lgkmcnt({min(15, 3*(7-t))})")
            prs = [(m, kk) for m in range(t + 1) for kk in range(t + 1) if max(m, kk) == t and m + kk <= 7]
            prs.sort(key=lambda x: (x[0] < x[1], x[0] + x[1]))
            for m, kk in prs:
                d = v(AC + 4 * (m + kk), 4)
                first = it == 0 and (m, kk) == min([(x, m + kk - x) for x in range(m + kk + 1)], key=lambda y: (max(y), y[0] < y[1]))
                a(f"v_mfma_f32_16x16x32_bf16 {d}, {v(AF+4*m,4)}, {v(BF+4*kk,4)}, {'0' if first else d}")
                if PACE >= 0:
                    a(f"s_nop {PACE}")
    dbg_ts(a, 3)
    bump(12)
    a(f"""
    v_add_u32 v4, {CV_BASE}, v1
    s_lshl_b32 s8, s3, 20
    s_lshl_b32 s9, s6, 1
    s_add_u32 s8, s8, s9
    s_add_u32 s9, s8, {256*2048}
    s_add_u32 s10, s8, 4096
    s_add_u32 s11, s9, 4096
    """)
    poll(12, "k2_pd", E("K2_CP0", 2))
    a(f"""
    s_cmp_eq_u32 s3, 1
    s_cbranch_scc1 k2_cx1
    s_cmp_eq_u32 s3, 2
    s_cbranch_scc1 k2_cx2
    s_cmp_eq_u32 s3, 3
    s_cbranch_scc1 k2_cx3
    """)
    for w in range(4):
        a.lab(f"k2_cx{w}")
        for o in range(4):
            if o == w:
                continue
            k = w if w < o else w - 1
            a(f"ds_write_b128 v4, {v(AC+8*o,4)} offset:{(3*o+k)*2048}")
            a(f"ds_write_b128 v4, {v(AC+8*o+4,4)} offset:{(3*o+k)*2048+1024}")
        a("s_waitcnt lgkmcnt(0)")
        bump(16)
        poll(16, f"k2_pe{w}", E("K2_CP0", 2))
        regs = {w: AC + 8 * w}
        for sw in range(4):
            if sw == w:
                continue
            k = sw if sw < w else sw - 1
            regs[sw] = 32 + 8 * k
            a(f"ds_read_b128 {v(32+8*k,4)}, v4 offset:{(3*w+k)*2048}")
            a(f"ds_read_b128 {v(36+8*k,4)}, v4 offset:{(3*w+k)*2048+1024}")
        a("s_waitcnt lgkmcnt(0)")
        for ch in range(2):
            for jj in range(0, 8, 2):
                a(f"v_pk_add_f32 {v(64+8*ch+jj,2)}, {v(regs[ch]+jj,2)}, {v(regs[ch+2]+jj,2)}")
        if w < 3:
            a("s_branch k2_cv_out")
    a.lab("k2_cv_out")
    dbg_ts(a, 4)
    for jj in range(8):
        a(f"v_cvt_pk_bf16_f32 v{16+jj}, v{64+jj}, v{72+jj}")
    for cb in range(2):
        for jj in range(4):
            so = 8 + cb + 2 * (jj // 2)
            a(f"buffer_store_dword v{16+4*cb+jj}, v13, s[52:55], s{so} offen offset:{(jj%2)*2048}")
    dbg_end(a, 1)
    a.lab("k2_end")
    a("s_endpgm")
    return a, desc("k2_kernel", 128)


K3_LDS = 131072


def gen_k3():
    a = Asm()
    head(a, "k3_kernel")
    a(f"""
    s_cmp_ge_u32 s2, 256
    s_cbranch_scc1 k3_end
    """)
    dbg_start(a)
    a(f"""
    s_load_dwordx2 s[40:41], s[0:1], 112
    s_load_dwordx4 s[16:19], s[0:1], 88
    v_lshrrev_b32 v1, 6, v0
    v_and_b32 v0, 63, v0
    s_and_b32 s4, s2, 7
    v_readfirstlane_b32 s3, v1
    v_readfirstlane_b32 s94, v1
    s_lshr_b32 s5, s2, 3
    v_lshlrev_b32 v1, 4, v0
    s_lshl_b32 s6, s4, 2
    s_lshr_b32 s7, s5, 3
    s_add_u32 s6, s6, s7            ; rt
    s_and_b32 s7, s5, 7             ; ct
    s_and_b32 s10, s3, 3            ; stream
    s_lshr_b32 s11, s3, 2           ; half
    s_lshl_b32 s9, s10, 15
    s_lshl_b32 s12, s11, 11
    s_add_u32 s9, s9, s12
    s_mov_b32 m0, s9
    s_cmp_ge_u32 s10, 2
    s_cbranch_scc1 k3_w
    s_lshl_b32 s8, s6, 16
    s_add_u32 s8, s8, s9
    s_add_u32 s8, s8, {OI}
    s_waitcnt lgkmcnt(0)
    """)
    srd(a, 44, 40, WS_BYTES)
    for c in range(8):
        a(f"""
        buffer_load_dwordx4 v1, s[44:47], s8 offen lds
        buffer_load_dwordx4 v1, s[44:47], s8 offen offset:1024 lds
        """)
        if c < 7:
            a("""
            s_add_u32 m0, m0, 4096
            s_add_u32 s8, s8, 4096
            """)
    a("s_branch k3_go")
    a.lab("k3_w")
    a(f"""
    v_lshrrev_b32 v2, 2, v0
    v_and_b32 v3, 3, v0
    v_lshlrev_b32 v2, 10, v2
    v_lshl_add_u32 v2, v3, 4, v2
    v_add_u32 v3, {16384-1024}, v2
    s_lshl_b32 s8, s7, 7
    s_and_b32 s12, s10, 1
    s_lshl_b32 s12, s12, 6
    s_add_u32 s8, s8, s12
    s_lshl_b32 s12, s11, 15
    s_add_u32 s8, s8, s12
    s_waitcnt lgkmcnt(0)
    """)
    srd(a, 48, 16, 512 * 512 * 2)
    for c in range(8):
        a(f"""
        buffer_load_dwordx4 v2, s[48:51], s8 offen lds
        buffer_load_dwordx4 v3, s[48:51], s8 offen offset:1024 lds
        """)
        if c < 7:
            a("""
            s_add_u32 m0, m0, 4096
            s_add_u32 s8, s8, 65536
            """)
    if DBG:
        srd(a, 44, 40, WS_BYTES)
    a.lab("k3_go")
    dbg_ts(a, 0)
    a("""
    s_cmp_ge_u32 s3, 4
    s_cbranch_scc1 k3_ld
    """)
    srd(a, 52, 18, 2048 * 1024 * 2)
    a(f"""
    s_and_b32 s10, s3, 1            ; qh
    s_lshr_b32 s11, s3, 1           ; nh
    s_lshl_b32 s12, s10, 15
    s_lshl_b32 s13, s11, 15
    s_add_u32 s13, s13, 65536
    v_add_u32 v2, s12, v1
    v_lshrrev_b32 v5, 5, v0         ; h
    v_bfe_u32 v3, v0, 2, 2
    v_lshl_add_u32 v3, v5, 2, v3    ; row = 4h + (i>>2)
    v_lshlrev_b32 v3, 6, v3
    v_and_b32 v4, 1, v0
    v_lshl_add_u32 v3, v4, 5, v3    ; + 16*(c&1) cols
    v_bfe_u32 v4, v0, 4, 1
    v_lshl_add_u32 v3, v4, 4, v3    ; + 8G cols
    v_bfe_u32 v4, v0, 1, 1
    v_lshl_add_u32 v3, v4, 3, v3    ; + 4*(c>>1) cols
    v_add_u32 v3, s13, v3
    s_lshl_b32 s12, s6, 1
    s_add_u32 s12, s12, s10
    s_lshl_b32 s12, s12, 16         ; (2rt+qh)*32*2048
    s_lshl_b32 s13, s7, 1
    s_add_u32 s13, s13, s11
    s_lshl_b32 s13, s13, 6
    s_add_u32 s12, s12, s13
    s_add_u32 s12, s12, 1024
    v_and_b32 v4, 31, v0
    v_lshlrev_b32 v4, 11, v4
    v_lshl_add_u32 v4, v5, 5, v4
    """)
    D = 80
    for c in range(8):
        a(f"s_waitcnt vmcnt({14-2*c})")
        a("s_barrier")
        if c in (0, 4, 7):
            dbg_ts(a, {0: 1, 4: 2, 7: 3}[c])
        F = 16 + 32 * (c % 2)
        for i in range(4):
            hd = 4 * c + i
            a(f"ds_read_b128 {v(F+8*i,4)}, v2 offset:{hd*1024}")
            a(f"ds_read_b64_tr_b16 {v(F+8*i+4,2)}, v3 offset:{hd*1024}")
            a(f"ds_read_b64_tr_b16 {v(F+8*i+6,2)}, v3 offset:{hd*1024+512}")
        for i in range(4):
            a(f"s_waitcnt lgkmcnt({9-3*i})")
            cc = "0" if (c == 0 and i == 0) else v(D, 16)
            a(f"v_mfma_f32_32x32x16_bf16 {v(D,16)}, {v(F+8*i+4,4)}, {v(F+8*i,4)}, {cc}")
    a("s_nop 11")
    dbg_ts(a, 4)
    for j in range(8):
        a(f"v_cvt_pk_bf16_f32 v{8+j}, v{D+2*j}, v{D+2*j+1}")
    a("""
    buffer_store_dwordx4 v[8:11], v4, s[52:55], s12 offen
    buffer_store_dwordx4 v[12:15], v4, s[52:55], s12 offen offset:16
    """)
    dbg_end(a, 2)
    a("s_endpgm")
    a.lab("k3_ld")
    for c in range(7):
        a(f"s_waitcnt vmcnt({14-2*c})")
        a("s_barrier")
    a("s_waitcnt vmcnt(0)")
    dbg_end(a, 2)
    a.lab("k3_end")
    a("s_endpgm")
    return a, desc("k3_kernel", 96)


def build():
    ks = [gen_k1(), gen_k2(), gen_k3()]
    hdr = [
        "; generated by work/gen.py",
        f"; @launch kernel=k1_kernel grid=(256,1,1) block=(768,1,1) lds={K1_LDS}",
        f"; @launch kernel=k2_kernel grid=(256,1,1) block=(768,1,1) lds={K2_LDS}",
        f"; @launch kernel=k3_kernel grid=(256,1,1) block=(512,1,1) lds={K3_LDS}",
    ]
    out = "\n".join(hdr) + "\n"
    out += '.amdgcn_target "amdgcn-amd-amdhsa--gfx950"\n.text\n'
    for a, d in ks:
        out += a.text()
    out += '.section .rodata,"a"\n'
    for a, d in ks:
        out += d
    return out


if __name__ == "__main__":
    path = sys.argv[1] if len(sys.argv) > 1 else f"cdna_kernels/{NAME}.s"
    open(path, "w").write(build())
    print("wrote", path)
```

```python
from genlib import *

E = lambda k, d: int(os.environ.get(k, str(d)))

K1_XB = 0
K1_RING = 8192
K1_LDS = K1_RING + 9 * 16384
K1_XA = [0, 2, 4, 6]
K1_WA = [1, 3, 5, 7, 8, 0, 1, 2, 3, 5, 7, 8]
K1_UNIT = [0, 8, 16, 24, 32, 48, 64, 80, 88]


def cost(line):
    t = line.strip()
    if t.startswith(("v_exp", "v_sin", "v_cos", "v_rcp", "v_mfma")):
        return 8
    if t.startswith(("v_cvt_pk", "v_fma_", "v_pk")) or "_dpp" in t:
        return 5
    return 4


def splice(lines, marks):
    out, acc, k = [], 0, 0
    nbar = len(marks)
    for l in lines:
        if k < nbar and acc >= marks[k]:
            out.append("    s_barrier")
            k += 1
        out.append(l)
        acc += cost(l)
    out += ["    s_barrier"] * (nbar - k)
    return out


def gen_k1():
    a = Asm()
    head(a, "k1_kernel")
    a(f"""
    s_cmp_ge_u32 s2, 256
    s_cbranch_scc1 k1_end
    """)
    dbg_start(a)
    a(f"""
    s_load_dwordx8 s[32:39], s[0:1], 64
    s_load_dwordx16 s[16:31], s[0:1], 0
    s_load_dwordx2 s[40:41], s[0:1], 112
    v_lshrrev_b32 v1, 6, v0
    v_and_b32 v0, 63, v0
    s_and_b32 s4, s2, 7             ; xcd
    v_readfirstlane_b32 s3, v1
    v_readfirstlane_b32 s94, v1
    s_lshr_b32 s5, s2, 3            ; idx
    s_and_b32 s15, s3, 3
    s_lshr_b32 s14, s3, 2
    s_cmp_eq_u32 s14, 1
    s_cbranch_scc1 k1_kgen
    s_and_b32 s6, s4, 1
    s_lshl_b32 s6, s6, 2
    s_and_b32 s7, s5, 3
    s_add_u32 s6, s6, s7
    s_lshr_b32 s7, s4, 1
    s_lshl_b32 s7, s7, 3
    s_lshr_b32 s8, s5, 2
    s_add_u32 s7, s7, s8
    s_and_b32 s12, s15, 1           ; rb
    s_lshr_b32 s13, s15, 1          ; hb
    s_lshl_b32 s8, s7, 1
    s_add_u32 s8, s8, s12
    s_lshl_b32 s12, s12, 12
    v_lshrrev_b32 v13, 5, v0        ; h
    s_cmp_eq_u32 s14, 0
    s_cbranch_scc1 k1_load
    """)

    DP = E("K1_DP", 4)
    XB0, WB0 = 8, 16
    XF, WF = 20, 40
    XR = 96
    ACC = [64, 80, 64]
    assert DP <= 4
    a(f"""
    v_and_b32 v7, 31, v0            ; s
    v_bfe_u32 v14, v0, 1, 3         ; (s>>1)&7
    v_xor_b32 v14, v14, v13         ; h ^ f
    v_lshlrev_b32 v15, 7, v7
    s_add_u32 s12, s12, {K1_RING}
    v_add_u32 v15, s12, v15         ; rb*4096 + s*128
    v_lshl_add_u32 v8, v14, 4, v15
    v_xor_b32 v9, 32, v8
    v_xor_b32 v10, 64, v8
    v_xor_b32 v11, 96, v8
    v_lshlrev_b32 v16, 10, v13      ; h*1024
    v_bfe_u32 v14, v0, 2, 2         ; r
    v_lshl_add_u32 v16, v14, 7, v16
    v_bfe_u32 v14, v0, 3, 1         ; r>>1
    v_xor_b32 v14, s13, v14
    v_lshl_add_u32 v16, v14, 6, v16
    v_bfe_u32 v14, v0, 4, 1
    v_lshl_add_u32 v16, v14, 5, v16
    v_and_b32 v14, 3, v0
    v_lshl_add_u32 v16, v14, 3, v16
    v_add_u32 v16, {K1_RING}, v16
    v_add_u32 v12, 65536, v8
    v_add_u32 v13, 65536, v9
    v_add_u32 v14, 65536, v10
    v_add_u32 v15, 65536, v11
    v_add_u32 v17, 65536, v16
    v_add_u32 v18, 131072, v16
    s_lshl_b32 s6, s6, 1
    s_add_u32 s6, s6, s13
    """)

    def xreg(g):
        p, k8 = (g // 8) % 4, g % 8
        return XR + 4 * (8 * p + k8) if p < 2 else XF + 4 * (g % (DP + 1))

    def reads(g):
        seg, p, k8 = g // 32, (g // 8) % 4, g % 8
        L = []
        if p >= 2 or seg == 0:
            ar = K1_XA[p]
            L.append(f"ds_read_b128 {v(xreg(g),4)}, v{XB0 + 4*(ar//4) + k8%4} offset:{(ar%4)*16384 + (k8//4)*8192}")
        ar = K1_WA[4 * seg + p]
        for half in range(2):
            L.append(f"ds_read_b64_tr_b16 {v(WF+4*(g%(DP+1))+2*half,2)}, v{WB0 + ar//4} offset:{(ar%4)*16384 + k8*2048 + half*512}")
        return L

    def mfma(g):
        seg = g // 32
        x, w, d = v(xreg(g), 4), v(WF + 4 * (g % (DP + 1)), 4), v(ACC[seg], 16)
        c = "0" if g % 32 == 0 else d
        return f"v_mfma_f32_32x32x16_bf16 {d}, {w}, {x}, {c}" if seg < 2 else f"v_mfma_f32_32x32x16_bf16 {d}, {x}, {w}, {c}"

    a(f"""
    s_lshl_b32 s10, s6, 17          ; fg*2*65536
    s_lshl_b32 s11, s8, 10
    s_add_u32 s10, s10, s11
    s_add_u32 s10, s10, {QI}        ; Q head A
    s_add_u32 s11, s10, 65536       ; Q head B
    s_lshl_b32 s12, s6, 18          ; fg*2*131072
    s_lshl_b32 s13, s8, 11
    s_add_u32 s12, s12, s13
    s_add_u32 s12, s12, {KVI}
    s_add_u32 s13, s12, 131072
    v_lshlrev_b32 v1, 4, v0         ; lane*16
    v_and_b32 v2, 0x33, v0
    v_bfe_u32 v3, v0, 2, 1
    v_lshl_or_b32 v2, v3, 3, v2
    v_bfe_u32 v3, v0, 3, 1
    v_lshl_or_b32 v2, v3, 2, v2
    v_lshlrev_b32 v2, 4, v2         ; K voffset
    v_and_b32 v3, 15, v0
    v_lshlrev_b32 v3, 4, v3
    v_lshrrev_b32 v4, 5, v0
    v_lshl_add_u32 v3, v4, 8, v3
    v_bfe_u32 v4, v0, 4, 1
    v_lshl_add_u32 v3, v4, 17, v3   ; V voffset
    s_mov_b32 s14, {fl(0.25*LOG2E)}
    """)
    a("s_waitcnt lgkmcnt(0)")
    srd(a, 44, 40, WS_BYTES)
    if E("K1_GPRIO", 2):
        a(f"s_setprio {E('K1_GPRIO', 2)}")

    def epi(seg):
        L = []
        A = ACC[seg]
        f = STFS[seg]
        for j in range(8):
            if seg == 0:
                L.append(f"v_mul_f32 v{A+2*j}, s14, v{A+2*j}")
                L.append(f"v_mul_f32 v{A+2*j+1}, s14, v{A+2*j+1}")
            L.append(f"v_cvt_pk_bf16_f32 v{A+j}, v{A+2*j}, v{A+2*j+1}")
            if j == 3:
                L.append({0: f"buffer_store_dwordx4 {v(A,4)}, v1, s[44:47], s10 offen{f}",
                          1: f"buffer_store_dwordx4 {v(A,4)}, v2, s[44:47], s12 offen{f}",
                          2: f"buffer_store_dwordx4 {v(A,4)}, v3, s[44:47], s12 offen offset:1024{f}"}[seg])
            if j == 7:
                L.append({0: f"buffer_store_dwordx4 {v(A+4,4)}, v1, s[44:47], s11 offen{f}",
                          1: f"buffer_store_dwordx4 {v(A+4,4)}, v2, s[44:47], s13 offen{f}",
                          2: f"buffer_store_dwordx4 {v(A+4,4)}, v3, s[44:47], s12 offen offset:1536{f}"}[seg])
        return L

    dbg_ts(a, 0)
    a("s_barrier")
    dbg_ts(a, 1)
    cnt = {}
    tot = 0
    for g in range(DP):
        for l in reads(g):
            a(l)
        tot += len(reads(g))
        cnt[g] = tot
    fill = []
    for g in range(96):
        a(f"s_waitcnt lgkmcnt({tot - cnt[g]})")
        a(mfma(g))
        n = g + DP
        if n < 96:
            if n in K1_UNIT:
                u = K1_UNIT.index(n)
                if u <= 4:
                    a("s_waitcnt lgkmcnt(0)")
                a("s_barrier")
                if u in (2, 4, 6, 8):
                    dbg_ts(a, 1 + u // 2)
            for l in reads(n):
                a(l)
            tot += len(reads(n))
            cnt[n] = tot
        if g in (33, 65):
            fill = epi(g // 32 - 1)
        for l in fill[:3]:
            a(l)
        fill = fill[3:]
    dbg_ts(a, 6)
    a("s_nop 11")
    if not DBG:
        a("s_nop 1")
    for l in epi(2):
        a(l)
    dbg_end(a, 0)
    a("s_endpgm")

    a.lab("k1_load")
    a(f"""
    s_lshl_b32 s9, s8, 15
    s_lshl_b32 s10, s13, 14
    s_add_u32 s9, s9, s10
    s_lshl_b32 s10, s13, 11
    s_add_u32 s12, s12, s10
    v_lshrrev_b32 v1, 3, v0         ; lane>>3
    v_and_b32 v7, 7, v0             ; lane&7
    v_lshrrev_b32 v8, 4, v0         ; lane>>4
    v_xor_b32 v4, v7, v8
    v_lshlrev_b32 v5, 10, v1
    v_lshl_add_u32 v2, v4, 4, v5    ; q even
    v_xor_b32 v3, 64, v2            ; chunk^4
    v_add_u32 v3, 7168, v3          ; q odd
    s_mul_i32 s10, s15, {32*3072}
    s_lshl_b32 s11, s6, 7
    s_add_u32 s10, s10, s11
    s_lshl_b32 s13, s15, 12
    v_and_b32 v8, 1, v8
    v_lshlrev_b32 v8, 2, v8
    v_xor_b32 v7, v7, v8
    v_mul_u32_u24 v8, 3072, v1
    v_lshl_add_u32 v10, v7, 4, v8
    v_add_u32 v10, s10, v10         ; W voffsets v10..13
    v_add_u32 v11, {8*3072-1024}, v10
    v_add_u32 v12, {2*(8*3072-1024)}, v10
    v_add_u32 v13, {3*(8*3072-1024)}, v10
    s_add_u32 s60, s6, s7
    """)
    for p in range(4):
        a(f"""
        s_and_b32 s60, s60, {E("K1_ROT", 3)}
        s_lshl_b32 s{56+p}, s60, 8
        s_add_u32 s{56+p}, s{56+p}, s9
        s_mul_i32 s{96+p}, s60, {128*3072}
        s_add_u32 s60, s60, 1
        """.replace("s_and_b32 s60, s60, 0", "s_and_b32 s60, s60, %d" % (0 if p == 0 else 3)))
    a(f"""
    v_and_b32 v14, 3, v1
    v_mul_u32_u24 v14, 3072, v14
    v_bfe_u32 v15, v0, 2, 1
    v_lshl_add_u32 v14, v15, 10, v14
    v_and_b32 v15, 3, v0
    v_lshl_add_u32 v14, v15, 7, v14
    s_lshl_b32 s61, s5, 2
    s_add_u32 s61, s61, s15
    s_mul_i32 s61, s61, {4*3072}
    s_and_b32 s62, s4, 1
    s_lshl_b32 s62, s62, 9
    s_add_u32 s61, s61, s62
    s_mov_b32 s62, -1
    s_mov_b32 s63, 0
    s_mov_b32 s50, {hex(2048*512*2)}
    s_mov_b32 s51, 0x00020000
    s_mov_b32 s54, {hex(512*1536*2)}
    s_mov_b32 s55, 0x00020000
    s_waitcnt lgkmcnt(0)
    s_mov_b32 s48, s34
    s_and_b32 s49, s35, 0xffff
    s_mov_b32 s52, s36
    s_and_b32 s53, s37, 0xffff
    """)
    q = []

    def dma_x(p):
        base = K1_RING + K1_XA[p] * 16384
        a(f"""
        s_add_u32 m0, s12, {base}
        s_add_u32 s14, s{56+p}, 128
        buffer_load_dwordx4 v2, s[48:51], s{56+p} offen lds
        buffer_load_dwordx4 v3, s[48:51], s{56+p} offen offset:1024 lds
        s_add_u32 m0, s12, {base + 8192}
        s_nop 0
        buffer_load_dwordx4 v2, s[48:51], s14 offen lds
        buffer_load_dwordx4 v3, s[48:51], s14 offen offset:1024 lds
        """)

    def dma_w(w):
        base = K1_RING + K1_WA[w] * 16384
        a(f"""
        s_add_u32 m0, s13, {base}
        s_add_u32 s14, s{96 + w%4}, {(w//4)*1024}
        """)
        for i in range(4):
            a(f"buffer_load_dwordx4 v{10+i}, s[52:55], s14 offen offset:{i*1024} lds")

    def unit(u):
        if u < 4:
            dma_x(u); dma_w(u); q.extend([u] * 8)
        elif u < 7:
            dma_w(2 * u - 4); dma_w(2 * u - 3); q.extend([u] * 8)
        else:
            dma_w(u + 3); q.extend([u] * 4)

    def wait_for(tag):
        last = max(i for i, t in enumerate(q) if t == tag)
        a(f"s_waitcnt vmcnt({len(q) - 1 - last})")

    LA = 3
    for u in range(LA):
        if u == E("K1_PF", 0):
            a("""
            s_mov_b64 exec, s[62:63]
            buffer_load_dword v15, v14, s[52:55], s61 offen offset:1024
            s_mov_b64 exec, -1
            """)
            q.append("pf")
        unit(u)
    if DBG:
        srd(a, 44, 40, WS_BYTES)
    for b in range(9):
        wait_for(b)
        if b < 8:
            dbg_ts(a, b)
        a("s_barrier")
        if b + LA < 9:
            unit(b + LA)
    dbg_end(a, 0)
    a("s_endpgm")

    a.lab("k1_kgen")
    XA, XY, XC, XAD = 64, 65, 66, 67
    SA, SB, SC, SD, SE = 68, 69, 70, 71, 72
    a(f"""
    s_setprio 3
    s_lshl_b32 s6, s4, 6
    s_lshl_b32 s7, s5, 1
    s_add_u32 s6, s6, s7
    s_lshr_b32 s7, s15, 1
    s_add_u32 s6, s6, s7            ; channel d
    s_lshl_b32 s8, s6, 8
    s_and_b32 s9, s15, 1
    s_lshl_b32 s9, s9, 7
    s_add_u32 s8, s8, s9            ; d*256 + half*128
    s_lshl_b32 s9, s6, 1
    v_lshl_add_u32 v1, v0, 1, s8
    v_mov_b32 v10, s9
    s_lshl_b32 s12, s7, 12
    s_add_u32 s12, s12, {K1_XB}
    v_lshl_add_u32 v{XAD}, v0, 4, s12
    """)
    for i in range(2, 10):
        a(f"v_mov_b32 v{i}, 0")
    a(f"""
    ds_write_b32 v{XAD}, v2 offset:3072
    s_mul_i32 s11, s6, {KD_PITCH}
    s_add_u32 s11, s11, {KD}
    s_mov_b32 s13, {fl(LOG2E)}
    s_mov_b32 s14, {fl(1.0/(2*math.pi))}
    v_and_b32 v20, 15, v0           ; i / j
    v_lshrrev_b32 v21, 4, v0        ; g / G
    v_and_b32 v22, 1, v0
    v_cvt_f32_u32 v{XA}, v20
    v_mul_f32 v{XY}, 16.0, v{XA}
    v_and_b32 v23, 3, v0
    v_lshlrev_b32 v23, 2, v23
    v_lshrrev_b32 v24, 2, v20
    v_lshl_add_u32 v23, v24, 8, v23
    v_add_u32 v23, 512, v23         ; i<8 : 512 + 4(i&3) + 256(i>>2)
    v_lshlrev_b32 v24, 3, v22
    v_lshrrev_b32 v25, 1, v20
    v_lshl_add_u32 v24, v25, 8, v24 ; i>=8: 8(i&1) + 256(i>>1)
    v_cmp_gt_u32 vcc, 8, v20
    v_sub_u32 v{SE}, 63, v0
    v_cndmask_b32 v23, v24, v23, vcc
    v_cvt_f32_u32 v{XC}, v23
    v_lshlrev_b32 v{SE}, 2, v{SE}
    v_lshlrev_b32 v{SB}, 5, v20
    v_lshl_add_u32 v{SB}, v21, 3, v{SB}     ; seg0: 32j + 8G
    v_lshrrev_b32 v24, 5, v0                ; G>>1
    v_sub_u32 v25, 3, v24
    v_lshlrev_b32 v25, v25, v20
    v_lshl_add_u32 v{SC}, v21, 7, v25       ; seg2/3 A - 768
    v_mul_u32_u24 v24, 60, v24
    v_add3_u32 v{SD}, v24, v{SC}, 4         ; B - 768
    v_lshrrev_b32 v{SA}, 1, v{SB}           ; seg1: 16j + 4G
    v_cmp_eq_u32 vcc, 0, v0
    s_waitcnt lgkmcnt(0)
    global_load_short_d16_hi v8, v10, s[30:31]
    global_load_short_d16_hi v2, v1, s[18:19]
    global_load_short_d16_hi v3, v1, s[20:21]
    global_load_short_d16_hi v4, v1, s[22:23]
    global_load_short_d16_hi v5, v1, s[24:25]
    global_load_short_d16_hi v6, v1, s[26:27]
    global_load_short_d16_hi v7, v1, s[28:29]
    global_load_short_d16_hi v9, v10, s[32:33]
    """)
    srd(a, 44, 40, WS_BYTES)
    a(f"s_setprio {E('KG_PRIO', 2)}")
    PP, PW, WR, WI, CR, CI, KL = 12, 13, 14, 15, 16, 17, 18
    DPP = lambda j: f"row_newbcast:{j} row_mask:0xf bank_mask:0xf"
    k = Asm()
    k(f"""
    s_waitcnt vmcnt(7)
    v_mul_f32 v8, s13, v8
    v_exp_f32 v8, v8
    s_nop 0
    v_cvt_pk_bf16_f32 v8, v8, v8
    v_lshlrev_b32 v8, 16, v8                ; dt
    s_waitcnt vmcnt(5)
    v_mul_f32 v2, v8, v2
    v_mul_f32 v3, v8, v3
    v_mul_f32 v{PP}, s13, v2                ; p
    v_mul_f32 v{PW}, s14, v3                ; w
    v_rndne_f32 v3, v{PW}
    v_sub_f32 v{PW}, v{PW}, v3
    v_mul_f32 v20, {fl(256.0)}, v{PP}
    v_mul_f32 v21, {fl(256.0)}, v{PW}
    v_mul_f32 v22, {fl(2048.0)}, v{PP}
    v_mul_f32 v23, {fl(2048.0)}, v{PW}
    v_exp_f32 v20, v20
    v_exp_f32 v22, v22
    v_fract_f32 v23, v23
    v_cos_f32 v{CR}, v21
    v_sin_f32 v{CI}, v21
    v_cos_f32 v18, v23
    v_sin_f32 v19, v23
    s_waitcnt vmcnt(1)
    v_mul_f32 v4, v8, v4
    v_mul_f32 v5, v8, v5
    v_mul_f32 v{WR}, v6, v4
    v_mul_f32_e64 v{WI}, -v6, v5
    v_fma_f32 v{WR}, -v7, v5, v{WR}         ; Re W
    v_fma_f32 v{WI}, -v7, v4, v{WI}         ; -Im W
    v_mul_f32 v{CR}, v20, v{CR}
    v_mul_f32 v{CI}, v20, v{CI}
    v_mul_f32 v18, v{WR}, v18
    v_fmac_f32 v18, v{WI}, v19
    v_mul_f32 v{KL}, v22, v18               ; Re(W g^2048)
    """)
    red = [f"v_add_f32_dpp v{KL}, v{KL}, v{KL} {m}" for m in (
        "row_ror:1 row_mask:0xf bank_mask:0xf", "row_ror:2 row_mask:0xf bank_mask:0xf",
        "row_ror:4 row_mask:0xf bank_mask:0xf", "row_ror:8 row_mask:0xf bank_mask:0xf",
        "row_bcast:15 row_mask:0xa bank_mask:0xf", "row_bcast:31 row_mask:0xc bank_mask:0xf")]
    D0, D1, D2 = 20, 24, 28
    FX0, FX1, FX2, FY = 32, 36, 40, 44
    T = lambda q: 48 + q
    U = lambda q: 52 + q
    C = lambda q: 56 + q
    S = lambda q: 60 + q
    A_ = lambda q: 76 + q
    B_ = lambda q: 80 + q
    for ks in range(4):
        J = lambda q: 4 * ks + q

        def polar(X, fract):
            for q in range(4):
                k(f"v_mul_f32_dpp v{T(q)}, v{PP}, v{X} {DPP(J(q))}")
                k(f"v_mul_f32_dpp v{U(q)}, v{PW}, v{X} {DPP(J(q))}")
            if red:
                k(red.pop(0))
            for q in range(4):
                k(f"v_exp_f32 v{T(q)}, v{T(q)}")
                if fract:
                    k(f"v_fract_f32 v{U(q)}, v{U(q)}")
            for q in range(4):
                k(f"v_cos_f32 v{C(q)}, v{U(q)}")
                k(f"v_sin_f32 v{S(q)}, v{U(q)}")

        def mf(D, F):
            c = "0" if ks == 0 else v(D, 4)
            k(f"v_mfma_f32_16x16x32_bf16 {v(D,4)}, {v(F,4)}, {v(FY,4)}, {c}")

        polar(XY, False)
        for q in range(4):
            k(f"v_mul_f32_dpp v{A_(q)}, v{WR}, v{T(q)} {DPP(J(q))}")
            k(f"v_mul_f32_dpp v{B_(q)}, v{WI}, v{T(q)} {DPP(J(q))}")
        for q in range(4):
            k(f"v_mul_f32 v{T(q)}, v{A_(q)}, v{C(q)}")
            k(f"v_mul_f32 v{U(q)}, v{B_(q)}, v{C(q)}")
        for q in range(4):
            k(f"v_fmac_f32 v{T(q)}, v{B_(q)}, v{S(q)}")
            k(f"v_fma_f32 v{U(q)}, -v{A_(q)}, v{S(q)}, v{U(q)}")
        for q in range(4):
            k(f"v_cvt_pk_bf16_f32 v{FY+q}, v{T(q)}, v{U(q)}")
        polar(XC, True)
        for q in range(4):
            k(f"v_mul_f32 v{C(q)}, v{T(q)}, v{C(q)}")
            k(f"v_mul_f32 v{S(q)}, v{T(q)}, v{S(q)}")
        for q in range(4):
            k(f"v_cvt_pk_bf16_f32 v{FX2+q}, v{C(q)}, v{S(q)}")
        polar(XA, False)
        mf(D2, FX2)
        for q in range(4):
            k(f"v_mul_f32 v{C(q)}, v{T(q)}, v{C(q)}")
            k(f"v_mul_f32 v{S(q)}, v{T(q)}, v{S(q)}")
        for q in range(4):
            k(f"v_cvt_pk_bf16_f32 v{FX0+q}, v{C(q)}, v{S(q)}")
        for q in range(4):
            k(f"v_mul_f32_dpp v{T(q)}, v{CR}, v{C(q)} {DPP(J(q))}")
            k(f"v_mul_f32_dpp v{U(q)}, v{CI}, v{C(q)} {DPP(J(q))}")
        mf(D0, FX0)
        for q in range(4):
            k(f"v_fmac_f32_dpp v{T(q)}, -v{CI}, v{S(q)} {DPP(J(q))}")
            k(f"v_fmac_f32_dpp v{U(q)}, v{CR}, v{S(q)} {DPP(J(q))}")
        for q in range(4):
            k(f"v_cvt_pk_bf16_f32 v{FX1+q}, v{T(q)}, v{U(q)}")
        k("s_nop 1")
        mf(D1, FX1)
    k("""
    s_waitcnt vmcnt(0)
    v_cndmask_b32 v9, 0, v9, vcc
    """)
    m0, m1, sg = E("KG_M0", 450), E("KG_M1", 300), E("KG_SEG", 370)
    a.L.extend(splice(k.L, [m0] + [m0 + m1 + sg * i for i in range(6)] + [m0 + m1 + sg * 5 + E('KG_S2', 200) * i for i in (1, 2)]))
    print("kgen cost", sum(cost(l) for l in k.L), file=sys.stderr)
    dbg_ts(a, 2)
    a(f"""
    s_bitcmp1_b32 s15, 0
    s_cbranch_scc0 k1_kg_fin
    ds_write_b128 v{XAD}, {v(D2,4)} offset:2048
    ds_write_b128 v{XAD}, {v(D0,4)}
    v_mov_b32 v2, 1
    s_nop 2
    v_mov_b32 v{D1+1}, v{KL}
    ds_write_b128 v{XAD}, {v(D1,4)} offset:1024
    ds_write_b32 v{XAD}, v2 offset:3072
    s_waitcnt lgkmcnt(0)
    """)
    dbg_end(a, 0)
    a("s_endpgm")
    a.lab("k1_kg_fin")
    a(f"""
    ds_read_b32 v2, v{XAD} offset:3072
    ds_read_b128 v[32:35], v{XAD}
    ds_read_b128 v[36:39], v{XAD} offset:1024
    ds_read_b128 v[40:43], v{XAD} offset:2048
    s_waitcnt lgkmcnt(0)
    v_readfirstlane_b32 s9, v2
    s_nop 0
    s_cmp_eq_u32 s9, 0
    s_cbranch_scc1 k1_kg_fin
    v_add_f32 v{D0}, v{D0}, v9
    v_mov_b32 v{D1+1}, v{KL}
    """)
    dbg_ts(a, 3)
    for j in range(12):
        if j != 7:
            a(f"v_add_f32 v{20+j}, v{20+j}, v{32+j}")
    a(f"""
    v_cvt_pk_bf16_f32 v12, v{D0}, v{D0+1}
    v_cvt_pk_bf16_f32 v13, v{D0+2}, v{D0+3}
    buffer_store_dwordx2 v[12:13], v{SB}, s[44:47], s11 offen{STF}
    v_cvt_pk_bf16_f32 v14, v{D1}, v{D1+2}
    v_cvt_pk_bf16_f32 v15, v{D2}, v{D2+1}
    v_cvt_pk_bf16_f32 v16, v{D2+2}, v{D2+3}
    v_cvt_pk_bf16_f32 v17, v{D1+1}, v{D1+1}
    buffer_store_dword v14, v{SA}, s[44:47], s11 offen offset:512{STF}
    buffer_store_dword v15, v{SC}, s[44:47], s11 offen offset:768{STF}
    buffer_store_dword v16, v{SD}, s[44:47], s11 offen offset:768{STF}
    buffer_store_dword v17, v{SE}, s[44:47], s11 offen offset:1280{STF}
    """)
    dbg_end(a, 0)
    a.lab("k1_end")
    a("s_endpgm")
    return a, desc("k1_kernel", 160)


STF = os.environ.get("STF", "")
if STF:
    STF = " " + STF
STFS = [(" " + x if x else "") for x in os.environ.get("STFS", "sc0 sc1,sc0 sc1,").split(",")]

TP = 2080
CV_BASE = 64 * TP
CV_KS = 4160
CV_U = 8320
CV_CH = 12928
K2_FL = 163840 - 64
K2_LDS = 163840


def gen_k2():
    a = Asm()
    head(a, "k2_kernel")
    a(f"""
    s_cmp_ge_u32 s2, 256
    s_cbranch_scc1 k2_end
    """)
    dbg_start(a)
    a(f"""
    s_load_dwordx2 s[40:41], s[0:1], 112
    s_load_dwordx4 s[16:19], s[0:1], 88
    s_load_dwordx2 s[20:21], s[0:1], 0
    v_lshrrev_b32 v1, 6, v0
    v_and_b32 v0, 63, v0
    s_and_b32 s4, s2, 7
    v_readfirstlane_b32 s3, v1
    v_readfirstlane_b32 s94, v1
    s_lshr_b32 s5, s2, 3
    v_lshlrev_b32 v1, 4, v0
    s_lshl_b32 s6, s4, 2
    s_lshr_b32 s7, s5, 3
    s_add_u32 s6, s6, s7            ; head
    s_lshl_b32 s8, s6, 17
    s_add_u32 s8, s8, {KVI}
    s_mul_i32 s9, s3, {TP}
    s_lshl_b32 s10, s3, 11
    s_add_u32 s10, s10, s8
    s_mov_b32 m0, s9
    s_mov_b32 s46, {hex(WS_BYTES)}
    s_mov_b32 s47, 0x00020000
    s_cmp_ge_u32 s3, 8
    s_cbranch_scc1 k2_conv
    """)

    Q, IDX, KA, VA0, VA1 = 4, 2, 3, 28, 29
    KB = [8, 12]
    V0B = [16, 96]
    V1B = [20, 100]
    NEGM, O = 32, 80
    SB = [48, 64]
    FLV = 104
    a(f"""
    s_and_b32 s7, s5, 7
    s_lshl_b32 s7, s7, 3
    s_add_u32 s7, s7, s3            ; qt
    s_lshl_b32 s11, s6, 16
    s_lshl_b32 s12, s7, 10
    s_add_u32 s11, s11, s12
    s_add_u32 s11, s11, {QI}
    s_lshl_b32 s12, s7, 15
    s_lshl_b32 s13, s6, 10
    s_add_u32 s12, s12, s13
    s_add_u32 s12, s12, {OI}        ; O dest
    s_mov_b32 s24, 0
    v_mov_b32 v{IDX}, 0xdddddddd
    v_and_b32 v23, 15, v0
    v_lshrrev_b32 v24, 5, v0
    v_lshlrev_b32 v23, 4, v23
    v_lshl_add_u32 v30, v24, 8, v23
    v_add_u32 v30, 1024, v30
    v_add_u32 v31, 512, v30
    v_and_b32 v23, 16, v0
    v_cmp_eq_u32 vcc, 16, v23
    v_mov_b32 v24, 2064
    v_and_b32 v23, 27, v0
    v_mov_b32 v{FLV}, {K2_FL}
    v_cndmask_b32 v30, v30, v24, vcc
    v_cndmask_b32 v31, v31, v24, vcc
    v_cmp_eq_u32 vcc, 16, v23
    v_mov_b32 v24, 2048
    v_add_u32 v{KA}, s9, v1
    s_nop 0
    v_cndmask_b32 v30, v30, v24, vcc
    v_cndmask_b32 v31, v31, v24, vcc
    """)
    def zero_init():
        for j in range(4):
            a(f"v_mov_b32 v{V1B[1]+j}, 0")
        for j in range(8):
            a(f"v_mov_b32 v{SB[1]+8+j}, 0")
        for j in range(16):
            a(f"v_mov_b32 v{O+j}, 0")
    zero_init()
    if E("K2_PRIO", 1) == 1:
        a("""
        s_cmp_lt_u32 s3, 4
        s_cbranch_scc1 k2_np
        s_setprio 1
        """)
        a.lab("k2_np")
    a(f"""
    s_waitcnt lgkmcnt(0)
    s_mov_b32 s44, s40
    s_and_b32 s45, s41, 0xffff
    buffer_load_dwordx4 v1, s[44:47], s10 offen lds
    buffer_load_dwordx4 {v(Q,4)}, v1, s[44:47], s11 offen
    buffer_load_dwordx4 v1, s[44:47], s10 offen offset:1024 lds
    s_waitcnt vmcnt(1)
    ds_read_b128 {v(KB[0],4)}, v{KA}
    """)
    if DBG == 1:
        dbg_ts(a, 0)
    a(f"""
    s_waitcnt lgkmcnt(0)
    v_mfma_f32_32x32x16_bf16 {v(SB[0],16)}, {v(KB[0],4)}, {v(Q,4)}, 0
    s_nop 11
    v_max3_f32 v23, v{SB[0]}, v{SB[0]+1}, v{SB[0]+2}
    """)
    for j in range(3, 15, 2):
        a(f"v_max3_f32 v23, v23, v{SB[0]+j}, v{SB[0]+j+1}")
    a(f"v_max_f32 v23, v23, v{SB[0]+15}")
    a.lab("k2_start")
    a(f"""
    v_mov_b32 v24, v23
    v_mov_b32 v{KA}, v1
    v_mov_b32 v{VA0}, v30
    v_permlane32_swap_b32 v23, v24
    v_mov_b32 v{VA1}, v31
    s_mov_b32 s25, 0
    v_max_f32 v23, v23, v24
    """)
    a(f"v_sub_f32 v24, 0, v23")
    for j in range(0, 16, 2):
        a(f"v_pk_mov_b32 {v(NEGM+j,2)}, v[24:25], v[24:25] op_sel:[0,0]")
    a(f"""
    s_cmp_lg_u32 s24, 0
    s_cbranch_scc1 k2_nobar
    s_waitcnt vmcnt(0)
    s_barrier
    """)
    a.lab("k2_nobar")
    if DBG == 1:
        dbg_ts(a, 1)
    a(f"""
    ds_read_b128 {v(KB[0],4)}, v{KA}
    ds_read_b128 {v(KB[1],4)}, v{KA} offset:{TP}
    ds_read_b128 {v(V0B[0],4)}, v{VA0}
    ds_read_b128 {v(V1B[0],4)}, v{VA1}
    s_waitcnt lgkmcnt(3)
    v_mfma_f32_32x32x16_bf16 {v(SB[0],16)}, {v(KB[0],4)}, {v(Q,4)}, {v(NEGM,16)}
    s_nop 9
    """)
    a.lab("k2_loop")
    a(f"""
    s_bitcmp1_b32 0x0a, s25
    s_cbranch_scc1 k2_poll
    """)
    a.lab("k2_body")
    if DBG == 2:
        for k in range(7):
            a(f"s_mov_b32 s{64+2*k}, s{66+2*k}")
        a("s_memtime s[78:79]")
    U = 8
    PS = E("K2_PS", 46)
    for i in range(U):
        p, q = i % 2, (i + 1) % 2
        Sc, Sn = SB[p], SB[q]
        ex = lambda j: a(f"v_exp_f32 v{Sc+j}, v{Sc+j}")
        ex(0); ex(1)
        a("s_waitcnt lgkmcnt(0)")
        a(f"v_smfmac_f32_32x32x32_bf16 {v(O,16)}, {v(V1B[q],4)}, {v(Sn+8,8)}, v{IDX}")
        a(f"ds_read_b128 {v(KB[p],4)}, v{KA} offset:{(i+2)*TP}")
        ex(2)
        a(f"ds_read_b128 {v(V0B[q],4)}, v{VA0} offset:{(i+1)*TP}")
        ex(3)
        a(f"ds_read_b128 {v(V1B[q],4)}, v{VA1} offset:{(i+1)*TP}")
        ex(4)
        a(f"v_mfma_f32_32x32x16_bf16 {v(Sn,16)}, {v(KB[q],4)}, {v(Q,4)}, {v(NEGM,16)}")
        for j in range(5, 10):
            ex(j)
        a(f"v_smfmac_f32_32x32x32_bf16 {v(O,16)}, {v(V0B[p],4)}, {v(Sc,8)}, v{IDX}")
        for j in range(10, 16):
            ex(j)
            if j == 11 and i == PS % U and E("K2_PRIO", 1) == 1:
                a(f"""
                s_cmp_lg_u32 s25, {PS // U}
                s_cbranch_scc1 k2_ps
                s_setprio 0
                """)
                a.lab("k2_ps")
            if i == U - 1:
                if j == 11:
                    a(f"v_add_u32 v{KA}, {U*TP}, v{KA}")
                if j == 12:
                    a(f"v_add_u32 v{VA0}, {U*TP}, v{VA0}")
                if j == 13:
                    a(f"v_add_u32 v{VA1}, {U*TP}, v{VA1}")
                    a("s_add_u32 s25, s25, 1")
                if j == 14:
                    a(f"s_cmp_lt_u32 s25, {64//U}")
    a(f"""
    s_cbranch_scc1 k2_loop
    s_nop 0
    v_smfmac_f32_32x32x32_bf16 {v(O,16)}, {v(V1B[1],4)}, {v(SB[1]+8,8)}, v{IDX}
    s_waitcnt lgkmcnt(0)
    s_nop 10
    v_mul_f32 v23, 0, v{O+8}
    """)
    if DBG == 1:
        dbg_ts(a, 4)
    for j in range(8):
        a(f"v_fma_f32 v23, 0, v{O+j}, v23")
    a(f"""
    v_add_f32 v23, v23, v{O+8}
    v_mov_b32 v24, {fl(2.0**100)}
    v_cmp_nlt_f32 vcc, v23, v24
    v_rcp_f32 v25, v{O+8}
    s_cmp_lg_u32 s24, 0
    s_cbranch_scc1 k2_store
    s_cmp_lg_u64 vcc, 0
    s_cbranch_scc1 k2_fallback
    """)
    a.lab("k2_store")
    for j in range(8):
        a(f"v_mul_f32 v{O+j}, v25, v{O+j}")
    for j in range(4):
        a(f"v_cvt_pk_bf16_f32 v{24+j}, v{O+2*j}, v{O+2*j+1}")
    a(f"buffer_store_dwordx4 v[24:27], v1, s[44:47], s12 offen{STF}")
    dbg_end(a, 1)
    a("s_endpgm")
    a.lab("k2_poll")
    a(f"""
    ds_read_b64 v[{FLV+2}:{FLV+3}], v{FLV}
    s_waitcnt lgkmcnt(0)
    v_readfirstlane_b32 s26, v{FLV+2}
    v_readfirstlane_b32 s27, v{FLV+3}
    s_cmp_eq_u32 s25, 1
    s_cselect_b32 s26, s26, s27
    s_cmp_lt_u32 s26, 4
    s_cbranch_scc1 k2_poll
    """)
    if DBG == 1:
        a("s_mov_b32 s68, s70")
        dbg_ts(a, 3)
    a("s_branch k2_body")
    a.lab("k2_fallback")
    a(f"""
    s_mov_b32 s24, 1
    s_mov_b32 s25, 0
    v_mov_b32 v23, 0xff800000
    v_add_u32 v{KA}, {63*TP}, v1
    """)
    zero_init()
    a.lab("k2_fb_loop")
    a(f"""
    ds_read_b128 {v(KB[0],4)}, v{KA}
    v_subrev_u32 v{KA}, {TP}, v{KA}
    s_waitcnt lgkmcnt(0)
    v_mfma_f32_32x32x16_bf16 {v(SB[0],16)}, {v(KB[0],4)}, {v(Q,4)}, 0
    s_nop 11
    """)
    for j in range(0, 16, 2):
        a(f"v_max3_f32 v23, v23, v{SB[0]+j}, v{SB[0]+j+1}")
    a(f"""
    s_add_u32 s25, s25, 1
    s_cmp_lt_u32 s25, 64
    s_cbranch_scc1 k2_fb_loop
    s_branch k2_start
    """)

    NC0 = E("K2_NC0", 0)
    FA = E("K2_FA", 8)

    def tile_dma():
        a(f"""
        s_add_u32 m0, m0, {4*TP}
        s_add_u32 s10, s10, 8192
        buffer_load_dwordx4 v1, s[44:47], s10 offen lds
        buffer_load_dwordx4 v1, s[44:47], s10 offen offset:1024 lds
        """)

    def bump(off):
        a(f"""
        s_mov_b64 exec, 1
        ds_add_u32 v2, v3 offset:{off}
        s_mov_b64 exec, -1
        """)

    def poll(off, name, after):
        BK = E("K2_BK", 4)
        a(f"s_setprio {E('K2_PP', 0)}")
        a(f"s_branch {name}_in")
        a.lab(name)
        for _ in range(BK):
            a("s_nop 15")
        a.lab(name + "_in")
        a(f"""
        ds_read_b32 v15, v2 offset:{off}
        s_waitcnt lgkmcnt(0)
        v_readfirstlane_b32 s26, v15
        s_cmp_lt_u32 s26, 4
        s_cbranch_scc1 {name}
        s_setprio {after}
        """)

    a.lab("k2_conv")
    a(f"""
    s_sub_u32 s3, s3, 8             ; j
    s_and_b32 s22, s3, 1            ; channel
    s_lshr_b32 s23, s3, 1           ; half
    s_mul_i32 s12, s22, {CV_CH}
    s_add_u32 s12, s12, {CV_BASE}
    v_mov_b32 v2, {K2_FL}
    v_mov_b32 v3, 1
    v_mov_b32 v8, 0
    v_mov_b32 v9, 0
    v_mov_b32 v10, 0
    v_mov_b32 v11, 0
    v_lshlrev_b32 v5, 3, v0
    v_add_u32 v6, s12, v1
    v_add_u32 v14, s12, v5
    s_cmp_ge_u32 s3, 2
    s_cbranch_scc1 k2_cv_i1
    ds_write_b64 v14, v[8:9] offset:{CV_U+4096}
    s_mov_b64 exec, 3
    ds_write_b128 v6, v[8:11]
    ds_write_b128 v6, v[8:11] offset:{CV_KS}
    v_add_u32 v4, v2, v1
    ds_write_b128 v4, v[8:11]
    s_mov_b64 exec, -1
    s_branch k2_cv_i2
    """)
    a.lab("k2_cv_i1")
    a(f"""
    s_lshl_b32 s13, s22, 4
    v_mul_u32_u24 v4, {TP}, v0
    s_cmp_eq_u32 s22, 0
    s_cselect_b32 s14, 0x3f803f80, 0
    v_add_u32 v4, s13, v4
    v_mov_b32 v8, s14
    v_mov_b32 v9, s14
    v_mov_b32 v10, s14
    v_mov_b32 v11, s14
    ds_write_b128 v4, v[8:11] offset:2048
    """)
    a.lab("k2_cv_i2")
    a(f"""
    s_lshl_b32 s6, s4, 6
    s_lshl_b32 s7, s5, 1
    s_add_u32 s6, s6, s7            ; d0
    s_add_u32 s11, s6, s22
    s_mul_i32 s11, s11, {KD_PITCH}
    s_add_u32 s11, s11, {KD}
    v_lshlrev_b32 v4, 2, v0
    v_lshlrev_b32 v7, 5, v0
    v_add_u32 v7, s12, v7
    v_lshlrev_b32 v12, 13, v0       ; u voffset
    s_lshl_b32 s13, s3, 19
    s_lshl_b32 s14, s6, 1
    s_add_u32 s13, s13, s14         ; u soffset
    s_add_u32 s27, s13, 4096
    s_mov_b32 s14, 0x01000100
    s_mov_b32 s15, 0x03020302
    s_mov_b32 s28, 0x05040302
    s_mov_b32 s29, 0x05040100
    s_mov_b32 s30, 0x07060302
    s_waitcnt lgkmcnt(0)
    s_mov_b32 s44, s40
    s_and_b32 s45, s41, 0xffff
    buffer_load_dwordx4 v1, s[44:47], s10 offen lds
    buffer_load_dwordx4 v1, s[44:47], s10 offen offset:1024 lds
    """)
    for i in range(NC0):
        tile_dma()
    srd(a, 52, 18, 2048 * 1024 * 2)
    srd(a, 48, 16, 512 * 512 * 2)
    srd(a, 56, 20, 2048 * 512 * 2)
    a(f"""
    s_waitcnt vmcnt({2*NC0})
    s_barrier
    s_setprio {E('K2_CP0', 2)}
    """)
    for i in range(NC0, 13):
        tile_dma()
        if i + 1 == FA:
            a(f"s_waitcnt vmcnt({2*(FA-4)})")
            bump(0)
    UR = 64
    a(f"""
    s_cmp_lg_u32 s23, 0
    s_cbranch_scc1 k2_cv_l1
    buffer_load_dwordx3 v[72:74], v5, s[44:47], s11 offen
    buffer_load_dwordx2 v[76:77], v4, s[44:47], s11 offen offset:512
    buffer_load_dwordx2 v[78:79], v4, s[44:47], s11 offen offset:768
    s_waitcnt vmcnt(3)
    s_branch k2_cv_l2
    """)
    a.lab("k2_cv_l1")
    a(f"""
    buffer_load_dwordx2 v[80:81], v4, s[44:47], s11 offen offset:1024
    s_waitcnt vmcnt(1)
    """)
    a.lab("k2_cv_l2")
    bump(4)
    dbg_ts(a, 0)
    for e in range(8):
        a(f"buffer_load_dword v{UR+e}, v12, s[56:59], s{13 if e < 4 else 27} offen offset:{(e&3)*1024}")
    a(f"""
    s_waitcnt vmcnt(8)
    s_cbranch_scc1 k2_cv_e1
    """)
    EE = lambda d, r: a(f"v_perm_b32 v{d}, v{r}, v{r}, s14")
    OO = lambda d, r: a(f"v_perm_b32 v{d}, v{r}, v{r}, s15")
    EO = lambda d, r: a(f"v_mov_b32 v{d}, v{r}")
    OE = lambda d, r: a(f"v_perm_b32 v{d}, v{r+1}, v{r}, s28")
    FF = lambda d, r: a(f"v_perm_b32 v{d}, v{r+1}, v{r+1}, s14")
    a(f"ds_write_b64 v14, v[72:73] offset:32")
    OE(8, 72)
    OE(9, 73)
    a(f"ds_write_b64 v14, v[8:9] offset:{32+CV_KS}")
    EE(24, 76); OE(25, 76); EO(26, 76); FF(27, 76)
    a(f"ds_write_b64 v14, v[24:25] offset:{32+512}")
    a(f"ds_write_b64 v14, v[26:27] offset:{32+512+CV_KS}")
    for d, f in zip(range(16, 24), (EE, EO, OO, FF, EE, OO, OE, FF)):
        f(d, 78)
    a(f"ds_write_b128 v6, v[16:19] offset:{32+1024}")
    a(f"ds_write_b128 v6, v[20:23] offset:{32+1024+CV_KS}")
    a(f"""
    v_lshlrev_b32 v28, 16, v72
    s_mov_b64 exec, 1
    ds_write_b32 v6, v28 offset:{CV_KS+28}
    s_mov_b64 exec, -1
    s_branch k2_cv_e2
    """)
    a.lab("k2_cv_e1")
    for d, f in zip(range(24, 40), (EE, EE, EO, OO, OO, OO, FF, FF, EE, EE, OO, OO, OO, OE, FF, FF)):
        f(d, 80)
    a(f"ds_write_b128 v7, v[24:27] offset:{32+2048}")
    a(f"ds_write_b128 v7, v[28:31] offset:{32+2048+16}")
    a(f"ds_write_b128 v7, v[32:35] offset:{32+2048+CV_KS}")
    a(f"ds_write_b128 v7, v[36:39] offset:{32+2048+16+CV_KS}")
    a.lab("k2_cv_e2")
    AF, BF, AC = 32, 64, 96
    a(f"""
    s_lshl_b32 s13, s3, 10
    s_sub_u32 s13, {CV_BASE + CV_U + 4080}, s13
    v_sub_u32 v8, s13, v1
    v_and_b32 v13, 15, v0           ; r / c
    v_lshrrev_b32 v14, 4, v0        ; g
    v_add_u32 v15, 1, v13
    v_lshrrev_b32 v16, 1, v15
    v_lshl_add_u32 v16, v14, 2, v16
    v_lshlrev_b32 v16, 2, v16
    v_and_b32 v15, 1, v15           ; r even
    v_mul_u32_u24 v15, {CV_KS}, v15
    s_lshl_b32 s13, s23, 8
    s_add_u32 s13, s13, s12
    v_add3_u32 v4, v15, v16, s13
    v_add_u32 v5, 1024, v4
    v_add_u32 v6, 2048, v4
    v_add_u32 v7, 3072, v4
    v_lshlrev_b32 v15, 5, v13
    v_lshlrev_b32 v16, 4, v14
    v_sub_u32 v12, v16, v15
    s_add_u32 s13, s13, {CV_U + 480}
    v_add_u32 v12, s13, v12
    v_lshlrev_b32 v13, 15, v13
    v_lshl_add_u32 v13, v14, 13, v13
    s_lshl_b32 s11, s5, 2
    s_add_u32 s11, s11, s3
    s_lshl_b32 s11, s11, 12
    v_lshlrev_b32 v9, 6, v0
    s_waitcnt vmcnt(0)
    buffer_load_dword v10, v9, s[48:51], s11 offen
    """)
    dbg_ts(a, 1)
    for d in range(4):
        a(f"v_perm_b32 v{16+d}, v{UR+6-2*d}, v{UR+7-2*d}, s29")
    for d in range(4):
        a(f"v_perm_b32 v{20+d}, v{UR+6-2*d}, v{UR+7-2*d}, s30")
    a(f"""
    ds_write_b128 v8, v[16:19]
    ds_write_b128 v8, v[20:23] offset:{CV_CH}
    s_waitcnt lgkmcnt(0)
    """)
    bump(8)
    poll(8, "k2_pc", E("K2_CPRIO", 0))
    dbg_ts(a, 2)
    if E("X_NOCONV", 0):
        a("s_branch k2_cv_out")
    PACE = E("K2_PACE", -1)
    for it in range(4):
        for m in range(8):
            base = 4 + m // 2
            o = 128 * (m & 1) + 16 * it
            a(f"ds_read2_b32 {v(AF+4*m,2)}, v{base} offset0:{o} offset1:{o+1}")
            a(f"ds_read2_b32 {v(AF+4*m+2,2)}, v{base} offset0:{o+2} offset1:{o+3}")
            a(f"ds_read_b128 {v(BF+4*m,4)}, v12 offset:{512*(7-m)+64*it}")
        for t in range(8):
            a(f"s_waitcnt lgkmcnt({min(15, 3*(7-t))})")
            prs = [(m, kk) for m in range(t + 1) for kk in range(t + 1) if max(m, kk) == t and m + kk <= 7]
            prs.sort(key=lambda x: (x[0] < x[1], x[0] + x[1]))
            for m, kk in prs:
                d = v(AC + 4 * (m + kk), 4)
                first = it == 0 and (m, kk) == min([(x, m + kk - x) for x in range(m + kk + 1)], key=lambda y: (max(y), y[0] < y[1]))
                a(f"v_mfma_f32_16x16x32_bf16 {d}, {v(AF+4*m,4)}, {v(BF+4*kk,4)}, {'0' if first else d}")
                if PACE >= 0:
                    a(f"s_nop {PACE}")
    dbg_ts(a, 3)
    bump(12)
    a(f"""
    v_add_u32 v4, {CV_BASE}, v1
    s_lshl_b32 s8, s3, 20
    s_lshl_b32 s9, s6, 1
    s_add_u32 s8, s8, s9
    s_add_u32 s9, s8, {256*2048}
    s_add_u32 s10, s8, 4096
    s_add_u32 s11, s9, 4096
    """)
    poll(12, "k2_pd", E("K2_CP0", 2))
    a(f"""
    s_cmp_eq_u32 s3, 1
    s_cbranch_scc1 k2_cx1
    s_cmp_eq_u32 s3, 2
    s_cbranch_scc1 k2_cx2
    s_cmp_eq_u32 s3, 3
    s_cbranch_scc1 k2_cx3
    """)
    for w in range(4):
        a.lab(f"k2_cx{w}")
        for o in range(4):
            if o == w:
                continue
            k = w if w < o else w - 1
            a(f"ds_write_b128 v4, {v(AC+8*o,4)} offset:{(3*o+k)*2048}")
            a(f"ds_write_b128 v4, {v(AC+8*o+4,4)} offset:{(3*o+k)*2048+1024}")
        a("s_waitcnt lgkmcnt(0)")
        bump(16)
        poll(16, f"k2_pe{w}", E("K2_CP0", 2))
        regs = {w: AC + 8 * w}
        for sw in range(4):
            if sw == w:
                continue
            k = sw if sw < w else sw - 1
            regs[sw] = 32 + 8 * k
            a(f"ds_read_b128 {v(32+8*k,4)}, v4 offset:{(3*w+k)*2048}")
            a(f"ds_read_b128 {v(36+8*k,4)}, v4 offset:{(3*w+k)*2048+1024}")
        a("s_waitcnt lgkmcnt(0)")
        for ch in range(2):
            for jj in range(0, 8, 2):
                a(f"v_pk_add_f32 {v(64+8*ch+jj,2)}, {v(regs[ch]+jj,2)}, {v(regs[ch+2]+jj,2)}")
        if w < 3:
            a("s_branch k2_cv_out")
    a.lab("k2_cv_out")
    dbg_ts(a, 4)
    for jj in range(8):
        a(f"v_cvt_pk_bf16_f32 v{16+jj}, v{64+jj}, v{72+jj}")
    for cb in range(2):
        for jj in range(4):
            so = 8 + cb + 2 * (jj // 2)
            a(f"buffer_store_dword v{16+4*cb+jj}, v13, s[52:55], s{so} offen offset:{(jj%2)*2048}")
    dbg_end(a, 1)
    a.lab("k2_end")
    a("s_endpgm")
    return a, desc("k2_kernel", 128)


K3_LDS = 131072


def gen_k3():
    a = Asm()
    head(a, "k3_kernel")
    a(f"""
    s_cmp_ge_u32 s2, 256
    s_cbranch_scc1 k3_end
    """)
    dbg_start(a)
    a(f"""
    s_load_dwordx2 s[40:41], s[0:1], 112
    s_load_dwordx4 s[16:19], s[0:1], 88
    v_lshrrev_b32 v1, 6, v0
    v_and_b32 v0, 63, v0
    s_and_b32 s4, s2, 7
    v_readfirstlane_b32 s3, v1
    v_readfirstlane_b32 s94, v1
    s_lshr_b32 s5, s2, 3
    v_lshlrev_b32 v1, 4, v0
    s_lshl_b32 s6, s4, 2
    s_lshr_b32 s7, s5, 3
    s_add_u32 s6, s6, s7            ; rt
    s_and_b32 s7, s5, 7             ; ct
    s_and_b32 s10, s3, 1
    s_bfe_u32 s11, s3, 0x10001
    s_cmp_ge_u32 s3, 4
    s_cbranch_scc1 k3_mm
    s_lshl_b32 s12, s3, 11
    s_lshl_b32 s8, s6, 16
    s_lshl_b32 s9, s11, 15
    s_add_u32 s8, s8, s9
    s_lshl_b32 s9, s10, 11
    s_add_u32 s8, s8, s9
    s_add_u32 s8, s8, {OI}          ; O base
    v_lshrrev_b32 v2, 3, v0         ; row
    v_and_b32 v3, 7, v0
    v_bfe_u32 v4, v0, 4, 1
    v_lshlrev_b32 v4, 2, v4
    v_xor_b32 v3, v3, v4
    v_lshlrev_b32 v2, 10, v2
    v_lshl_add_u32 v2, v3, 4, v2
    v_add_u32 v3, {8192-1024}, v2
    s_lshl_b32 s9, s7, 7
    s_lshl_b32 s13, s3, 14
    s_add_u32 s9, s9, s13
    s_and_b32 s60, s7, {E("K3_ROT", 0)}
    s_mov_b32 s46, {hex(WS_BYTES)}
    s_mov_b32 s47, 0x00020000
    s_mov_b32 s50, {hex(512*512*2)}
    s_mov_b32 s51, 0x00020000
    s_waitcnt lgkmcnt(0)
    s_mov_b32 s44, s40
    s_and_b32 s45, s41, 0xffff
    s_mov_b32 s48, s16
    s_and_b32 s49, s17, 0xffff
    """)

    def chunk(c):
        a(f"""
        s_add_u32 m0, s12, {c*16384}
        s_lshl_b32 s14, s60, 12
        s_add_u32 s14, s14, s8
        buffer_load_dwordx4 v1, s[44:47], s14 offen lds
        buffer_load_dwordx4 v1, s[44:47], s14 offen offset:1024 lds
        s_add_u32 m0, s12, {c*16384 + 8192}
        s_lshl_b32 s14, s60, 16
        s_add_u32 s14, s14, s9
        buffer_load_dwordx4 v2, s[48:51], s14 offen lds
        buffer_load_dwordx4 v3, s[48:51], s14 offen offset:1024 lds
        s_add_u32 s60, s60, 1
        s_and_b32 s60, s60, 7
        """)

    LA = E("K3_LA", 4)
    for c in range(LA):
        chunk(c)
    dbg_ts(a, 0)
    for b in range(8):
        a(f"s_waitcnt vmcnt({4*(min(8, b+LA) - b - 1)})")
        a("s_barrier")
        if b + LA < 8:
            chunk(b + LA)
    dbg_end(a, 2)
    a("s_endpgm")

    a.lab("k3_mm")
    a(f"""
    s_lshl_b32 s12, s10, 12
    v_add_u32 v2, s12, v1
    v_lshrrev_b32 v5, 5, v0         ; h
    v_bfe_u32 v3, v0, 2, 2
    v_lshl_add_u32 v3, v5, 2, v3    ; row = 4h + (i>>2)
    v_lshlrev_b32 v3, 7, v3
    v_bfe_u32 v4, v0, 3, 1
    v_xor_b32 v4, s11, v4
    v_lshl_add_u32 v3, v4, 6, v3
    v_and_b32 v4, 1, v0
    v_lshl_add_u32 v3, v4, 5, v3    ; + 16*(c&1) cols
    v_bfe_u32 v4, v0, 4, 1
    v_lshl_add_u32 v3, v4, 4, v3    ; + 8G cols
    v_bfe_u32 v4, v0, 1, 1
    v_lshl_add_u32 v3, v4, 3, v3    ; + 4*(c>>1) cols
    v_add_u32 v3, 8192, v3
    v_add_u32 v6, 65536, v2
    v_add_u32 v7, 65536, v3
    s_lshl_b32 s12, s6, 1
    s_add_u32 s12, s12, s10
    s_lshl_b32 s12, s12, 16         ; (2rt+qh)*32*2048
    s_lshl_b32 s13, s7, 1
    s_add_u32 s13, s13, s11
    s_lshl_b32 s13, s13, 6
    s_add_u32 s12, s12, s13
    s_add_u32 s12, s12, 1024
    s_add_u32 s13, s12, {16*2048}
    s_lshl_b32 s14, s3, 12
    v_and_b32 v4, 31, v0
    v_mul_u32_u24 v4, 80, v4
    v_lshl_add_u32 v4, v5, 5, v4
    v_add_u32 v4, s14, v4
    v_lshrrev_b32 v5, 2, v0
    v_and_b32 v9, 3, v0
    v_lshlrev_b32 v9, 4, v9
    v_lshl_add_u32 v8, v5, 11, v9
    v_mul_u32_u24 v5, 80, v5
    v_add3_u32 v5, v5, v9, s14
    s_waitcnt lgkmcnt(0)
    """)
    srd(a, 52, 18, 2048 * 1024 * 2)
    if DBG:
        srd(a, 44, 40, WS_BYTES)
    D = 80
    for c in range(8):
        a("s_barrier")
        if c in (0, 4, 7):
            dbg_ts(a, {0: 1, 4: 2, 7: 3}[c])
        F = 16 + 32 * (c % 2)
        ob, wb = (2, 3) if c < 4 else (6, 7)
        so = (c % 4) * 16384
        for i in range(4):
            a(f"ds_read_b128 {v(F+8*i,4)}, v{ob} offset:{so + i*1024}")
            a(f"ds_read_b64_tr_b16 {v(F+8*i+4,2)}, v{wb} offset:{so + i*2048}")
            a(f"ds_read_b64_tr_b16 {v(F+8*i+6,2)}, v{wb} offset:{so + i*2048 + 1024}")
        for i in range(4):
            a(f"s_waitcnt lgkmcnt({9-3*i})")
            cc = "0" if (c == 0 and i == 0) else v(D, 16)
            a(f"v_mfma_f32_32x32x16_bf16 {v(D,16)}, {v(F+8*i+4,4)}, {v(F+8*i,4)}, {cc}")
    a("s_nop 11")
    dbg_ts(a, 4)
    for j in range(4):
        a(f"v_cvt_pk_bf16_f32 v{16+j}, v{D+2*j}, v{D+2*j+1}")
    a("ds_write_b128 v4, v[16:19]")
    for j in range(4, 8):
        a(f"v_cvt_pk_bf16_f32 v{16+j}, v{D+2*j}, v{D+2*j+1}")
    a(f"""
    ds_write_b128 v4, v[20:23] offset:16
    ds_read_b128 v[24:27], v5
    ds_read_b128 v[28:31], v5 offset:{16*80}
    s_waitcnt lgkmcnt(1)
    buffer_store_dwordx4 v[24:27], v8, s[52:55], s12 offen
    s_waitcnt lgkmcnt(0)
    buffer_store_dwordx4 v[28:31], v8, s[52:55], s13 offen
    """)
    dbg_end(a, 2)
    a.lab("k3_end")
    a("s_endpgm")
    return a, desc("k3_kernel", 96)


def build():
    ks = [gen_k1(), gen_k2(), gen_k3()]
    hdr = [
        "; generated by work/gen.py",
        f"; @launch kernel=k1_kernel grid=(256,1,1) block=(768,1,1) lds={K1_LDS}",
        f"; @launch kernel=k2_kernel grid=(256,1,1) block=(768,1,1) lds={K2_LDS}",
        f"; @launch kernel=k3_kernel grid=(256,1,1) block=(512,1,1) lds={K3_LDS}",
    ]
    out = "\n".join(hdr) + "\n"
    out += '.amdgcn_target "amdgcn-amd-amdhsa--gfx950"\n.text\n'
    for a, d in ks:
        out += a.text()
    out += '.section .rodata,"a"\n'
    for a, d in ks:
        out += d
    return out


if __name__ == "__main__":
    path = sys.argv[1] if len(sys.argv) > 1 else f"cdna_kernels/{NAME}.s"
    open(path, "w").write(build())
    print("wrote", path)
```

```python
from genlib import *

E = lambda k, d: int(os.environ.get(k, str(d)))

K1_XB = 0
K1_RING = 8192
K1_LDS = K1_RING + 9 * 16384
K1_UNITS = [[('x', 0), (0, 0)], [(1, 0), (2, 0)], [('x', 1), (0, 1)], [(1, 1), (2, 1)],
            [(0, 2), ('x', 2)], [('x', 3), (0, 3)]]
K1_UNITS += [[[(1, 2)], [(1, 3)], [(2, 2)], [(2, 3)]], [[(1, 2), (1, 3)], [(2, 2)], [(2, 3)]],
             [[(1, 2), (1, 3)], [(2, 2), (2, 3)]]][E("K1_TAIL", 1)]
K1_NB = len(K1_UNITS)
K1_PIECES = [(pc, u) for u, ps in enumerate(K1_UNITS) for pc in ps]
K1_AREA = {pc: i % 9 for i, (pc, u) in enumerate(K1_PIECES)}
K1_ISSUE = {-1: range(E("K1_LA", 4))}
_n = E("K1_LA", 4)
for _b in range(K1_NB):
    _lim = {0: 9, 1: 9, 2: 12, 3: 13}.get(_b, 16)
    K1_ISSUE[_b] = list(range(_n, min(_n + 2, _lim)))
    _n += len(K1_ISSUE[_b])
    assert all(K1_PIECES[i][1] > _b for i in K1_ISSUE[_b])
assert _n == 16
K1_STEPS = [(pc[0], pc[1], k8, u) for u, ps in enumerate(K1_UNITS) for pc in ps if pc[0] != 'x' for k8 in range(8)]
K1_UNIT = [min(g for g, st in enumerate(K1_STEPS) if st[3] == u) for u in range(K1_NB)]
K1_LAST = [max(g for g, st in enumerate(K1_STEPS) if st[0] == sg) for sg in range(3)]


def cost(line):
    t = line.strip()
    if t.startswith(("v_exp", "v_sin", "v_cos", "v_rcp", "v_mfma")):
        return 8
    if t.startswith(("v_cvt_pk", "v_fma_", "v_pk")) or "_dpp" in t:
        return 5
    return 4


def splice(lines, marks):
    out, acc, k = [], 0, 0
    nbar = len(marks)
    for l in lines:
        if k < nbar and acc >= marks[k]:
            if DBG and k == 0:
                out.append("    s_memtime s[66:67]")
            out.append("    s_barrier")
            k += 1
        out.append(l)
        acc += cost(l)
    assert k >= 1
    return out


def gen_k1():
    a = Asm()
    head(a, "k1_kernel")
    a(f"""
    s_cmp_ge_u32 s2, 256
    s_cbranch_scc1 k1_end
    """)
    dbg_start(a)
    a(f"""
    s_load_dwordx8 s[32:39], s[0:1], 64
    s_load_dwordx16 s[16:31], s[0:1], 0
    s_load_dwordx2 s[40:41], s[0:1], 112
    v_lshrrev_b32 v1, 6, v0
    v_and_b32 v0, 63, v0
    s_and_b32 s4, s2, 7             ; xcd
    v_readfirstlane_b32 s3, v1
    v_readfirstlane_b32 s94, v1
    s_lshr_b32 s5, s2, 3            ; idx
    s_and_b32 s15, s3, 3
    s_lshr_b32 s14, s3, 2
    s_cmp_eq_u32 s14, 1
    s_cbranch_scc1 k1_kgen
    s_and_b32 s6, s4, 1
    s_lshl_b32 s6, s6, 2
    s_and_b32 s7, s5, 3
    s_add_u32 s6, s6, s7
    s_lshr_b32 s7, s4, 1
    s_lshl_b32 s7, s7, 3
    s_lshr_b32 s8, s5, 2
    s_add_u32 s7, s7, s8
    s_and_b32 s12, s15, 1           ; rb
    s_lshr_b32 s13, s15, 1          ; hb
    s_lshl_b32 s8, s7, 1
    s_add_u32 s8, s8, s12
    s_lshl_b32 s12, s12, 12
    v_lshrrev_b32 v13, 5, v0        ; h
    s_cmp_eq_u32 s14, 0
    s_cbranch_scc1 k1_load
    """)

    DP = E("K1_DP", 4)
    XB0, WB0 = 8, 16
    XF, WF = 20, 36
    XR = 96
    ACC = [64, 80, 20]
    assert DP <= 6
    a(f"""
    v_and_b32 v7, 31, v0            ; s
    v_bfe_u32 v14, v0, 1, 3         ; (s>>1)&7
    v_xor_b32 v14, v14, v13         ; h ^ f
    v_lshlrev_b32 v15, 7, v7
    s_add_u32 s12, s12, {K1_RING}
    v_add_u32 v15, s12, v15         ; rb*4096 + s*128
    v_lshl_add_u32 v8, v14, 4, v15
    v_xor_b32 v9, 32, v8
    v_xor_b32 v10, 64, v8
    v_xor_b32 v11, 96, v8
    v_lshlrev_b32 v16, 10, v13      ; h*1024
    v_bfe_u32 v14, v0, 2, 2         ; r
    v_lshl_add_u32 v16, v14, 7, v16
    v_bfe_u32 v14, v0, 3, 1         ; r>>1
    v_xor_b32 v14, s13, v14
    v_lshl_add_u32 v16, v14, 6, v16
    v_bfe_u32 v14, v0, 4, 1
    v_lshl_add_u32 v16, v14, 5, v16
    v_and_b32 v14, 3, v0
    v_lshl_add_u32 v16, v14, 3, v16
    v_add_u32 v16, {K1_RING}, v16
    v_add_u32 v12, 65536, v8
    v_add_u32 v13, 65536, v9
    v_add_u32 v14, 65536, v10
    v_add_u32 v15, 65536, v11
    v_add_u32 v17, 65536, v16
    v_add_u32 v18, 131072, v16
    s_lshl_b32 s6, s6, 1
    s_add_u32 s6, s6, s13
    """)

    def reads(g):
        seg, p, k8, u = K1_STEPS[g]
        L = []
        if seg == 0:
            ar = K1_AREA[('x', p)]
            L.append(f"ds_read_b128 {v(XR+32*(p==3)+4*k8,4)}, v{XB0 + 4*(ar//4) + k8%4} offset:{(ar%4)*16384 + (k8//4)*8192}")
        ar = K1_AREA[(seg, p)]
        for half in range(2):
            L.append(f"ds_read_b64_tr_b16 {v(WF+4*(g%(DP+1))+2*half,2)}, v{WB0 + ar//4} offset:{(ar%4)*16384 + k8*2048 + half*512}")
        return L

    def mfma(g):
        seg, p, k8, u = K1_STEPS[g]
        x, w, d = v(XR + 32 * (p == 3) + 4 * k8, 4), v(WF + 4 * (g % (DP + 1)), 4), v(ACC[seg], 16)
        c = "0" if p == 0 and k8 == 0 else d
        return f"v_mfma_f32_32x32x16_bf16 {d}, {w}, {x}, {c}" if seg < 2 else f"v_mfma_f32_32x32x16_bf16 {d}, {x}, {w}, {c}"

    a(f"""
    s_lshl_b32 s10, s6, 17          ; fg*2*65536
    s_lshl_b32 s11, s8, 10
    s_add_u32 s10, s10, s11
    s_add_u32 s10, s10, {QI}        ; Q head A
    s_add_u32 s11, s10, 65536       ; Q head B
    s_lshl_b32 s12, s6, 18          ; fg*2*131072
    s_lshl_b32 s13, s8, 11
    s_add_u32 s12, s12, s13
    s_add_u32 s12, s12, {KVI}
    s_add_u32 s13, s12, 131072
    v_lshlrev_b32 v1, 4, v0         ; lane*16
    v_and_b32 v2, 0x33, v0
    v_bfe_u32 v3, v0, 2, 1
    v_lshl_or_b32 v2, v3, 3, v2
    v_bfe_u32 v3, v0, 3, 1
    v_lshl_or_b32 v2, v3, 2, v2
    v_lshlrev_b32 v2, 4, v2         ; K voffset
    v_and_b32 v3, 15, v0
    v_lshlrev_b32 v3, 4, v3
    v_lshrrev_b32 v4, 5, v0
    v_lshl_add_u32 v3, v4, 8, v3
    v_bfe_u32 v4, v0, 4, 1
    v_lshl_add_u32 v3, v4, 17, v3   ; V voffset
    s_mov_b32 s14, {fl(0.25*LOG2E)}
    s_mov_b32 s15, {fl(0.25*LOG2E)}
    """)
    a("s_waitcnt lgkmcnt(0)")
    srd(a, 44, 40, WS_BYTES)
    if E("K1_GPRIO", 2):
        a(f"s_setprio {E('K1_GPRIO', 2)}")

    def epi(seg):
        L = []
        A = ACC[seg]
        f = STFS[seg]
        for j in range(8):
            if seg == 0:
                L.append(f"v_pk_mul_f32 {v(A+2*j,2)}, {v(A+2*j,2)}, s[14:15]")
            L.append(f"v_cvt_pk_bf16_f32 v{A+j}, v{A+2*j}, v{A+2*j+1}")
            if j == 3:
                L.append({0: f"buffer_store_dwordx4 {v(A,4)}, v1, s[44:47], s10 offen{f}",
                          1: f"buffer_store_dwordx4 {v(A,4)}, v2, s[44:47], s12 offen{f}",
                          2: f"buffer_store_dwordx4 {v(A,4)}, v3, s[44:47], s12 offen offset:1024{f}"}[seg])
            if j == 7:
                L.append({0: f"buffer_store_dwordx4 {v(A+4,4)}, v1, s[44:47], s11 offen{f}",
                          1: f"buffer_store_dwordx4 {v(A+4,4)}, v2, s[44:47], s13 offen{f}",
                          2: f"buffer_store_dwordx4 {v(A+4,4)}, v3, s[44:47], s12 offen offset:1536{f}"}[seg])
        return L

    dbg_ts(a, 0)
    a("s_barrier")
    dbg_ts(a, 1)
    cnt = {}
    tot = 0
    for g in range(DP):
        for l in reads(g):
            a(l)
        tot += len(reads(g))
        cnt[g] = tot
    fill = []
    for g in range(96):
        a(f"s_waitcnt lgkmcnt({min(15, tot - cnt[g])})")
        a(mfma(g))
        n = g + DP
        if n < 96:
            if n in K1_UNIT:
                u = K1_UNIT.index(n)
                a("s_barrier")
                if u in (2, 4, 6, 8) and u < K1_NB:
                    dbg_ts(a, 1 + u // 2)
            for l in reads(n):
                a(l)
            tot += len(reads(n))
            cnt[n] = tot
        if g - 2 in K1_LAST:
            fill = fill + epi(K1_LAST.index(g - 2))
        nf = E("K1_NF", 2)
        for l in fill[:nf]:
            a(l)
        fill = fill[nf:]
    for l in fill:
        a(l)
    dbg_ts(a, 6)
    a("s_nop 11")
    if not DBG:
        a("s_nop 1")
    for l in epi(2):
        a(l)
    dbg_end(a, 0)
    a("s_endpgm")

    a.lab("k1_load")
    a(f"""
    s_lshl_b32 s9, s8, 15
    s_lshl_b32 s10, s13, 14
    s_add_u32 s9, s9, s10
    s_lshl_b32 s10, s13, 11
    s_add_u32 s12, s12, s10
    v_lshrrev_b32 v1, 3, v0         ; lane>>3
    v_and_b32 v7, 7, v0             ; lane&7
    v_lshrrev_b32 v8, 4, v0         ; lane>>4
    v_xor_b32 v4, v7, v8
    v_lshlrev_b32 v5, 10, v1
    v_lshl_add_u32 v2, v4, 4, v5    ; q even
    v_xor_b32 v3, 64, v2            ; chunk^4
    v_add_u32 v3, 7168, v3          ; q odd
    s_mul_i32 s10, s15, {32*3072}
    s_lshl_b32 s11, s6, 7
    s_add_u32 s10, s10, s11
    s_lshl_b32 s13, s15, 12
    v_and_b32 v8, 1, v8
    v_lshlrev_b32 v8, 2, v8
    v_xor_b32 v7, v7, v8
    v_mul_u32_u24 v8, 3072, v1
    v_lshl_add_u32 v10, v7, 4, v8
    v_add_u32 v10, s10, v10         ; W voffsets v10..13
    v_add_u32 v11, {8*3072-1024}, v10
    v_add_u32 v12, {2*(8*3072-1024)}, v10
    v_add_u32 v13, {3*(8*3072-1024)}, v10
    {["s_add_u32 s60, s6, s7", "s_mov_b32 s60, s7", "s_mov_b32 s60, s6", "s_lshr_b32 s60, s7, 1"][E("K1_RM", 0)]}
    """)
    for p in range(4):
        a(f"""
        s_and_b32 s60, s60, {E("K1_ROT", 3)}
        s_lshl_b32 s{56+p}, s60, 8
        s_add_u32 s{56+p}, s{56+p}, s9
        s_mul_i32 s{96+p}, s60, {128*3072}
        s_add_u32 s60, s60, 1
        """.replace("s_and_b32 s60, s60, 0", "s_and_b32 s60, s60, %d" % (0 if p == 0 else 3)))
    a(f"""
    s_mov_b32 s50, {hex(2048*512*2)}
    s_mov_b32 s51, 0x00020000
    s_mov_b32 s54, {hex(512*1536*2)}
    s_mov_b32 s55, 0x00020000
    s_waitcnt lgkmcnt(0)
    s_mov_b32 s48, s34
    s_and_b32 s49, s35, 0xffff
    s_mov_b32 s52, s36
    s_and_b32 s53, s37, 0xffff
    """)
    q = []

    def dma_x(p):
        base = K1_RING + K1_AREA[('x', p)] * 16384
        a(f"""
        s_add_u32 m0, s12, {base}
        s_add_u32 s14, s{56+p}, 128
        buffer_load_dwordx4 v2, s[48:51], s{56+p} offen lds
        buffer_load_dwordx4 v3, s[48:51], s{56+p} offen offset:1024 lds
        s_add_u32 m0, s12, {base + 8192}
        s_nop 0
        buffer_load_dwordx4 v2, s[48:51], s14 offen lds
        buffer_load_dwordx4 v3, s[48:51], s14 offen offset:1024 lds
        """)

    def dma_w(seg, p):
        base = K1_RING + K1_AREA[(seg, p)] * 16384
        a(f"""
        s_add_u32 m0, s13, {base}
        s_add_u32 s14, s{96 + p}, {seg*1024}
        """)
        for i in range(4):
            a(f"buffer_load_dwordx4 v{10+i}, s[52:55], s14 offen offset:{i*1024} lds")

    def piece(i):
        pc, u = K1_PIECES[i]
        if pc[0] == 'x':
            dma_x(pc[1])
        else:
            dma_w(*pc)
        q.extend([u] * 4)

    def wait_for(tag):
        last = max(i for i, t in enumerate(q) if t == tag)
        a(f"s_waitcnt vmcnt({len(q) - 1 - last})")

    for i in K1_ISSUE[-1]:
        piece(i)
    if DBG:
        srd(a, 44, 40, WS_BYTES)
    for b in range(K1_NB):
        wait_for(b)
        if b < 8:
            dbg_ts(a, b)
        a("s_barrier")
        for i in K1_ISSUE.get(b, []):
            piece(i)
    dbg_end(a, 0)
    a("s_endpgm")

    a.lab("k1_kgen")
    XA, XY, XC, XAD = 64, 65, 66, 67
    SA, SB, SC, SD, SE = 68, 69, 70, 71, 72
    a(f"""
    s_setprio 3
    s_lshl_b32 s6, s4, 6
    s_lshl_b32 s7, s5, 1
    s_add_u32 s6, s6, s7
    s_lshr_b32 s7, s15, 1
    s_add_u32 s6, s6, s7            ; channel d
    s_lshl_b32 s8, s6, 8
    s_and_b32 s9, s15, 1
    s_lshl_b32 s9, s9, 7
    s_add_u32 s8, s8, s9            ; d*256 + half*128
    s_lshl_b32 s9, s6, 1
    v_lshl_add_u32 v1, v0, 1, s8
    v_mov_b32 v10, s9
    s_lshl_b32 s12, s7, 12
    s_add_u32 s12, s12, {K1_XB}
    v_lshl_add_u32 v{XAD}, v0, 4, s12
    """)
    for i in range(2, 10):
        a(f"v_mov_b32 v{i}, 0")
    a(f"""
    ds_write_b32 v{XAD}, v2 offset:3072
    s_mul_i32 s11, s6, {KD_PITCH}
    s_add_u32 s11, s11, {KD}
    s_mov_b32 s13, {fl(LOG2E)}
    s_mov_b32 s14, {fl(1.0/(2*math.pi))}
    v_and_b32 v20, 15, v0           ; i / j
    v_lshrrev_b32 v21, 4, v0        ; g / G
    v_and_b32 v22, 1, v0
    v_cvt_f32_u32 v{XA}, v20
    v_mul_f32 v{XY}, 16.0, v{XA}
    v_and_b32 v23, 3, v0
    v_lshlrev_b32 v23, 2, v23
    v_lshrrev_b32 v24, 2, v20
    v_lshl_add_u32 v23, v24, 8, v23
    v_add_u32 v23, 512, v23         ; i<8 : 512 + 4(i&3) + 256(i>>2)
    v_lshlrev_b32 v24, 3, v22
    v_lshrrev_b32 v25, 1, v20
    v_lshl_add_u32 v24, v25, 8, v24 ; i>=8: 8(i&1) + 256(i>>1)
    v_cmp_gt_u32 vcc, 8, v20
    v_sub_u32 v{SE}, 63, v0
    v_cndmask_b32 v23, v24, v23, vcc
    v_cvt_f32_u32 v{XC}, v23
    v_lshlrev_b32 v{SE}, 2, v{SE}
    v_lshlrev_b32 v{SB}, 5, v20
    v_lshl_add_u32 v{SB}, v21, 3, v{SB}     ; seg0: 32j + 8G
    v_lshrrev_b32 v24, 5, v0                ; G>>1
    v_sub_u32 v25, 3, v24
    v_lshlrev_b32 v25, v25, v20
    v_lshl_add_u32 v{SC}, v21, 7, v25       ; seg2/3 A - 768
    v_mul_u32_u24 v24, 60, v24
    v_add3_u32 v{SD}, v24, v{SC}, 4         ; B - 768
    v_lshrrev_b32 v{SA}, 1, v{SB}           ; seg1: 16j + 4G
    v_cmp_eq_u32 vcc, 0, v0
    s_waitcnt lgkmcnt(0)
    global_load_short_d16_hi v8, v10, s[30:31]
    global_load_short_d16_hi v2, v1, s[18:19]
    global_load_short_d16_hi v3, v1, s[20:21]
    global_load_short_d16_hi v4, v1, s[22:23]
    global_load_short_d16_hi v5, v1, s[24:25]
    global_load_short_d16_hi v6, v1, s[26:27]
    global_load_short_d16_hi v7, v1, s[28:29]
    global_load_short_d16_hi v9, v10, s[32:33]
    """)
    srd(a, 44, 40, WS_BYTES)
    a(f"s_setprio {E('KG_PRIO', 2)}")
    PP, PW, WR, WI, CR, CI, KL = 12, 13, 14, 15, 16, 17, 18
    DPP = lambda j: f"row_newbcast:{j} row_mask:0xf bank_mask:0xf"
    k = Asm()
    k(f"""
    s_waitcnt vmcnt(7)
    v_mul_f32 v8, s13, v8
    v_exp_f32 v8, v8
    s_nop 0
    v_cvt_pk_bf16_f32 v8, v8, v8
    v_lshlrev_b32 v8, 16, v8                ; dt
    s_waitcnt vmcnt(5)
    v_mul_f32 v2, v8, v2
    v_mul_f32 v3, v8, v3
    v_mul_f32 v{PP}, s13, v2                ; p
    v_mul_f32 v{PW}, s14, v3                ; w
    v_rndne_f32 v3, v{PW}
    v_sub_f32 v{PW}, v{PW}, v3
    v_mul_f32 v20, {fl(256.0)}, v{PP}
    v_mul_f32 v21, {fl(256.0)}, v{PW}
    v_mul_f32 v22, {fl(2048.0)}, v{PP}
    v_mul_f32 v23, {fl(2048.0)}, v{PW}
    v_exp_f32 v20, v20
    v_exp_f32 v22, v22
    v_fract_f32 v23, v23
    v_cos_f32 v{CR}, v21
    v_sin_f32 v{CI}, v21
    v_cos_f32 v18, v23
    v_sin_f32 v19, v23
    s_waitcnt vmcnt(1)
    {"s_memtime s[64:65]" if DBG else ""}
    v_mul_f32 v4, v8, v4
    v_mul_f32 v5, v8, v5
    v_mul_f32 v{WR}, v6, v4
    v_mul_f32_e64 v{WI}, -v6, v5
    v_fma_f32 v{WR}, -v7, v5, v{WR}         ; Re W
    v_fma_f32 v{WI}, -v7, v4, v{WI}         ; -Im W
    v_mul_f32 v{CR}, v20, v{CR}
    v_mul_f32 v{CI}, v20, v{CI}
    v_mul_f32 v18, v{WR}, v18
    v_fmac_f32 v18, v{WI}, v19
    v_mul_f32 v{KL}, v22, v18               ; Re(W g^2048)
    """)
    red = [f"v_add_f32_dpp v{KL}, v{KL}, v{KL} {m}" for m in (
        "row_ror:1 row_mask:0xf bank_mask:0xf", "row_ror:2 row_mask:0xf bank_mask:0xf",
        "row_ror:4 row_mask:0xf bank_mask:0xf", "row_ror:8 row_mask:0xf bank_mask:0xf",
        "row_bcast:15 row_mask:0xa bank_mask:0xf", "row_bcast:31 row_mask:0xc bank_mask:0xf")]
    D0, D1, D2 = 20, 24, 28
    FX0, FX1, FX2, FY = 32, 36, 40, 44
    T = lambda q: 48 + q
    U = lambda q: 52 + q
    C = lambda q: 56 + q
    S = lambda q: 60 + q
    A_ = lambda q: 76 + q
    B_ = lambda q: 80 + q
    for ks in range(4):
        J = lambda q: 4 * ks + q

        def polar(X, fract):
            for q in range(4):
                k(f"v_mul_f32_dpp v{T(q)}, v{PP}, v{X} {DPP(J(q))}")
                k(f"v_mul_f32_dpp v{U(q)}, v{PW}, v{X} {DPP(J(q))}")
            if red:
                k(red.pop(0))
            for q in range(4):
                k(f"v_exp_f32 v{T(q)}, v{T(q)}")
                if fract:
                    k(f"v_fract_f32 v{U(q)}, v{U(q)}")
            for q in range(4):
                k(f"v_cos_f32 v{C(q)}, v{U(q)}")
                k(f"v_sin_f32 v{S(q)}, v{U(q)}")

        def mf(D, F):
            c = "0" if ks == 0 else v(D, 4)
            k(f"v_mfma_f32_16x16x32_bf16 {v(D,4)}, {v(F,4)}, {v(FY,4)}, {c}")

        polar(XY, False)
        for q in range(4):
            k(f"v_mul_f32_dpp v{A_(q)}, v{WR}, v{T(q)} {DPP(J(q))}")
            k(f"v_mul_f32_dpp v{B_(q)}, v{WI}, v{T(q)} {DPP(J(q))}")
        for q in range(4):
            k(f"v_mul_f32 v{T(q)}, v{A_(q)}, v{C(q)}")
            k(f"v_mul_f32 v{U(q)}, v{B_(q)}, v{C(q)}")
        for q in range(4):
            k(f"v_fmac_f32 v{T(q)}, v{B_(q)}, v{S(q)}")
            k(f"v_fma_f32 v{U(q)}, -v{A_(q)}, v{S(q)}, v{U(q)}")
        for q in range(4):
            k(f"v_cvt_pk_bf16_f32 v{FY+q}, v{T(q)}, v{U(q)}")
        polar(XC, True)
        for q in range(4):
            k(f"v_mul_f32 v{C(q)}, v{T(q)}, v{C(q)}")
            k(f"v_mul_f32 v{S(q)}, v{T(q)}, v{S(q)}")
        for q in range(4):
            k(f"v_cvt_pk_bf16_f32 v{FX2+q}, v{C(q)}, v{S(q)}")
        polar(XA, False)
        mf(D2, FX2)
        for q in range(4):
            k(f"v_mul_f32 v{C(q)}, v{T(q)}, v{C(q)}")
            k(f"v_mul_f32 v{S(q)}, v{T(q)}, v{S(q)}")
        for q in range(4):
            k(f"v_cvt_pk_bf16_f32 v{FX0+q}, v{C(q)}, v{S(q)}")
        for q in range(4):
            k(f"v_mul_f32_dpp v{T(q)}, v{CR}, v{C(q)} {DPP(J(q))}")
            k(f"v_mul_f32_dpp v{U(q)}, v{CI}, v{C(q)} {DPP(J(q))}")
        mf(D0, FX0)
        for q in range(4):
            k(f"v_fmac_f32_dpp v{T(q)}, -v{CI}, v{S(q)} {DPP(J(q))}")
            k(f"v_fmac_f32_dpp v{U(q)}, v{CR}, v{S(q)} {DPP(J(q))}")
        for q in range(4):
            k(f"v_cvt_pk_bf16_f32 v{FX1+q}, v{T(q)}, v{U(q)}")
        k("s_nop 1")
        mf(D1, FX1)
    k("""
    s_waitcnt vmcnt(0)
    v_cndmask_b32 v9, 0, v9, vcc
    """)
    m0, sg = [int(x) for x in os.environ.get("KG_MK", "1800,310").split(",")]
    kl = splice(k.L, [m0 + sg * i for i in range(K1_NB)])
    a.L.extend(kl)
    nb = K1_NB - sum(1 for l in kl if l.strip() == "s_barrier")
    print("kgen cost", sum(cost(l) for l in k.L), "spare barriers", nb, file=sys.stderr)
    dbg_ts(a, 2)
    late = min(nb, E("KG_LATE", 0))
    for i in range(nb - late):
        a("s_barrier")
    a(f"""
    s_bitcmp1_b32 s15, 0
    s_cbranch_scc0 k1_kg_fin
    ds_write_b128 v{XAD}, {v(D2,4)} offset:2048
    ds_write_b128 v{XAD}, {v(D0,4)}
    v_mov_b32 v2, 1
    s_nop 2
    v_mov_b32 v{D1+1}, v{KL}
    ds_write_b128 v{XAD}, {v(D1,4)} offset:1024
    ds_write_b32 v{XAD}, v2 offset:3072
    """)
    for i in range(late):
        a("s_barrier")
    a("s_waitcnt lgkmcnt(0)")
    dbg_end(a, 0)
    a("s_endpgm")
    a.lab("k1_kg_fin")
    for i in range(late):
        a("s_barrier")
    a.lab("k1_kg_poll")
    a(f"""
    ds_read_b32 v2, v{XAD} offset:3072
    ds_read_b128 v[32:35], v{XAD}
    ds_read_b128 v[36:39], v{XAD} offset:1024
    ds_read_b128 v[40:43], v{XAD} offset:2048
    s_waitcnt lgkmcnt(0)
    v_readfirstlane_b32 s9, v2
    s_nop 0
    s_cmp_eq_u32 s9, 0
    s_cbranch_scc1 k1_kg_poll
    v_add_f32 v{D0}, v{D0}, v9
    v_mov_b32 v{D1+1}, v{KL}
    """)
    dbg_ts(a, 3)
    for j in range(12):
        if j != 7:
            a(f"v_add_f32 v{20+j}, v{20+j}, v{32+j}")
    a(f"""
    v_cvt_pk_bf16_f32 v12, v{D0}, v{D0+1}
    v_cvt_pk_bf16_f32 v13, v{D0+2}, v{D0+3}
    buffer_store_dwordx2 v[12:13], v{SB}, s[44:47], s11 offen{STFS[3]}
    v_cvt_pk_bf16_f32 v14, v{D1}, v{D1+2}
    v_cvt_pk_bf16_f32 v15, v{D2}, v{D2+1}
    v_cvt_pk_bf16_f32 v16, v{D2+2}, v{D2+3}
    v_cvt_pk_bf16_f32 v17, v{D1+1}, v{D1+1}
    buffer_store_dword v14, v{SA}, s[44:47], s11 offen offset:512{STFS[3]}
    buffer_store_dword v15, v{SC}, s[44:47], s11 offen offset:768{STFS[3]}
    buffer_store_dword v16, v{SD}, s[44:47], s11 offen offset:768{STFS[3]}
    buffer_store_dword v17, v{SE}, s[44:47], s11 offen offset:1280{STFS[3]}
    """)
    dbg_end(a, 0)
    a.lab("k1_end")
    a("s_endpgm")
    return a, desc("k1_kernel", 160)


STF = os.environ.get("STF", "")
if STF:
    STF = " " + STF
STFS = [(" " + x if x else "") for x in os.environ.get("STFS", "sc0 sc1,sc0 sc1,sc0 sc1,sc0 sc1").split(",")]

TP = 2080
CV_BASE = 64 * TP
CV_KS = 4160
CV_U = 8320
CV_CH = 12928
K2_FL = 163840 - 64
K2_LDS = 163840


def gen_k2():
    a = Asm()
    head(a, "k2_kernel")
    a(f"""
    s_cmp_ge_u32 s2, 256
    s_cbranch_scc1 k2_end
    """)
    dbg_start(a)
    a(f"""
    s_load_dwordx2 s[40:41], s[0:1], 112
    s_load_dwordx4 s[16:19], s[0:1], 88
    s_load_dwordx2 s[20:21], s[0:1], 0
    v_lshrrev_b32 v1, 6, v0
    v_and_b32 v0, 63, v0
    s_and_b32 s4, s2, 7
    v_readfirstlane_b32 s3, v1
    v_readfirstlane_b32 s94, v1
    s_lshr_b32 s5, s2, 3
    v_lshlrev_b32 v1, 4, v0
    s_lshl_b32 s6, s4, 2
    s_lshr_b32 s7, s5, 3
    s_add_u32 s6, s6, s7            ; head
    s_lshl_b32 s8, s6, 17
    s_add_u32 s8, s8, {KVI}
    s_mul_i32 s9, s3, {TP}
    s_lshl_b32 s10, s3, 11
    s_add_u32 s10, s10, s8
    s_mov_b32 m0, s9
    s_mov_b32 s46, {hex(WS_BYTES)}
    s_mov_b32 s47, 0x00020000
    s_cmp_ge_u32 s3, 8
    s_cbranch_scc1 k2_conv
    """)

    Q, IDX, KA, VA0, VA1 = 4, 2, 3, 28, 29
    KB = [8, 12]
    V0B = [16, 96]
    V1B = [20, 100]
    NEGM, O = 32, 80
    SB = [48, 64]
    FLV = 104
    a(f"""
    s_and_b32 s7, s5, 7
    s_lshl_b32 s7, s7, 3
    s_add_u32 s7, s7, s3            ; qt
    s_lshl_b32 s11, s6, 16
    s_lshl_b32 s12, s7, 10
    s_add_u32 s11, s11, s12
    s_add_u32 s11, s11, {QI}
    s_lshl_b32 s12, s7, 15
    s_lshl_b32 s13, s6, 10
    s_add_u32 s12, s12, s13
    s_add_u32 s12, s12, {OI}        ; O dest
    s_mov_b32 s24, 0
    v_mov_b32 v{IDX}, 0xdddddddd
    v_and_b32 v23, 15, v0
    v_lshrrev_b32 v24, 5, v0
    v_lshlrev_b32 v23, 4, v23
    v_lshl_add_u32 v30, v24, 8, v23
    v_add_u32 v30, 1024, v30
    v_add_u32 v31, 512, v30
    v_and_b32 v23, 16, v0
    v_cmp_eq_u32 vcc, 16, v23
    v_mov_b32 v24, 2064
    v_and_b32 v23, 27, v0
    v_mov_b32 v{FLV}, {K2_FL}
    v_cndmask_b32 v30, v30, v24, vcc
    v_cndmask_b32 v31, v31, v24, vcc
    v_cmp_eq_u32 vcc, 16, v23
    v_mov_b32 v24, 2048
    v_add_u32 v{KA}, s9, v1
    s_nop 0
    v_cndmask_b32 v30, v30, v24, vcc
    v_cndmask_b32 v31, v31, v24, vcc
    """)
    def zero_init():
        for j in range(4):
            a(f"v_mov_b32 v{V1B[1]+j}, 0")
        for j in range(8):
            a(f"v_mov_b32 v{SB[1]+8+j}, 0")
        for j in range(16):
            a(f"v_mov_b32 v{O+j}, 0")
    zero_init()
    if E("K2_PRIO", 1) == 1:
        a("""
        s_cmp_lt_u32 s3, 4
        s_cbranch_scc1 k2_np
        s_setprio 1
        """)
        a.lab("k2_np")
    a(f"""
    s_waitcnt lgkmcnt(0)
    s_mov_b32 s44, s40
    s_and_b32 s45, s41, 0xffff
    buffer_load_dwordx4 v1, s[44:47], s10 offen lds
    buffer_load_dwordx4 {v(Q,4)}, v1, s[44:47], s11 offen
    buffer_load_dwordx4 v1, s[44:47], s10 offen offset:1024 lds
    s_waitcnt vmcnt(1)
    ds_read_b128 {v(KB[0],4)}, v{KA}
    """)
    if DBG == 1:
        dbg_ts(a, 0)
    a(f"""
    s_waitcnt lgkmcnt(0)
    v_mfma_f32_32x32x16_bf16 {v(SB[0],16)}, {v(KB[0],4)}, {v(Q,4)}, 0
    s_nop 11
    v_max3_f32 v23, v{SB[0]}, v{SB[0]+1}, v{SB[0]+2}
    """)
    for j in range(3, 15, 2):
        a(f"v_max3_f32 v23, v23, v{SB[0]+j}, v{SB[0]+j+1}")
    a(f"v_max_f32 v23, v23, v{SB[0]+15}")
    a.lab("k2_start")
    a(f"""
    v_mov_b32 v24, v23
    v_mov_b32 v{KA}, v1
    v_mov_b32 v{VA0}, v30
    v_permlane32_swap_b32 v23, v24
    v_mov_b32 v{VA1}, v31
    s_mov_b32 s25, 0
    v_max_f32 v23, v23, v24
    """)
    a(f"v_sub_f32 v24, 0, v23")
    for j in range(0, 16, 2):
        a(f"v_pk_mov_b32 {v(NEGM+j,2)}, v[24:25], v[24:25] op_sel:[0,0]")
    a(f"""
    s_cmp_lg_u32 s24, 0
    s_cbranch_scc1 k2_nobar
    s_waitcnt vmcnt(0)
    s_barrier
    """)
    a.lab("k2_nobar")
    if DBG == 1:
        dbg_ts(a, 1)
    a(f"""
    ds_read_b128 {v(KB[0],4)}, v{KA}
    ds_read_b128 {v(KB[1],4)}, v{KA} offset:{TP}
    ds_read_b128 {v(V0B[0],4)}, v{VA0}
    ds_read_b128 {v(V1B[0],4)}, v{VA1}
    s_waitcnt lgkmcnt(3)
    v_mfma_f32_32x32x16_bf16 {v(SB[0],16)}, {v(KB[0],4)}, {v(Q,4)}, {v(NEGM,16)}
    s_nop 9
    """)
    a.lab("k2_loop")
    a(f"""
    s_bitcmp1_b32 0x0a, s25
    s_cbranch_scc1 k2_poll
    """)
    a.lab("k2_body")
    if DBG == 2:
        for k in range(7):
            a(f"s_mov_b32 s{64+2*k}, s{66+2*k}")
        a("s_memtime s[78:79]")
    U = 8
    PS = E("K2_PS", 46)
    for i in range(U):
        p, q = i % 2, (i + 1) % 2
        Sc, Sn = SB[p], SB[q]
        ex = lambda j: a(f"v_exp_f32 v{Sc+j}, v{Sc+j}")
        ex(0); ex(1)
        a("s_waitcnt lgkmcnt(0)")
        a(f"v_smfmac_f32_32x32x32_bf16 {v(O,16)}, {v(V1B[q],4)}, {v(Sn+8,8)}, v{IDX}")
        a(f"ds_read_b128 {v(KB[p],4)}, v{KA} offset:{(i+2)*TP}")
        ex(2)
        a(f"ds_read_b128 {v(V0B[q],4)}, v{VA0} offset:{(i+1)*TP}")
        ex(3)
        a(f"ds_read_b128 {v(V1B[q],4)}, v{VA1} offset:{(i+1)*TP}")
        ex(4)
        a(f"v_mfma_f32_32x32x16_bf16 {v(Sn,16)}, {v(KB[q],4)}, {v(Q,4)}, {v(NEGM,16)}")
        for j in range(5, 10):
            ex(j)
        a(f"v_smfmac_f32_32x32x32_bf16 {v(O,16)}, {v(V0B[p],4)}, {v(Sc,8)}, v{IDX}")
        for j in range(10, 16):
            ex(j)
            if j == 11 and i == PS % U and E("K2_PRIO", 1) == 1:
                a(f"""
                s_cmp_lg_u32 s25, {PS // U}
                s_cbranch_scc1 k2_ps
                s_setprio 0
                """)
                a.lab("k2_ps")
            if i == U - 1:
                if j == 11:
                    a(f"v_add_u32 v{KA}, {U*TP}, v{KA}")
                if j == 12:
                    a(f"v_add_u32 v{VA0}, {U*TP}, v{VA0}")
                if j == 13:
                    a(f"v_add_u32 v{VA1}, {U*TP}, v{VA1}")
                    a("s_add_u32 s25, s25, 1")
                if j == 14:
                    a(f"s_cmp_lt_u32 s25, {64//U}")
    a(f"""
    s_cbranch_scc1 k2_loop
    s_nop 0
    v_smfmac_f32_32x32x32_bf16 {v(O,16)}, {v(V1B[1],4)}, {v(SB[1]+8,8)}, v{IDX}
    s_waitcnt lgkmcnt(0)
    s_nop 10
    v_mul_f32 v23, 0, v{O+8}
    """)
    if DBG == 1:
        dbg_ts(a, 4)
    for j in range(8):
        a(f"v_fma_f32 v23, 0, v{O+j}, v23")
    a(f"""
    v_add_f32 v23, v23, v{O+8}
    v_mov_b32 v24, {fl(2.0**100)}
    v_cmp_nlt_f32 vcc, v23, v24
    v_rcp_f32 v25, v{O+8}
    s_cmp_lg_u32 s24, 0
    s_cbranch_scc1 k2_store
    s_cmp_lg_u64 vcc, 0
    s_cbranch_scc1 k2_fallback
    """)
    a.lab("k2_store")
    for j in range(8):
        a(f"v_mul_f32 v{O+j}, v25, v{O+j}")
    for j in range(4):
        a(f"v_cvt_pk_bf16_f32 v{24+j}, v{O+2*j}, v{O+2*j+1}")
    a(f"buffer_store_dwordx4 v[24:27], v1, s[44:47], s12 offen{STF}")
    dbg_end(a, 1)
    a("s_endpgm")
    a.lab("k2_poll")
    a(f"""
    ds_read_b64 v[{FLV+2}:{FLV+3}], v{FLV}
    s_waitcnt lgkmcnt(0)
    v_readfirstlane_b32 s26, v{FLV+2}
    v_readfirstlane_b32 s27, v{FLV+3}
    s_cmp_eq_u32 s25, 1
    s_cselect_b32 s26, s26, s27
    s_cmp_lt_u32 s26, 4
    s_cbranch_scc1 k2_poll
    """)
    if DBG == 1:
        a("s_mov_b32 s68, s70")
        dbg_ts(a, 3)
    a("s_branch k2_body")
    a.lab("k2_fallback")
    a(f"""
    s_mov_b32 s24, 1
    s_mov_b32 s25, 0
    v_mov_b32 v23, 0xff800000
    v_add_u32 v{KA}, {63*TP}, v1
    """)
    zero_init()
    a.lab("k2_fb_loop")
    a(f"""
    ds_read_b128 {v(KB[0],4)}, v{KA}
    v_subrev_u32 v{KA}, {TP}, v{KA}
    s_waitcnt lgkmcnt(0)
    v_mfma_f32_32x32x16_bf16 {v(SB[0],16)}, {v(KB[0],4)}, {v(Q,4)}, 0
    s_nop 11
    """)
    for j in range(0, 16, 2):
        a(f"v_max3_f32 v23, v23, v{SB[0]+j}, v{SB[0]+j+1}")
    a(f"""
    s_add_u32 s25, s25, 1
    s_cmp_lt_u32 s25, 64
    s_cbranch_scc1 k2_fb_loop
    s_branch k2_start
    """)

    NC0 = E("K2_NC0", 0)
    FA = E("K2_FA", 8)

    def tile_dma():
        a(f"""
        s_add_u32 m0, m0, {4*TP}
        s_add_u32 s10, s10, 8192
        buffer_load_dwordx4 v1, s[44:47], s10 offen lds
        buffer_load_dwordx4 v1, s[44:47], s10 offen offset:1024 lds
        """)

    def bump(off):
        a(f"""
        s_mov_b64 exec, 1
        ds_add_u32 v2, v3 offset:{off}
        s_mov_b64 exec, -1
        """)

    def poll(off, name, after):
        BK = E("K2_BK", 4)
        a(f"s_setprio {E('K2_PP', 0)}")
        a(f"s_branch {name}_in")
        a.lab(name)
        for _ in range(BK):
            a("s_nop 15")
        a.lab(name + "_in")
        a(f"""
        ds_read_b32 v15, v2 offset:{off}
        s_waitcnt lgkmcnt(0)
        v_readfirstlane_b32 s26, v15
        s_cmp_lt_u32 s26, 4
        s_cbranch_scc1 {name}
        s_setprio {after}
        """)

    a.lab("k2_conv")
    a(f"""
    s_sub_u32 s3, s3, 8             ; j
    s_and_b32 s22, s3, 1            ; channel
    s_lshr_b32 s23, s3, 1           ; half
    s_mul_i32 s12, s22, {CV_CH}
    s_add_u32 s12, s12, {CV_BASE}
    v_mov_b32 v2, {K2_FL}
    v_mov_b32 v3, 1
    v_mov_b32 v8, 0
    v_mov_b32 v9, 0
    v_mov_b32 v10, 0
    v_mov_b32 v11, 0
    v_lshlrev_b32 v5, 3, v0
    v_add_u32 v6, s12, v1
    v_add_u32 v14, s12, v5
    s_cmp_ge_u32 s3, 2
    s_cbranch_scc1 k2_cv_i1
    ds_write_b64 v14, v[8:9] offset:{CV_U+4096}
    s_mov_b64 exec, 3
    ds_write_b128 v6, v[8:11]
    ds_write_b128 v6, v[8:11] offset:{CV_KS}
    v_add_u32 v4, v2, v1
    ds_write_b128 v4, v[8:11]
    s_mov_b64 exec, -1
    s_branch k2_cv_i2
    """)
    a.lab("k2_cv_i1")
    a(f"""
    s_lshl_b32 s13, s22, 4
    v_mul_u32_u24 v4, {TP}, v0
    s_cmp_eq_u32 s22, 0
    s_cselect_b32 s14, 0x3f803f80, 0
    v_add_u32 v4, s13, v4
    v_mov_b32 v8, s14
    v_mov_b32 v9, s14
    v_mov_b32 v10, s14
    v_mov_b32 v11, s14
    ds_write_b128 v4, v[8:11] offset:2048
    """)
    a.lab("k2_cv_i2")
    a(f"""
    s_lshl_b32 s6, s4, 6
    s_lshl_b32 s7, s5, 1
    s_add_u32 s6, s6, s7            ; d0
    s_add_u32 s11, s6, s22
    s_mul_i32 s11, s11, {KD_PITCH}
    s_add_u32 s11, s11, {KD}
    v_lshlrev_b32 v4, 2, v0
    v_lshlrev_b32 v7, 5, v0
    v_add_u32 v7, s12, v7
    v_lshlrev_b32 v12, 13, v0       ; u voffset
    s_lshl_b32 s13, s3, 19
    s_lshl_b32 s14, s6, 1
    s_add_u32 s13, s13, s14         ; u soffset
    s_add_u32 s27, s13, 4096
    s_mov_b32 s14, 0x01000100
    s_mov_b32 s15, 0x03020302
    s_mov_b32 s28, 0x05040302
    s_mov_b32 s29, 0x05040100
    s_mov_b32 s30, 0x07060302
    s_waitcnt lgkmcnt(0)
    s_mov_b32 s44, s40
    s_and_b32 s45, s41, 0xffff
    buffer_load_dwordx4 v1, s[44:47], s10 offen lds
    buffer_load_dwordx4 v1, s[44:47], s10 offen offset:1024 lds
    """)
    for i in range(NC0):
        tile_dma()
    srd(a, 52, 18, 2048 * 1024 * 2)
    srd(a, 48, 16, 512 * 512 * 2)
    srd(a, 56, 20, 2048 * 512 * 2)
    a(f"""
    s_waitcnt vmcnt({2*NC0})
    s_barrier
    s_setprio {E('K2_CP0', 2)}
    """)
    for i in range(NC0, 13):
        tile_dma()
        if i + 1 == FA:
            a(f"s_waitcnt vmcnt({2*(FA-4)})")
            bump(0)
    UR = 64
    a(f"""
    s_cmp_lg_u32 s23, 0
    s_cbranch_scc1 k2_cv_l1
    buffer_load_dwordx3 v[72:74], v5, s[44:47], s11 offen
    buffer_load_dwordx2 v[76:77], v4, s[44:47], s11 offen offset:512
    buffer_load_dwordx2 v[78:79], v4, s[44:47], s11 offen offset:768
    s_waitcnt vmcnt(3)
    s_branch k2_cv_l2
    """)
    a.lab("k2_cv_l1")
    a(f"""
    buffer_load_dwordx2 v[80:81], v4, s[44:47], s11 offen offset:1024
    s_waitcnt vmcnt(1)
    """)
    a.lab("k2_cv_l2")
    bump(4)
    dbg_ts(a, 0)
    for e in range(8):
        a(f"buffer_load_dword v{UR+e}, v12, s[56:59], s{13 if e < 4 else 27} offen offset:{(e&3)*1024}")
    a(f"""
    s_waitcnt vmcnt(8)
    s_cbranch_scc1 k2_cv_e1
    """)
    EE = lambda d, r: a(f"v_perm_b32 v{d}, v{r}, v{r}, s14")
    OO = lambda d, r: a(f"v_perm_b32 v{d}, v{r}, v{r}, s15")
    EO = lambda d, r: a(f"v_mov_b32 v{d}, v{r}")
    OE = lambda d, r: a(f"v_perm_b32 v{d}, v{r+1}, v{r}, s28")
    FF = lambda d, r: a(f"v_perm_b32 v{d}, v{r+1}, v{r+1}, s14")
    a(f"ds_write_b64 v14, v[72:73] offset:32")
    OE(8, 72)
    OE(9, 73)
    a(f"ds_write_b64 v14, v[8:9] offset:{32+CV_KS}")
    EE(24, 76); OE(25, 76); EO(26, 76); FF(27, 76)
    a(f"ds_write_b64 v14, v[24:25] offset:{32+512}")
    a(f"ds_write_b64 v14, v[26:27] offset:{32+512+CV_KS}")
    for d, f in zip(range(16, 24), (EE, EO, OO, FF, EE, OO, OE, FF)):
        f(d, 78)
    a(f"ds_write_b128 v6, v[16:19] offset:{32+1024}")
    a(f"ds_write_b128 v6, v[20:23] offset:{32+1024+CV_KS}")
    a(f"""
    v_lshlrev_b32 v28, 16, v72
    s_mov_b64 exec, 1
    ds_write_b32 v6, v28 offset:{CV_KS+28}
    s_mov_b64 exec, -1
    s_branch k2_cv_e2
    """)
    a.lab("k2_cv_e1")
    for d, f in zip(range(24, 40), (EE, EE, EO, OO, OO, OO, FF, FF, EE, EE, OO, OO, OO, OE, FF, FF)):
        f(d, 80)
    a(f"ds_write_b128 v7, v[24:27] offset:{32+2048}")
    a(f"ds_write_b128 v7, v[28:31] offset:{32+2048+16}")
    a(f"ds_write_b128 v7, v[32:35] offset:{32+2048+CV_KS}")
    a(f"ds_write_b128 v7, v[36:39] offset:{32+2048+16+CV_KS}")
    a.lab("k2_cv_e2")
    AF, BF, AC = 32, 64, 96
    a(f"""
    s_lshl_b32 s13, s3, 10
    s_sub_u32 s13, {CV_BASE + CV_U + 4080}, s13
    v_sub_u32 v8, s13, v1
    v_and_b32 v13, 15, v0           ; r / c
    v_lshrrev_b32 v14, 4, v0        ; g
    v_add_u32 v15, 1, v13
    v_lshrrev_b32 v16, 1, v15
    v_lshl_add_u32 v16, v14, 2, v16
    v_lshlrev_b32 v16, 2, v16
    v_and_b32 v15, 1, v15           ; r even
    v_mul_u32_u24 v15, {CV_KS}, v15
    s_lshl_b32 s13, s23, 8
    s_add_u32 s13, s13, s12
    v_add3_u32 v4, v15, v16, s13
    v_add_u32 v5, 1024, v4
    v_add_u32 v6, 2048, v4
    v_add_u32 v7, 3072, v4
    v_lshlrev_b32 v15, 5, v13
    v_lshlrev_b32 v16, 4, v14
    v_sub_u32 v12, v16, v15
    s_add_u32 s13, s13, {CV_U + 480}
    v_add_u32 v12, s13, v12
    v_lshlrev_b32 v13, 15, v13
    v_lshl_add_u32 v13, v14, 13, v13
    s_lshl_b32 s11, s5, 2
    s_add_u32 s11, s11, s3
    s_lshl_b32 s11, s11, 12
    v_lshlrev_b32 v9, 6, v0
    s_waitcnt vmcnt(0)
    buffer_load_dword v10, v9, s[48:51], s11 offen
    """)
    dbg_ts(a, 1)
    for d in range(4):
        a(f"v_perm_b32 v{16+d}, v{UR+6-2*d}, v{UR+7-2*d}, s29")
    for d in range(4):
        a(f"v_perm_b32 v{20+d}, v{UR+6-2*d}, v{UR+7-2*d}, s30")
    a(f"""
    ds_write_b128 v8, v[16:19]
    ds_write_b128 v8, v[20:23] offset:{CV_CH}
    s_waitcnt lgkmcnt(0)
    """)
    bump(8)
    poll(8, "k2_pc", E("K2_CPRIO", 0))
    dbg_ts(a, 2)
    if E("X_NOCONV", 0):
        a("s_branch k2_cv_out")
    PACE = E("K2_PACE", -1)
    for it in range(4):
        for m in range(8):
            base = 4 + m // 2
            o = 128 * (m & 1) + 16 * it
            a(f"ds_read2_b32 {v(AF+4*m,2)}, v{base} offset0:{o} offset1:{o+1}")
            a(f"ds_read2_b32 {v(AF+4*m+2,2)}, v{base} offset0:{o+2} offset1:{o+3}")
            a(f"ds_read_b128 {v(BF+4*m,4)}, v12 offset:{512*(7-m)+64*it}")
        for t in range(8):
            a(f"s_waitcnt lgkmcnt({min(15, 3*(7-t))})")
            prs = [(m, kk) for m in range(t + 1) for kk in range(t + 1) if max(m, kk) == t and m + kk <= 7]
            prs.sort(key=lambda x: (x[0] < x[1], x[0] + x[1]))
            for m, kk in prs:
                d = v(AC + 4 * (m + kk), 4)
                first = it == 0 and (m, kk) == min([(x, m + kk - x) for x in range(m + kk + 1)], key=lambda y: (max(y), y[0] < y[1]))
                a(f"v_mfma_f32_16x16x32_bf16 {d}, {v(AF+4*m,4)}, {v(BF+4*kk,4)}, {'0' if first else d}")
                if PACE >= 0:
                    a(f"s_nop {PACE}")
    dbg_ts(a, 3)
    bump(12)
    a(f"""
    v_add_u32 v4, {CV_BASE}, v1
    s_lshl_b32 s8, s3, 20
    s_lshl_b32 s9, s6, 1
    s_add_u32 s8, s8, s9
    s_add_u32 s9, s8, {256*2048}
    s_add_u32 s10, s8, 4096
    s_add_u32 s11, s9, 4096
    """)
    poll(12, "k2_pd", E("K2_CP0", 2))
    a(f"""
    s_cmp_eq_u32 s3, 1
    s_cbranch_scc1 k2_cx1
    s_cmp_eq_u32 s3, 2
    s_cbranch_scc1 k2_cx2
    s_cmp_eq_u32 s3, 3
    s_cbranch_scc1 k2_cx3
    """)
    for w in range(4):
        a.lab(f"k2_cx{w}")
        for o in range(4):
            if o == w:
                continue
            k = w if w < o else w - 1
            a(f"ds_write_b128 v4, {v(AC+8*o,4)} offset:{(3*o+k)*2048}")
            a(f"ds_write_b128 v4, {v(AC+8*o+4,4)} offset:{(3*o+k)*2048+1024}")
        a("s_waitcnt lgkmcnt(0)")
        bump(16)
        poll(16, f"k2_pe{w}", E("K2_CP0", 2))
        regs = {w: AC + 8 * w}
        for sw in range(4):
            if sw == w:
                continue
            k = sw if sw < w else sw - 1
            regs[sw] = 32 + 8 * k
            a(f"ds_read_b128 {v(32+8*k,4)}, v4 offset:{(3*w+k)*2048}")
            a(f"ds_read_b128 {v(36+8*k,4)}, v4 offset:{(3*w+k)*2048+1024}")
        a("s_waitcnt lgkmcnt(0)")
        for ch in range(2):
            for jj in range(0, 8, 2):
                a(f"v_pk_add_f32 {v(64+8*ch+jj,2)}, {v(regs[ch]+jj,2)}, {v(regs[ch+2]+jj,2)}")
        if w < 3:
            a("s_branch k2_cv_out")
    a.lab("k2_cv_out")
    dbg_ts(a, 4)
    for jj in range(8):
        a(f"v_cvt_pk_bf16_f32 v{16+jj}, v{64+jj}, v{72+jj}")
    for cb in range(2):
        for jj in range(4):
            so = 8 + cb + 2 * (jj // 2)
            a(f"buffer_store_dword v{16+4*cb+jj}, v13, s[52:55], s{so} offen offset:{(jj%2)*2048}")
    dbg_end(a, 1)
    a.lab("k2_end")
    a("s_endpgm")
    return a, desc("k2_kernel", 128)


K3_LDS = 131072


def gen_k3():
    a = Asm()
    head(a, "k3_kernel")
    a(f"""
    s_cmp_ge_u32 s2, 256
    s_cbranch_scc1 k3_end
    """)
    dbg_start(a)
    a(f"""
    s_load_dwordx2 s[40:41], s[0:1], 112
    s_load_dwordx4 s[16:19], s[0:1], 88
    v_lshrrev_b32 v1, 6, v0
    v_and_b32 v0, 63, v0
    s_and_b32 s4, s2, 7
    v_readfirstlane_b32 s3, v1
    v_readfirstlane_b32 s94, v1
    s_lshr_b32 s5, s2, 3
    v_lshlrev_b32 v1, 4, v0
    s_lshl_b32 s6, s4, 2
    s_lshr_b32 s7, s5, 3
    s_add_u32 s6, s6, s7            ; rt
    s_and_b32 s7, s5, 7             ; ct
    s_and_b32 s10, s3, 1
    s_bfe_u32 s11, s3, 0x10001
    s_cmp_ge_u32 s3, 4
    s_cbranch_scc1 k3_mm
    s_lshl_b32 s12, s3, 11
    s_lshl_b32 s8, s6, 16
    s_lshl_b32 s9, s11, 15
    s_add_u32 s8, s8, s9
    s_lshl_b32 s9, s10, 11
    s_add_u32 s8, s8, s9
    s_add_u32 s8, s8, {OI}          ; O base
    v_lshrrev_b32 v2, 3, v0         ; row
    v_and_b32 v3, 7, v0
    v_bfe_u32 v4, v0, 4, 1
    v_lshlrev_b32 v4, 2, v4
    v_xor_b32 v3, v3, v4
    v_lshlrev_b32 v2, 10, v2
    v_lshl_add_u32 v2, v3, 4, v2
    v_add_u32 v3, {8192-1024}, v2
    s_lshl_b32 s9, s7, 7
    s_lshl_b32 s13, s3, 14
    s_add_u32 s9, s9, s13
    s_and_b32 s60, s7, {E("K3_ROT", 0)}
    s_mov_b32 s46, {hex(WS_BYTES)}
    s_mov_b32 s47, 0x00020000
    s_mov_b32 s50, {hex(512*512*2)}
    s_mov_b32 s51, 0x00020000
    s_waitcnt lgkmcnt(0)
    s_mov_b32 s44, s40
    s_and_b32 s45, s41, 0xffff
    s_mov_b32 s48, s16
    s_and_b32 s49, s17, 0xffff
    """)

    def chunk(c):
        a(f"""
        s_add_u32 m0, s12, {c*16384}
        s_lshl_b32 s14, s60, 12
        s_add_u32 s14, s14, s8
        buffer_load_dwordx4 v1, s[44:47], s14 offen lds
        buffer_load_dwordx4 v1, s[44:47], s14 offen offset:1024 lds
        s_add_u32 m0, s12, {c*16384 + 8192}
        s_lshl_b32 s14, s60, 16
        s_add_u32 s14, s14, s9
        buffer_load_dwordx4 v2, s[48:51], s14 offen lds
        buffer_load_dwordx4 v3, s[48:51], s14 offen offset:1024 lds
        s_add_u32 s60, s60, 1
        s_and_b32 s60, s60, 7
        """)

    LA = E("K3_LA", 4)
    for c in range(LA):
        chunk(c)
    dbg_ts(a, 0)
    for b in range(8):
        a(f"s_waitcnt vmcnt({4*(min(8, b+LA) - b - 1)})")
        a("s_barrier")
        if b + LA < 8:
            chunk(b + LA)
    dbg_end(a, 2)
    a("s_endpgm")

    a.lab("k3_mm")
    a(f"""
    s_lshl_b32 s12, s10, 12
    v_add_u32 v2, s12, v1
    v_lshrrev_b32 v5, 5, v0         ; h
    v_bfe_u32 v3, v0, 2, 2
    v_lshl_add_u32 v3, v5, 2, v3    ; row = 4h + (i>>2)
    v_lshlrev_b32 v3, 7, v3
    v_bfe_u32 v4, v0, 3, 1
    v_xor_b32 v4, s11, v4
    v_lshl_add_u32 v3, v4, 6, v3
    v_and_b32 v4, 1, v0
    v_lshl_add_u32 v3, v4, 5, v3    ; + 16*(c&1) cols
    v_bfe_u32 v4, v0, 4, 1
    v_lshl_add_u32 v3, v4, 4, v3    ; + 8G cols
    v_bfe_u32 v4, v0, 1, 1
    v_lshl_add_u32 v3, v4, 3, v3    ; + 4*(c>>1) cols
    v_add_u32 v3, 8192, v3
    v_add_u32 v6, 65536, v2
    v_add_u32 v7, 65536, v3
    s_lshl_b32 s12, s6, 1
    s_add_u32 s12, s12, s10
    s_lshl_b32 s12, s12, 16         ; (2rt+qh)*32*2048
    s_lshl_b32 s13, s7, 1
    s_add_u32 s13, s13, s11
    s_lshl_b32 s13, s13, 6
    s_add_u32 s12, s12, s13
    s_add_u32 s12, s12, 1024
    s_add_u32 s13, s12, {16*2048}
    s_lshl_b32 s14, s3, 12
    v_and_b32 v4, 31, v0
    v_mul_u32_u24 v4, 80, v4
    v_lshl_add_u32 v4, v5, 5, v4
    v_add_u32 v4, s14, v4
    v_lshrrev_b32 v5, 2, v0
    v_and_b32 v9, 3, v0
    v_lshlrev_b32 v9, 4, v9
    v_lshl_add_u32 v8, v5, 11, v9
    v_mul_u32_u24 v5, 80, v5
    v_add3_u32 v5, v5, v9, s14
    s_waitcnt lgkmcnt(0)
    """)
    srd(a, 52, 18, 2048 * 1024 * 2)
    if DBG:
        srd(a, 44, 40, WS_BYTES)
    D = 80
    for c in range(8):
        a("s_barrier")
        if c in (0, 4, 7):
            dbg_ts(a, {0: 1, 4: 2, 7: 3}[c])
        F = 16 + 32 * (c % 2)
        ob, wb = (2, 3) if c < 4 else (6, 7)
        so = (c % 4) * 16384
        for i in range(4):
            a(f"ds_read_b128 {v(F+8*i,4)}, v{ob} offset:{so + i*1024}")
            a(f"ds_read_b64_tr_b16 {v(F+8*i+4,2)}, v{wb} offset:{so + i*2048}")
            a(f"ds_read_b64_tr_b16 {v(F+8*i+6,2)}, v{wb} offset:{so + i*2048 + 1024}")
        for i in range(4):
            a(f"s_waitcnt lgkmcnt({9-3*i})")
            cc = "0" if (c == 0 and i == 0) else v(D, 16)
            a(f"v_mfma_f32_32x32x16_bf16 {v(D,16)}, {v(F+8*i+4,4)}, {v(F+8*i,4)}, {cc}")
    a("s_nop 11")
    dbg_ts(a, 4)
    for j in range(4):
        a(f"v_cvt_pk_bf16_f32 v{16+j}, v{D+2*j}, v{D+2*j+1}")
    a("ds_write_b128 v4, v[16:19]")
    for j in range(4, 8):
        a(f"v_cvt_pk_bf16_f32 v{16+j}, v{D+2*j}, v{D+2*j+1}")
    a(f"""
    ds_write_b128 v4, v[20:23] offset:16
    ds_read_b128 v[24:27], v5
    ds_read_b128 v[28:31], v5 offset:{16*80}
    s_waitcnt lgkmcnt(1)
    buffer_store_dwordx4 v[24:27], v8, s[52:55], s12 offen
    s_waitcnt lgkmcnt(0)
    buffer_store_dwordx4 v[28:31], v8, s[52:55], s13 offen
    """)
    dbg_end(a, 2)
    a.lab("k3_end")
    a("s_endpgm")
    return a, desc("k3_kernel", 96)


def build():
    ks = [gen_k1(), gen_k2(), gen_k3()]
    hdr = [
        "; generated by work/gen.py",
        f"; @launch kernel=k1_kernel grid=(256,1,1) block=(768,1,1) lds={K1_LDS}",
        f"; @launch kernel=k2_kernel grid=(256,1,1) block=(768,1,1) lds={K2_LDS}",
        f"; @launch kernel=k3_kernel grid=(256,1,1) block=(512,1,1) lds={K3_LDS}",
    ]
    out = "\n".join(hdr) + "\n"
    out += '.amdgcn_target "amdgcn-amd-amdhsa--gfx950"\n.text\n'
    for a, d in ks:
        out += a.text()
    out += '.section .rodata,"a"\n'
    for a, d in ks:
        out += d
    return out


if __name__ == "__main__":
    path = sys.argv[1] if len(sys.argv) > 1 else f"cdna_kernels/{NAME}.s"
    open(path, "w").write(build())
    print("wrote", path)
```

```python
from genlib import *

E = lambda k, d: int(os.environ.get(k, str(d)))

K1_XB = 0
K1_RING = 8192
K1_LDS = K1_RING + 9 * 16384
K1_UNITS = [[('x', 0), (0, 0)], [(1, 0), (2, 0)], [('x', 1), (0, 1)], [(1, 1), (2, 1)],
            [(0, 2), ('x', 2)], [('x', 3), (0, 3)]]
K1_UNITS += [[[(1, 2)], [(1, 3)], [(2, 2)], [(2, 3)]], [[(1, 2), (1, 3)], [(2, 2)], [(2, 3)]],
             [[(1, 2), (1, 3)], [(2, 2), (2, 3)]]][E("K1_TAIL", 1)]
K1_NB = len(K1_UNITS)
K1_PIECES = [(pc, u) for u, ps in enumerate(K1_UNITS) for pc in ps]
K1_AREA = {pc: i % 9 for i, (pc, u) in enumerate(K1_PIECES)}
K1_ISSUE = {-1: range(E("K1_LA", 5))}
_n = E("K1_LA", 5)
for _b in range(K1_NB):
    _lim = {0: 9, 1: 9, 2: 12, 3: 13}.get(_b, 16)
    K1_ISSUE[_b] = list(range(_n, min(_n + 2, _lim)))
    _n += len(K1_ISSUE[_b])
    assert all(K1_PIECES[i][1] > _b for i in K1_ISSUE[_b])
assert _n == 16
K1_STEPS = [(pc[0], pc[1], k8, u) for u, ps in enumerate(K1_UNITS) for pc in ps if pc[0] != 'x' for k8 in range(8)]
K1_UNIT = [min(g for g, st in enumerate(K1_STEPS) if st[3] == u) for u in range(K1_NB)]
K1_LAST = [max(g for g, st in enumerate(K1_STEPS) if st[0] == sg) for sg in range(3)]


def cost(line):
    t = line.strip()
    if t.startswith(("v_exp", "v_sin", "v_cos", "v_rcp", "v_mfma")):
        return 8
    if t.startswith(("v_cvt_pk", "v_fma_", "v_pk")) or "_dpp" in t:
        return 5
    return 4


def splice(lines, marks):
    out, acc, k = [], 0, 0
    nbar = len(marks)
    for l in lines:
        if k < nbar and acc >= marks[k]:
            if DBG and k == 0:
                out.append("    s_memtime s[66:67]")
            out.append("    s_barrier")
            k += 1
        out.append(l)
        acc += cost(l)
    assert k >= 1
    return out


def gen_k1():
    a = Asm()
    head(a, "k1_kernel")
    a(f"""
    s_cmp_ge_u32 s2, 256
    s_cbranch_scc1 k1_end
    """)
    dbg_start(a)
    a(f"""
    s_load_dwordx8 s[32:39], s[0:1], 64
    s_load_dwordx16 s[16:31], s[0:1], 0
    s_load_dwordx2 s[40:41], s[0:1], 112
    v_lshrrev_b32 v1, 6, v0
    v_and_b32 v0, 63, v0
    s_and_b32 s4, s2, 7             ; xcd
    v_readfirstlane_b32 s3, v1
    v_readfirstlane_b32 s94, v1
    s_lshr_b32 s5, s2, 3            ; idx
    s_and_b32 s15, s3, 3
    s_lshr_b32 s14, s3, 2
    s_cmp_eq_u32 s14, 1
    s_cbranch_scc1 k1_kgen
    s_and_b32 s6, s4, 1
    s_lshl_b32 s6, s6, 2
    s_and_b32 s7, s5, 3
    s_add_u32 s6, s6, s7
    s_lshr_b32 s7, s4, 1
    s_lshl_b32 s7, s7, 3
    s_lshr_b32 s8, s5, 2
    s_add_u32 s7, s7, s8
    s_and_b32 s12, s15, 1           ; rb
    s_lshr_b32 s13, s15, 1          ; hb
    s_lshl_b32 s8, s7, 1
    s_add_u32 s8, s8, s12
    s_lshl_b32 s12, s12, 12
    v_lshrrev_b32 v13, 5, v0        ; h
    s_cmp_eq_u32 s14, {2 if E("K1_ORD", 0) else 0}
    s_cbranch_scc1 {"k1_gemm" if E("K1_ORD", 0) else "k1_load"}
    """)
    a.lab("k1_gemm")
    a("@touch k1")
    a.lab("k1_ret")
    if E("TCH1", 256):
        a("s_mov_b64 exec, -1")

    DP = E("K1_DP", 6)
    XB0, WB0 = 8, 16
    XF, WF = 20, 36
    XR = 96
    ACC = [64, 80, 20]
    assert DP <= 6
    a(f"""
    v_and_b32 v7, 31, v0            ; s
    v_bfe_u32 v14, v0, 1, 3         ; (s>>1)&7
    v_xor_b32 v14, v14, v13         ; h ^ f
    v_lshlrev_b32 v15, 7, v7
    s_add_u32 s12, s12, {K1_RING}
    v_add_u32 v15, s12, v15         ; rb*4096 + s*128
    v_lshl_add_u32 v8, v14, 4, v15
    v_xor_b32 v9, 32, v8
    v_xor_b32 v10, 64, v8
    v_xor_b32 v11, 96, v8
    v_lshlrev_b32 v16, 10, v13      ; h*1024
    v_bfe_u32 v14, v0, 2, 2         ; r
    v_lshl_add_u32 v16, v14, 7, v16
    v_bfe_u32 v14, v0, 3, 1         ; r>>1
    v_xor_b32 v14, s13, v14
    v_lshl_add_u32 v16, v14, 6, v16
    v_bfe_u32 v14, v0, 4, 1
    v_lshl_add_u32 v16, v14, 5, v16
    v_and_b32 v14, 3, v0
    v_lshl_add_u32 v16, v14, 3, v16
    v_add_u32 v16, {K1_RING}, v16
    v_add_u32 v12, 65536, v8
    v_add_u32 v13, 65536, v9
    v_add_u32 v14, 65536, v10
    v_add_u32 v15, 65536, v11
    v_add_u32 v17, 65536, v16
    v_add_u32 v18, 131072, v16
    s_lshl_b32 s6, s6, 1
    s_add_u32 s6, s6, s13
    """)

    def reads(g):
        seg, p, k8, u = K1_STEPS[g]
        L = []
        if seg == 0:
            ar = K1_AREA[('x', p)]
            L.append(f"ds_read_b128 {v(XR+32*(p==3)+4*k8,4)}, v{XB0 + 4*(ar//4) + k8%4} offset:{(ar%4)*16384 + (k8//4)*8192}")
        ar = K1_AREA[(seg, p)]
        for half in range(2):
            L.append(f"ds_read_b64_tr_b16 {v(WF+4*(g%(DP+1))+2*half,2)}, v{WB0 + ar//4} offset:{(ar%4)*16384 + k8*2048 + half*512}")
        return L

    def mfma(g):
        seg, p, k8, u = K1_STEPS[g]
        x, w, d = v(XR + 32 * (p == 3) + 4 * k8, 4), v(WF + 4 * (g % (DP + 1)), 4), v(ACC[seg], 16)
        c = "0" if p == 0 and k8 == 0 else d
        return f"v_mfma_f32_32x32x16_bf16 {d}, {w}, {x}, {c}" if seg < 2 else f"v_mfma_f32_32x32x16_bf16 {d}, {x}, {w}, {c}"

    a(f"""
    s_lshl_b32 s10, s6, 17          ; fg*2*65536
    s_lshl_b32 s11, s8, 10
    s_add_u32 s10, s10, s11
    s_add_u32 s10, s10, {QI}        ; Q head A
    s_add_u32 s11, s10, 65536       ; Q head B
    s_lshl_b32 s12, s6, 18          ; fg*2*131072
    s_lshl_b32 s13, s8, 11
    s_add_u32 s12, s12, s13
    s_add_u32 s12, s12, {KVI}
    s_add_u32 s13, s12, 131072
    v_lshlrev_b32 v1, 4, v0         ; lane*16
    v_and_b32 v2, 0x33, v0
    v_bfe_u32 v3, v0, 2, 1
    v_lshl_or_b32 v2, v3, 3, v2
    v_bfe_u32 v3, v0, 3, 1
    v_lshl_or_b32 v2, v3, 2, v2
    v_lshlrev_b32 v2, 4, v2         ; K voffset
    v_and_b32 v3, 15, v0
    v_lshlrev_b32 v3, 4, v3
    v_lshrrev_b32 v4, 5, v0
    v_lshl_add_u32 v3, v4, 8, v3
    v_bfe_u32 v4, v0, 4, 1
    v_lshl_add_u32 v3, v4, 17, v3   ; V voffset
    s_mov_b32 s14, {fl(0.25*LOG2E)}
    s_mov_b32 s15, {fl(0.25*LOG2E)}
    """)
    a("s_waitcnt lgkmcnt(0)")
    srd(a, 44, 40, WS_BYTES)
    if E("K1_GPRIO", 2):
        a(f"s_setprio {E('K1_GPRIO', 2)}")

    def epi(seg):
        L = []
        A = ACC[seg]
        f = STFS[seg]
        for j in range(8):
            if seg == 0:
                L.append(f"v_pk_mul_f32 {v(A+2*j,2)}, {v(A+2*j,2)}, s[14:15]")
            L.append(f"v_cvt_pk_bf16_f32 v{A+j}, v{A+2*j}, v{A+2*j+1}")
            if j == 3:
                L.append({0: f"buffer_store_dwordx4 {v(A,4)}, v1, s[44:47], s10 offen{f}",
                          1: f"buffer_store_dwordx4 {v(A,4)}, v2, s[44:47], s12 offen{f}",
                          2: f"buffer_store_dwordx4 {v(A,4)}, v3, s[44:47], s12 offen offset:1024{f}"}[seg])
            if j == 7:
                L.append({0: f"buffer_store_dwordx4 {v(A+4,4)}, v1, s[44:47], s11 offen{f}",
                          1: f"buffer_store_dwordx4 {v(A+4,4)}, v2, s[44:47], s13 offen{f}",
                          2: f"buffer_store_dwordx4 {v(A+4,4)}, v3, s[44:47], s12 offen offset:1536{f}"}[seg])
        return L

    dbg_ts(a, 0)
    a("s_barrier")
    dbg_ts(a, 1)
    cnt = {}
    tot = 0
    for g in range(DP):
        for l in reads(g):
            a(l)
        tot += len(reads(g))
        cnt[g] = tot
    fill = []
    for g in range(96):
        a(f"s_waitcnt lgkmcnt({min(15, tot - cnt[g])})")
        a(mfma(g))
        n = g + DP
        if n < 96:
            if n in K1_UNIT:
                u = K1_UNIT.index(n)
                a("s_barrier")
                if u in (2, 4, 6, 8) and u < K1_NB:
                    dbg_ts(a, 1 + u // 2)
            for l in reads(n):
                a(l)
            tot += len(reads(n))
            cnt[n] = tot
        if g - 2 in K1_LAST:
            fill = fill + epi(K1_LAST.index(g - 2))
        nf = E("K1_NF", 2)
        for l in fill[:nf]:
            a(l)
        fill = fill[nf:]
    for l in fill:
        a(l)
    dbg_ts(a, 6)
    a("s_nop 11")
    if not DBG:
        a("s_nop 1")
    for l in epi(2):
        a(l)
    dbg_end(a, 0)
    a("s_endpgm")

    a.lab("k1_load")
    a(f"""
    s_lshl_b32 s9, s8, 15
    s_lshl_b32 s10, s13, 14
    s_add_u32 s9, s9, s10
    s_lshl_b32 s10, s13, 11
    s_add_u32 s12, s12, s10
    v_lshrrev_b32 v1, 3, v0         ; lane>>3
    v_and_b32 v7, 7, v0             ; lane&7
    v_lshrrev_b32 v8, 4, v0         ; lane>>4
    v_xor_b32 v4, v7, v8
    v_lshlrev_b32 v5, 10, v1
    v_lshl_add_u32 v2, v4, 4, v5    ; q even
    v_xor_b32 v3, 64, v2            ; chunk^4
    v_add_u32 v3, 7168, v3          ; q odd
    s_mul_i32 s10, s15, {32*3072}
    s_lshl_b32 s11, s6, 7
    s_add_u32 s10, s10, s11
    s_lshl_b32 s13, s15, 12
    v_and_b32 v8, 1, v8
    v_lshlrev_b32 v8, 2, v8
    v_xor_b32 v7, v7, v8
    v_mul_u32_u24 v8, 3072, v1
    v_lshl_add_u32 v10, v7, 4, v8
    v_add_u32 v10, s10, v10         ; W voffsets v10..13
    v_add_u32 v11, {8*3072-1024}, v10
    v_add_u32 v12, {2*(8*3072-1024)}, v10
    v_add_u32 v13, {3*(8*3072-1024)}, v10
    {["s_add_u32 s60, s6, s7", "s_mov_b32 s60, s7", "s_mov_b32 s60, s6", "s_lshr_b32 s60, s7, 1"][E("K1_RM", 0)]}
    """)
    for p in range(4):
        a(f"""
        s_and_b32 s60, s60, {E("K1_ROT", 3)}
        s_lshl_b32 s{56+p}, s60, 8
        s_add_u32 s{56+p}, s{56+p}, s9
        s_mul_i32 s{96+p}, s60, {128*3072}
        s_add_u32 s60, s60, 1
        """.replace("s_and_b32 s60, s60, 0", "s_and_b32 s60, s60, %d" % (0 if p == 0 else 3)))
    a(f"""
    s_mov_b32 s50, {hex(2048*512*2)}
    s_mov_b32 s51, 0x00020000
    s_mov_b32 s54, {hex(512*1536*2)}
    s_mov_b32 s55, 0x00020000
    s_waitcnt lgkmcnt(0)
    s_mov_b32 s48, s34
    s_and_b32 s49, s35, 0xffff
    s_mov_b32 s52, s36
    s_and_b32 s53, s37, 0xffff
    """)
    q = []

    def dma_x(p):
        base = K1_RING + K1_AREA[('x', p)] * 16384
        a(f"""
        s_add_u32 m0, s12, {base}
        s_add_u32 s14, s{56+p}, 128
        buffer_load_dwordx4 v2, s[48:51], s{56+p} offen lds
        buffer_load_dwordx4 v3, s[48:51], s{56+p} offen offset:1024 lds
        s_add_u32 m0, s12, {base + 8192}
        s_nop 0
        buffer_load_dwordx4 v2, s[48:51], s14 offen lds
        buffer_load_dwordx4 v3, s[48:51], s14 offen offset:1024 lds
        """)

    def dma_w(seg, p):
        base = K1_RING + K1_AREA[(seg, p)] * 16384
        a(f"""
        s_add_u32 m0, s13, {base}
        s_add_u32 s14, s{96 + p}, {seg*1024}
        """)
        for i in range(4):
            a(f"buffer_load_dwordx4 v{10+i}, s[52:55], s14 offen offset:{i*1024} lds")

    def piece(i):
        pc, u = K1_PIECES[i]
        if pc[0] == 'x':
            dma_x(pc[1])
        else:
            dma_w(*pc)
        q.extend([u] * 4)

    def wait_for(tag):
        last = max(i for i, t in enumerate(q) if t == tag)
        a(f"s_waitcnt vmcnt({len(q) - 1 - last})")

    for i in K1_ISSUE[-1]:
        piece(i)
    if DBG:
        srd(a, 44, 40, WS_BYTES)
    for b in range(K1_NB):
        wait_for(b)
        if b < 8:
            dbg_ts(a, b)
        a("s_barrier")
        for i in K1_ISSUE.get(b, []):
            piece(i)
    dbg_end(a, 0)
    a("@touch k2")
    a("s_endpgm")

    a.lab("k1_kgen")
    XA, XY, XC, XAD = 64, 65, 66, 67
    SA, SB, SC, SD, SE = 68, 69, 70, 71, 72
    a(f"""
    s_setprio 3
    s_lshl_b32 s6, s4, 6
    s_lshl_b32 s7, s5, 1
    s_add_u32 s6, s6, s7
    s_lshr_b32 s7, s15, 1
    s_add_u32 s6, s6, s7            ; channel d
    s_lshl_b32 s8, s6, 8
    s_and_b32 s9, s15, 1
    s_lshl_b32 s9, s9, 7
    s_add_u32 s8, s8, s9            ; d*256 + half*128
    s_lshl_b32 s9, s6, 1
    v_lshl_add_u32 v1, v0, 1, s8
    v_mov_b32 v10, s9
    s_lshl_b32 s12, s7, 12
    s_add_u32 s12, s12, {K1_XB}
    v_lshl_add_u32 v{XAD}, v0, 4, s12
    """)
    for i in range(2, 10):
        a(f"v_mov_b32 v{i}, 0")
    a(f"""
    ds_write_b32 v{XAD}, v2 offset:3072
    s_mul_i32 s11, s6, {KD_PITCH}
    s_add_u32 s11, s11, {KD}
    s_mov_b32 s13, {fl(LOG2E)}
    s_mov_b32 s14, {fl(1.0/(2*math.pi))}
    v_and_b32 v20, 15, v0           ; i / j
    v_lshrrev_b32 v21, 4, v0        ; g / G
    v_and_b32 v22, 1, v0
    v_cvt_f32_u32 v{XA}, v20
    v_mul_f32 v{XY}, 16.0, v{XA}
    v_and_b32 v23, 3, v0
    v_lshlrev_b32 v23, 2, v23
    v_lshrrev_b32 v24, 2, v20
    v_lshl_add_u32 v23, v24, 8, v23
    v_add_u32 v23, 512, v23         ; i<8 : 512 + 4(i&3) + 256(i>>2)
    v_lshlrev_b32 v24, 3, v22
    v_lshrrev_b32 v25, 1, v20
    v_lshl_add_u32 v24, v25, 8, v24 ; i>=8: 8(i&1) + 256(i>>1)
    v_cmp_gt_u32 vcc, 8, v20
    v_sub_u32 v{SE}, 63, v0
    v_cndmask_b32 v23, v24, v23, vcc
    v_cvt_f32_u32 v{XC}, v23
    v_lshlrev_b32 v{SE}, 2, v{SE}
    v_lshlrev_b32 v{SB}, 5, v20
    v_lshl_add_u32 v{SB}, v21, 3, v{SB}     ; seg0: 32j + 8G
    v_lshrrev_b32 v24, 5, v0                ; G>>1
    v_sub_u32 v25, 3, v24
    v_lshlrev_b32 v25, v25, v20
    v_lshl_add_u32 v{SC}, v21, 7, v25       ; seg2/3 A - 768
    v_mul_u32_u24 v24, 60, v24
    v_add3_u32 v{SD}, v24, v{SC}, 4         ; B - 768
    v_lshrrev_b32 v{SA}, 1, v{SB}           ; seg1: 16j + 4G
    v_cmp_eq_u32 vcc, 0, v0
    s_waitcnt lgkmcnt(0)
    global_load_short_d16_hi v8, v10, s[30:31]
    global_load_short_d16_hi v2, v1, s[18:19]
    global_load_short_d16_hi v3, v1, s[20:21]
    global_load_short_d16_hi v4, v1, s[22:23]
    global_load_short_d16_hi v5, v1, s[24:25]
    global_load_short_d16_hi v6, v1, s[26:27]
    global_load_short_d16_hi v7, v1, s[28:29]
    global_load_short_d16_hi v9, v10, s[32:33]
    """)
    srd(a, 44, 40, WS_BYTES)
    a(f"s_setprio {E('KG_PRIO', 2)}")
    PP, PW, WR, WI, CR, CI, KL = 12, 13, 14, 15, 16, 17, 18
    DPP = lambda j: f"row_newbcast:{j} row_mask:0xf bank_mask:0xf"
    k = Asm()
    k(f"""
    s_waitcnt vmcnt(7)
    v_mul_f32 v8, s13, v8
    v_exp_f32 v8, v8
    s_nop 0
    v_cvt_pk_bf16_f32 v8, v8, v8
    v_lshlrev_b32 v8, 16, v8                ; dt
    s_waitcnt vmcnt(5)
    v_mul_f32 v2, v8, v2
    v_mul_f32 v3, v8, v3
    v_mul_f32 v{PP}, s13, v2                ; p
    v_mul_f32 v{PW}, s14, v3                ; w
    v_rndne_f32 v3, v{PW}
    v_sub_f32 v{PW}, v{PW}, v3
    v_mul_f32 v20, {fl(256.0)}, v{PP}
    v_mul_f32 v21, {fl(256.0)}, v{PW}
    v_mul_f32 v22, {fl(2048.0)}, v{PP}
    v_mul_f32 v23, {fl(2048.0)}, v{PW}
    v_exp_f32 v20, v20
    v_exp_f32 v22, v22
    v_fract_f32 v23, v23
    v_cos_f32 v{CR}, v21
    v_sin_f32 v{CI}, v21
    v_cos_f32 v18, v23
    v_sin_f32 v19, v23
    s_waitcnt vmcnt(1)
    {"s_memtime s[64:65]" if DBG else ""}
    v_mul_f32 v4, v8, v4
    v_mul_f32 v5, v8, v5
    v_mul_f32 v{WR}, v6, v4
    v_mul_f32_e64 v{WI}, -v6, v5
    v_fma_f32 v{WR}, -v7, v5, v{WR}         ; Re W
    v_fma_f32 v{WI}, -v7, v4, v{WI}         ; -Im W
    v_mul_f32 v{CR}, v20, v{CR}
    v_mul_f32 v{CI}, v20, v{CI}
    v_mul_f32 v18, v{WR}, v18
    v_fmac_f32 v18, v{WI}, v19
    v_mul_f32 v{KL}, v22, v18               ; Re(W g^2048)
    """)
    red = [f"v_add_f32_dpp v{KL}, v{KL}, v{KL} {m}" for m in (
        "row_ror:1 row_mask:0xf bank_mask:0xf", "row_ror:2 row_mask:0xf bank_mask:0xf",
        "row_ror:4 row_mask:0xf bank_mask:0xf", "row_ror:8 row_mask:0xf bank_mask:0xf",
        "row_bcast:15 row_mask:0xa bank_mask:0xf", "row_bcast:31 row_mask:0xc bank_mask:0xf")]
    D0, D1, D2 = 20, 24, 28
    FX0, FX1, FX2, FY = 32, 36, 40, 44
    T = lambda q: 48 + q
    U = lambda q: 52 + q
    C = lambda q: 56 + q
    S = lambda q: 60 + q
    A_ = lambda q: 76 + q
    B_ = lambda q: 80 + q
    for ks in range(4):
        J = lambda q: 4 * ks + q

        def polar(X, fract):
            for q in range(4):
                k(f"v_mul_f32_dpp v{T(q)}, v{PP}, v{X} {DPP(J(q))}")
                k(f"v_mul_f32_dpp v{U(q)}, v{PW}, v{X} {DPP(J(q))}")
            if red:
                k(red.pop(0))
            for q in range(4):
                k(f"v_exp_f32 v{T(q)}, v{T(q)}")
                if fract:
                    k(f"v_fract_f32 v{U(q)}, v{U(q)}")
            for q in range(4):
                k(f"v_cos_f32 v{C(q)}, v{U(q)}")
                k(f"v_sin_f32 v{S(q)}, v{U(q)}")

        def mf(D, F):
            c = "0" if ks == 0 else v(D, 4)
            k(f"v_mfma_f32_16x16x32_bf16 {v(D,4)}, {v(F,4)}, {v(FY,4)}, {c}")

        polar(XY, False)
        for q in range(4):
            k(f"v_mul_f32_dpp v{A_(q)}, v{WR}, v{T(q)} {DPP(J(q))}")
            k(f"v_mul_f32_dpp v{B_(q)}, v{WI}, v{T(q)} {DPP(J(q))}")
        for q in range(4):
            k(f"v_mul_f32 v{T(q)}, v{A_(q)}, v{C(q)}")
            k(f"v_mul_f32 v{U(q)}, v{B_(q)}, v{C(q)}")
        for q in range(4):
            k(f"v_fmac_f32 v{T(q)}, v{B_(q)}, v{S(q)}")
            k(f"v_fma_f32 v{U(q)}, -v{A_(q)}, v{S(q)}, v{U(q)}")
        for q in range(4):
            k(f"v_cvt_pk_bf16_f32 v{FY+q}, v{T(q)}, v{U(q)}")
        polar(XC, True)
        for q in range(4):
            k(f"v_mul_f32 v{C(q)}, v{T(q)}, v{C(q)}")
            k(f"v_mul_f32 v{S(q)}, v{T(q)}, v{S(q)}")
        for q in range(4):
            k(f"v_cvt_pk_bf16_f32 v{FX2+q}, v{C(q)}, v{S(q)}")
        polar(XA, False)
        mf(D2, FX2)
        for q in range(4):
            k(f"v_mul_f32 v{C(q)}, v{T(q)}, v{C(q)}")
            k(f"v_mul_f32 v{S(q)}, v{T(q)}, v{S(q)}")
        for q in range(4):
            k(f"v_cvt_pk_bf16_f32 v{FX0+q}, v{C(q)}, v{S(q)}")
        for q in range(4):
            k(f"v_mul_f32_dpp v{T(q)}, v{CR}, v{C(q)} {DPP(J(q))}")
            k(f"v_mul_f32_dpp v{U(q)}, v{CI}, v{C(q)} {DPP(J(q))}")
        mf(D0, FX0)
        for q in range(4):
            k(f"v_fmac_f32_dpp v{T(q)}, -v{CI}, v{S(q)} {DPP(J(q))}")
            k(f"v_fmac_f32_dpp v{U(q)}, v{CR}, v{S(q)} {DPP(J(q))}")
        for q in range(4):
            k(f"v_cvt_pk_bf16_f32 v{FX1+q}, v{T(q)}, v{U(q)}")
        k("s_nop 1")
        mf(D1, FX1)
    k("""
    s_waitcnt vmcnt(0)
    v_cndmask_b32 v9, 0, v9, vcc
    """)
    m0, sg = [int(x) for x in os.environ.get("KG_MK", "800,400").split(",")]
    kl = splice(k.L, [m0 + sg * i for i in range(K1_NB)])
    a.L.extend(kl)
    nb = K1_NB - sum(1 for l in kl if l.strip() == "s_barrier")
    print("kgen cost", sum(cost(l) for l in k.L), "spare barriers", nb, file=sys.stderr)
    dbg_ts(a, 2)
    late = min(nb, E("KG_LATE", 0))
    for i in range(nb - late):
        a("s_barrier")
    a(f"""
    s_bitcmp1_b32 s15, 0
    s_cbranch_scc0 k1_kg_fin
    ds_write_b128 v{XAD}, {v(D2,4)} offset:2048
    ds_write_b128 v{XAD}, {v(D0,4)}
    v_mov_b32 v2, 1
    s_nop 2
    v_mov_b32 v{D1+1}, v{KL}
    ds_write_b128 v{XAD}, {v(D1,4)} offset:1024
    ds_write_b32 v{XAD}, v2 offset:3072
    """)
    for i in range(late):
        a("s_barrier")
    a("s_waitcnt lgkmcnt(0)")
    dbg_end(a, 0)
    a("s_endpgm")
    a.lab("k1_kg_fin")
    for i in range(late):
        a("s_barrier")
    a.lab("k1_kg_poll")
    a(f"""
    ds_read_b32 v2, v{XAD} offset:3072
    ds_read_b128 v[32:35], v{XAD}
    ds_read_b128 v[36:39], v{XAD} offset:1024
    ds_read_b128 v[40:43], v{XAD} offset:2048
    s_waitcnt lgkmcnt(0)
    v_readfirstlane_b32 s9, v2
    s_nop 0
    s_cmp_eq_u32 s9, 0
    s_cbranch_scc1 k1_kg_poll
    v_add_f32 v{D0}, v{D0}, v9
    v_mov_b32 v{D1+1}, v{KL}
    """)
    dbg_ts(a, 3)
    for j in range(12):
        if j != 7:
            a(f"v_add_f32 v{20+j}, v{20+j}, v{32+j}")
    a(f"""
    v_cvt_pk_bf16_f32 v12, v{D0}, v{D0+1}
    v_cvt_pk_bf16_f32 v13, v{D0+2}, v{D0+3}
    buffer_store_dwordx2 v[12:13], v{SB}, s[44:47], s11 offen{STFS[3]}
    v_cvt_pk_bf16_f32 v14, v{D1}, v{D1+2}
    v_cvt_pk_bf16_f32 v15, v{D2}, v{D2+1}
    v_cvt_pk_bf16_f32 v16, v{D2+2}, v{D2+3}
    v_cvt_pk_bf16_f32 v17, v{D1+1}, v{D1+1}
    buffer_store_dword v14, v{SA}, s[44:47], s11 offen offset:512{STFS[3]}
    buffer_store_dword v15, v{SC}, s[44:47], s11 offen offset:768{STFS[3]}
    buffer_store_dword v16, v{SD}, s[44:47], s11 offen offset:768{STFS[3]}
    buffer_store_dword v17, v{SE}, s[44:47], s11 offen offset:1280{STFS[3]}
    """)
    dbg_end(a, 0)
    a.lab("k1_end")
    a("s_endpgm")
    if E("K1_ORD", 0):
        i0, i1 = a.L.index("k1_gemm:"), a.L.index("k1_load:")
        a.L = a.L[:i0] + a.L[i1:] + a.L[i0:i1]
    return a, desc("k1_kernel", 160)


STF = os.environ.get("STF", "")
if STF:
    STF = " " + STF
STFS = [(" " + x if x else "") for x in os.environ.get("STFS", "sc0 sc1,sc0 sc1,sc0 sc1,sc0 sc1").split(",")]

WALK = E('K2_WALK', 0)
TP = 2080
CV_BASE = 64 * TP
CV_KS = 4160
CV_U = 8320
CV_CH = 12928
K2_FL = 163840 - 64
K2_LDS = 163840


def gen_k2():
    a = Asm()
    head(a, "k2_kernel")
    a(f"""
    s_cmp_ge_u32 s2, 256
    s_cbranch_scc1 k2_end
    """)
    dbg_start(a)
    a(f"""
    s_load_dwordx2 s[40:41], s[0:1], 112
    s_load_dwordx4 s[16:19], s[0:1], 88
    s_load_dwordx2 s[20:21], s[0:1], 0
    v_lshrrev_b32 v1, 6, v0
    v_and_b32 v0, 63, v0
    s_and_b32 s4, s2, 7
    v_readfirstlane_b32 s3, v1
    v_readfirstlane_b32 s94, v1
    s_lshr_b32 s5, s2, 3
    v_lshlrev_b32 v1, 4, v0
    s_lshl_b32 s6, s4, 2
    s_lshr_b32 s7, s5, 3
    s_add_u32 s6, s6, s7            ; head
    s_lshl_b32 s8, s6, 17
    s_add_u32 s8, s8, {KVI}
    s_mul_i32 s9, s3, {TP}
    s_lshl_b32 s10, s3, 11
    s_add_u32 s10, s10, s8
    s_mov_b32 m0, s9
    s_mov_b32 s46, {hex(WS_BYTES)}
    s_mov_b32 s47, 0x00020000
    s_cmp_ge_u32 s3, 8
    s_cbranch_scc1 k2_conv
    """)

    Q, IDX, KA, VA0, VA1 = 4, 2, 3, 28, 29
    KB = [8, 12]
    V0B = [16, 96]
    V1B = [20, 100]
    NEGM, O = 32, 80
    SB = [48, 64]
    FLV = 104
    a(f"""
    s_and_b32 s7, s5, 7
    s_lshl_b32 s7, s7, 3
    s_add_u32 s7, s7, s3            ; qt
    s_lshl_b32 s11, s6, 16
    s_lshl_b32 s12, s7, 10
    s_add_u32 s11, s11, s12
    s_add_u32 s11, s11, {QI}
    s_lshl_b32 s12, s7, 15
    s_lshl_b32 s13, s6, 10
    s_add_u32 s12, s12, s13
    s_add_u32 s12, s12, {OI}        ; O dest
    s_mov_b32 s24, 0
    v_mov_b32 v{IDX}, 0xdddddddd
    v_and_b32 v23, 15, v0
    v_lshrrev_b32 v24, 5, v0
    v_lshlrev_b32 v23, 4, v23
    v_lshl_add_u32 v30, v24, 8, v23
    v_add_u32 v30, 1024, v30
    v_add_u32 v31, 512, v30
    v_and_b32 v23, 16, v0
    v_cmp_eq_u32 vcc, 16, v23
    v_mov_b32 v24, 2064
    v_and_b32 v23, 27, v0
    v_mov_b32 v{FLV}, {K2_FL}
    v_cndmask_b32 v30, v30, v24, vcc
    v_cndmask_b32 v31, v31, v24, vcc
    v_cmp_eq_u32 vcc, 16, v23
    v_mov_b32 v24, 2048
    v_add_u32 v{KA}, s9, v1
    s_nop 0
    v_cndmask_b32 v30, v30, v24, vcc
    v_cndmask_b32 v31, v31, v24, vcc
    """)
    def zero_init():
        for j in range(4):
            a(f"v_mov_b32 v{V1B[1]+j}, 0")
        for j in range(8):
            a(f"v_mov_b32 v{SB[1]+8+j}, 0")
        for j in range(16):
            a(f"v_mov_b32 v{O+j}, 0")
    zero_init()
    if E("K2_PRIO", 1) == 1:
        a("""
        s_cmp_lt_u32 s3, 4
        s_cbranch_scc1 k2_np
        s_setprio 1
        """)
        a.lab("k2_np")
    a(f"""
    s_waitcnt lgkmcnt(0)
    s_mov_b32 s44, s40
    s_and_b32 s45, s41, 0xffff
    buffer_load_dwordx4 v1, s[44:47], s10 offen lds
    buffer_load_dwordx4 {v(Q,4)}, v1, s[44:47], s11 offen
    buffer_load_dwordx4 v1, s[44:47], s10 offen offset:1024 lds
    s_waitcnt vmcnt(1)
    ds_read_b128 {v(KB[0],4)}, v{KA}
    """)
    if DBG == 1:
        dbg_ts(a, 0)
    a(f"""
    s_waitcnt lgkmcnt(0)
    v_mfma_f32_32x32x16_bf16 {v(SB[0],16)}, {v(KB[0],4)}, {v(Q,4)}, 0
    s_nop 11
    v_max3_f32 v23, v{SB[0]}, v{SB[0]+1}, v{SB[0]+2}
    """)
    for j in range(3, 15, 2):
        a(f"v_max3_f32 v23, v23, v{SB[0]+j}, v{SB[0]+j+1}")
    a(f"v_max_f32 v23, v23, v{SB[0]+15}")
    a.lab("k2_start")
    a(f"""
    v_mov_b32 v24, v23
    v_mov_b32 v{KA}, v1
    v_mov_b32 v{VA0}, v30
    v_permlane32_swap_b32 v23, v24
    v_mov_b32 v{VA1}, v31
    s_mov_b32 s25, 0
    v_max_f32 v23, v23, v24
    """)
    a(f"v_sub_f32 v24, 0, v23")
    for j in range(0, 16, 2):
        a(f"v_pk_mov_b32 {v(NEGM+j,2)}, v[24:25], v[24:25] op_sel:[0,0]")
    a(f"""
    s_cmp_lg_u32 s24, 0
    s_cbranch_scc1 k2_nobar
    s_waitcnt vmcnt(0)
    s_barrier
    """)
    a.lab("k2_nobar")
    if DBG == 1:
        dbg_ts(a, 1)
    a(f"""
    ds_read_b128 {v(KB[0],4)}, v{KA}
    ds_read_b128 {v(KB[1],4)}, v{KA} offset:{TP}
    ds_read_b128 {v(V0B[0],4)}, v{VA0}
    ds_read_b128 {v(V1B[0],4)}, v{VA1}
    s_waitcnt lgkmcnt(3)
    v_mfma_f32_32x32x16_bf16 {v(SB[0],16)}, {v(KB[0],4)}, {v(Q,4)}, {v(NEGM,16)}
    s_nop 9
    """)
    a.lab("k2_loop")
    a(f"""
    s_bitcmp1_b32 0x0a, s25
    s_cbranch_scc1 k2_poll
    """)
    a.lab("k2_body")
    if DBG == 2:
        for k in range(7):
            a(f"s_mov_b32 s{64+2*k}, s{66+2*k}")
        a("s_memtime s[78:79]")
    U = 8
    PS = E("K2_PS", 46)
    for i in range(U):
        p, q = i % 2, (i + 1) % 2
        Sc, Sn = SB[p], SB[q]
        ex = lambda j: a(f"v_exp_f32 v{Sc+j}, v{Sc+j}")
        a.lab(f"k2_t{i}")
        ex(0); ex(1)
        a("s_waitcnt lgkmcnt(0)")
        a(f"v_smfmac_f32_32x32x32_bf16 {v(O,16)}, {v(V1B[q],4)}, {v(Sn+8,8)}, v{IDX}")
        a(f"ds_read_b128 {v(KB[p],4)}, v{KA} offset:{(i+2)*TP}")
        ex(2)
        a(f"ds_read_b128 {v(V0B[q],4)}, v{VA0} offset:{(i+1)*TP}")
        ex(3)
        a(f"ds_read_b128 {v(V1B[q],4)}, v{VA1} offset:{(i+1)*TP}")
        ex(4)
        a(f"v_mfma_f32_32x32x16_bf16 {v(Sn,16)}, {v(KB[q],4)}, {v(Q,4)}, {v(NEGM,16)}")
        for j in range(5, 10):
            ex(j)
        a(f"v_smfmac_f32_32x32x32_bf16 {v(O,16)}, {v(V0B[p],4)}, {v(Sc,8)}, v{IDX}")
        for j in range(10, 16):
            ex(j)
            if j == 11 and i == PS % U and E("K2_PRIO", 1) == 1:
                a(f"""
                s_cmp_lg_u32 s25, {PS // U}
                s_cbranch_scc1 k2_ps
                s_setprio 0
                """)
                a.lab("k2_ps")
            if i == U - 1:
                if j == 11:
                    a(f"v_add_u32 v{KA}, {U*TP}, v{KA}")
                if j == 12:
                    a(f"v_add_u32 v{VA0}, {U*TP}, v{VA0}")
                if j == 13:
                    a(f"v_add_u32 v{VA1}, {U*TP}, v{VA1}")
                    a("s_add_u32 s25, s25, 1")
                if j == 14:
                    a(f"s_cmp_lt_u32 s25, {64//U}")
    a(f"""
    s_cbranch_scc1 k2_loop
    {"s_cbranch_execz k2_cv_ret" if WALK else "s_nop 0"}
    v_smfmac_f32_32x32x32_bf16 {v(O,16)}, {v(V1B[1],4)}, {v(SB[1]+8,8)}, v{IDX}
    s_waitcnt lgkmcnt(0)
    s_nop 10
    v_mul_f32 v23, 0, v{O+8}
    """)
    if DBG == 1:
        dbg_ts(a, 4)
    for j in range(8):
        a(f"v_fma_f32 v23, 0, v{O+j}, v23")
    a(f"""
    v_add_f32 v23, v23, v{O+8}
    v_mov_b32 v24, {fl(2.0**100)}
    v_cmp_nlt_f32 vcc, v23, v24
    v_rcp_f32 v25, v{O+8}
    s_cmp_lg_u32 s24, 0
    s_cbranch_scc1 k2_store
    s_cmp_lg_u64 vcc, 0
    s_cbranch_scc1 k2_fallback
    """)
    a.lab("k2_store")
    for j in range(8):
        a(f"v_mul_f32 v{O+j}, v25, v{O+j}")
    for j in range(4):
        a(f"v_cvt_pk_bf16_f32 v{24+j}, v{O+2*j}, v{O+2*j+1}")
    a(f"buffer_store_dwordx4 v[24:27], v1, s[44:47], s12 offen{STF}")
    dbg_end(a, 1)
    a("s_endpgm")
    a.lab("k2_poll")
    a(f"""
    ds_read_b64 v[{FLV+2}:{FLV+3}], v{FLV}
    s_waitcnt lgkmcnt(0)
    v_readfirstlane_b32 s26, v{FLV+2}
    v_readfirstlane_b32 s27, v{FLV+3}
    s_cmp_eq_u32 s25, 1
    s_cselect_b32 s26, s26, s27
    s_cmp_lt_u32 s26, 4
    s_cbranch_scc1 k2_poll
    """)
    if DBG == 1:
        a("s_mov_b32 s68, s70")
        dbg_ts(a, 3)
    a("s_branch k2_body")
    a.lab("k2_fallback")
    a(f"""
    s_mov_b32 s24, 1
    s_mov_b32 s25, 0
    v_mov_b32 v23, 0xff800000
    v_add_u32 v{KA}, {63*TP}, v1
    """)
    zero_init()
    a.lab("k2_fb_loop")
    a(f"""
    ds_read_b128 {v(KB[0],4)}, v{KA}
    v_subrev_u32 v{KA}, {TP}, v{KA}
    s_waitcnt lgkmcnt(0)
    v_mfma_f32_32x32x16_bf16 {v(SB[0],16)}, {v(KB[0],4)}, {v(Q,4)}, 0
    s_nop 11
    """)
    for j in range(0, 16, 2):
        a(f"v_max3_f32 v23, v23, v{SB[0]+j}, v{SB[0]+j+1}")
    a(f"""
    s_add_u32 s25, s25, 1
    s_cmp_lt_u32 s25, 64
    s_cbranch_scc1 k2_fb_loop
    s_branch k2_start
    """)

    NC0 = E("K2_NC0", 0)
    FA = E("K2_FA", 8)

    def tile_dma():
        a(f"""
        s_add_u32 m0, m0, {4*TP}
        s_add_u32 s10, s10, 8192
        buffer_load_dwordx4 v1, s[44:47], s10 offen lds
        buffer_load_dwordx4 v1, s[44:47], s10 offen offset:1024 lds
        """)

    def bump(off):
        a(f"""
        s_mov_b64 exec, 1
        ds_add_u32 v2, v3 offset:{off}
        s_mov_b64 exec, -1
        """)

    def poll(off, name, after):
        BK = E("K2_BK", 4)
        a(f"s_setprio {E('K2_PP', 0)}")
        a(f"s_branch {name}_in")
        a.lab(name)
        for _ in range(BK):
            a("s_nop 15")
        a.lab(name + "_in")
        a(f"""
        ds_read_b32 v15, v2 offset:{off}
        s_waitcnt lgkmcnt(0)
        v_readfirstlane_b32 s26, v15
        s_cmp_lt_u32 s26, 4
        s_cbranch_scc1 {name}
        s_setprio {after}
        """)

    a.lab("k2_conv")
    a(f"""
    s_sub_u32 s3, s3, 8             ; j
    s_and_b32 s22, s3, 1            ; channel
    s_lshr_b32 s23, s3, 1           ; half
    s_mul_i32 s12, s22, {CV_CH}
    s_add_u32 s12, s12, {CV_BASE}
    v_mov_b32 v2, {K2_FL}
    v_mov_b32 v3, 1
    v_mov_b32 v8, 0
    v_mov_b32 v9, 0
    v_mov_b32 v10, 0
    v_mov_b32 v11, 0
    v_lshlrev_b32 v5, 3, v0
    v_add_u32 v6, s12, v1
    v_add_u32 v14, s12, v5
    s_cmp_ge_u32 s3, 2
    s_cbranch_scc1 k2_cv_i1
    ds_write_b64 v14, v[8:9] offset:{CV_U+4096}
    s_mov_b64 exec, 3
    ds_write_b128 v6, v[8:11]
    ds_write_b128 v6, v[8:11] offset:{CV_KS}
    v_add_u32 v4, v2, v1
    ds_write_b128 v4, v[8:11]
    s_mov_b64 exec, -1
    s_branch k2_cv_i2
    """)
    a.lab("k2_cv_i1")
    a(f"""
    s_lshl_b32 s13, s22, 4
    v_mul_u32_u24 v4, {TP}, v0
    s_cmp_eq_u32 s22, 0
    s_cselect_b32 s14, 0x3f803f80, 0
    v_add_u32 v4, s13, v4
    v_mov_b32 v8, s14
    v_mov_b32 v9, s14
    v_mov_b32 v10, s14
    v_mov_b32 v11, s14
    ds_write_b128 v4, v[8:11] offset:2048
    """)
    a.lab("k2_cv_i2")
    a(f"""
    s_lshl_b32 s6, s4, 6
    s_lshl_b32 s7, s5, 1
    s_add_u32 s6, s6, s7            ; d0
    s_add_u32 s11, s6, s22
    s_mul_i32 s11, s11, {KD_PITCH}
    s_add_u32 s11, s11, {KD}
    v_lshlrev_b32 v4, 2, v0
    v_lshlrev_b32 v7, 5, v0
    v_add_u32 v7, s12, v7
    v_lshlrev_b32 v12, 13, v0       ; u voffset
    s_lshl_b32 s13, s3, 19
    s_lshl_b32 s14, s6, 1
    s_add_u32 s13, s13, s14         ; u soffset
    s_add_u32 s27, s13, 4096
    s_mov_b32 s14, 0x01000100
    s_mov_b32 s15, 0x03020302
    s_mov_b32 s28, 0x05040302
    s_mov_b32 s29, 0x05040100
    s_mov_b32 s30, 0x07060302
    s_waitcnt lgkmcnt(0)
    s_mov_b32 s44, s40
    s_and_b32 s45, s41, 0xffff
    buffer_load_dwordx4 v1, s[44:47], s10 offen lds
    buffer_load_dwordx4 v1, s[44:47], s10 offen offset:1024 lds
    """)
    for i in range(NC0):
        tile_dma()
    if WALK:
        ent = [int(x) for x in os.environ.get("K2_ENT", "0,2,4,6").split(",")]
        a(f"""
        v_mov_b32 v28, 0
        v_mov_b32 v29, 0
        v_mov_b32 v30, 0
        v_mov_b32 v31, 0
        v_mov_b32 v{FLV}, 0
        s_mov_b32 s24, 1
        s_mov_b32 s25, 7
        s_mov_b64 exec, 0
        """)
        for j in range(4):
            tgt = f"k2_t{ent[j]}" if ent[j] < 8 else "k2_cv_ret"
            if j < 3:
                a(f"""
                s_cmp_eq_u32 s3, {j}
                s_cbranch_scc1 {tgt}
                """)
            else:
                a(f"s_branch {tgt}")
        a.lab("k2_cv_ret")
        a("s_mov_b64 exec, -1")
    srd(a, 52, 18, 2048 * 1024 * 2)
    srd(a, 48, 16, 512 * 512 * 2)
    srd(a, 56, 20, 2048 * 512 * 2)
    if E("K2_DL", 1):
        a(f"""
        s_add_u32 s31, s10, {8192*(FA-NC0)}
        s_add_u32 s33, s10, {8192*(13-NC0)}
        .p2align 7
        """)
    a(f"""
    s_waitcnt vmcnt({2*NC0})
    s_barrier
    s_setprio {E('K2_CP0', 2)}
    """)
    if E("K2_DL", 1):
        for nm, lim in (("k2_dl0", 31), ("k2_dl1", 33)):
            a.lab(nm)
            a(f"""
            s_add_u32 m0, m0, {4*TP}
            s_add_u32 s10, s10, 8192
            buffer_load_dwordx4 v1, s[44:47], s10 offen lds
            s_cmp_lt_u32 s10, s{lim}
            buffer_load_dwordx4 v1, s[44:47], s10 offen offset:1024 lds
            s_cbranch_scc1 {nm}
            """)
            if lim == 31:
                a(f"s_waitcnt vmcnt({2*(FA-4)})")
                bump(0)
    else:
      for i in range(NC0, 13):
        tile_dma()
        if i + 1 == FA:
            a(f"s_waitcnt vmcnt({2*(FA-4)})")
            bump(0)
    UR = 64
    a(f"""
    s_cmp_lg_u32 s23, 0
    s_cbranch_scc1 k2_cv_l1
    buffer_load_dwordx3 v[72:74], v5, s[44:47], s11 offen
    buffer_load_dwordx2 v[76:77], v4, s[44:47], s11 offen offset:512
    buffer_load_dwordx2 v[78:79], v4, s[44:47], s11 offen offset:768
    s_waitcnt vmcnt(3)
    s_branch k2_cv_l2
    """)
    a.lab("k2_cv_l1")
    a(f"""
    buffer_load_dwordx2 v[80:81], v4, s[44:47], s11 offen offset:1024
    s_waitcnt vmcnt(1)
    """)
    a.lab("k2_cv_l2")
    bump(4)
    dbg_ts(a, 0)
    for e in range(8):
        a(f"buffer_load_dword v{UR+e}, v12, s[56:59], s{13 if e < 4 else 27} offen offset:{(e&3)*1024}")
    a(f"""
    s_waitcnt vmcnt(8)
    s_cbranch_scc1 k2_cv_e1
    """)
    EE = lambda d, r: a(f"v_perm_b32 v{d}, v{r}, v{r}, s14")
    OO = lambda d, r: a(f"v_perm_b32 v{d}, v{r}, v{r}, s15")
    EO = lambda d, r: a(f"v_mov_b32 v{d}, v{r}")
    OE = lambda d, r: a(f"v_perm_b32 v{d}, v{r+1}, v{r}, s28")
    FF = lambda d, r: a(f"v_perm_b32 v{d}, v{r+1}, v{r+1}, s14")
    a(f"ds_write_b64 v14, v[72:73] offset:32")
    OE(8, 72)
    OE(9, 73)
    a(f"ds_write_b64 v14, v[8:9] offset:{32+CV_KS}")
    EE(24, 76); OE(25, 76); EO(26, 76); FF(27, 76)
    a(f"ds_write_b64 v14, v[24:25] offset:{32+512}")
    a(f"ds_write_b64 v14, v[26:27] offset:{32+512+CV_KS}")
    for d, f in zip(range(16, 24), (EE, EO, OO, FF, EE, OO, OE, FF)):
        f(d, 78)
    a(f"ds_write_b128 v6, v[16:19] offset:{32+1024}")
    a(f"ds_write_b128 v6, v[20:23] offset:{32+1024+CV_KS}")
    a(f"""
    v_lshlrev_b32 v28, 16, v72
    s_mov_b64 exec, 1
    ds_write_b32 v6, v28 offset:{CV_KS+28}
    s_mov_b64 exec, -1
    s_branch k2_cv_e2
    """)
    a.lab("k2_cv_e1")
    for d, f in zip(range(24, 40), (EE, EE, EO, OO, OO, OO, FF, FF, EE, EE, OO, OO, OO, OE, FF, FF)):
        f(d, 80)
    a(f"ds_write_b128 v7, v[24:27] offset:{32+2048}")
    a(f"ds_write_b128 v7, v[28:31] offset:{32+2048+16}")
    a(f"ds_write_b128 v7, v[32:35] offset:{32+2048+CV_KS}")
    a(f"ds_write_b128 v7, v[36:39] offset:{32+2048+16+CV_KS}")
    a.lab("k2_cv_e2")
    AF, BF, AC = 32, 64, 96
    a(f"""
    s_lshl_b32 s13, s3, 10
    s_sub_u32 s13, {CV_BASE + CV_U + 4080}, s13
    v_sub_u32 v8, s13, v1
    v_and_b32 v13, 15, v0           ; r / c
    v_lshrrev_b32 v14, 4, v0        ; g
    v_add_u32 v15, 1, v13
    v_lshrrev_b32 v16, 1, v15
    v_lshl_add_u32 v16, v14, 2, v16
    v_lshlrev_b32 v16, 2, v16
    v_and_b32 v15, 1, v15           ; r even
    v_mul_u32_u24 v15, {CV_KS}, v15
    s_lshl_b32 s13, s23, 8
    s_add_u32 s13, s13, s12
    v_add3_u32 v4, v15, v16, s13
    v_add_u32 v5, 1024, v4
    v_add_u32 v6, 2048, v4
    v_add_u32 v7, 3072, v4
    v_lshlrev_b32 v15, 5, v13
    v_lshlrev_b32 v16, 4, v14
    v_sub_u32 v12, v16, v15
    s_add_u32 s13, s13, {CV_U + 480}
    v_add_u32 v12, s13, v12
    v_lshlrev_b32 v13, 15, v13
    v_lshl_add_u32 v13, v14, 13, v13
    s_lshl_b32 s11, s5, 2
    s_add_u32 s11, s11, s3
    s_lshl_b32 s11, s11, 12
    v_lshlrev_b32 v9, 6, v0
    s_waitcnt vmcnt(0)
    buffer_load_dword v10, v9, s[48:51], s11 offen
    """)
    dbg_ts(a, 1)
    for d in range(4):
        a(f"v_perm_b32 v{16+d}, v{UR+6-2*d}, v{UR+7-2*d}, s29")
    for d in range(4):
        a(f"v_perm_b32 v{20+d}, v{UR+6-2*d}, v{UR+7-2*d}, s30")
    a(f"""
    ds_write_b128 v8, v[16:19]
    ds_write_b128 v8, v[20:23] offset:{CV_CH}
    s_waitcnt lgkmcnt(0)
    """)
    bump(8)
    poll(8, "k2_pc", E("K2_CPRIO", 0))
    dbg_ts(a, 2)
    if E("X_NOCONV", 0):
        a("s_branch k2_cv_out")
    PACE = E("K2_PACE", -1)
    for it in range(4):
        for m in range(8):
            base = 4 + m // 2
            o = 128 * (m & 1) + 16 * it
            a(f"ds_read2_b32 {v(AF+4*m,2)}, v{base} offset0:{o} offset1:{o+1}")
            a(f"ds_read2_b32 {v(AF+4*m+2,2)}, v{base} offset0:{o+2} offset1:{o+3}")
            a(f"ds_read_b128 {v(BF+4*m,4)}, v12 offset:{512*(7-m)+64*it}")
        for t in range(8):
            a(f"s_waitcnt lgkmcnt({min(15, 3*(7-t))})")
            prs = [(m, kk) for m in range(t + 1) for kk in range(t + 1) if max(m, kk) == t and m + kk <= 7]
            prs.sort(key=lambda x: (x[0] < x[1], x[0] + x[1]))
            for m, kk in prs:
                d = v(AC + 4 * (m + kk), 4)
                first = it == 0 and (m, kk) == min([(x, m + kk - x) for x in range(m + kk + 1)], key=lambda y: (max(y), y[0] < y[1]))
                a(f"v_mfma_f32_16x16x32_bf16 {d}, {v(AF+4*m,4)}, {v(BF+4*kk,4)}, {'0' if first else d}")
                if PACE >= 0:
                    a(f"s_nop {PACE}")
    dbg_ts(a, 3)
    bump(12)
    a(f"""
    v_add_u32 v4, {CV_BASE}, v1
    s_lshl_b32 s8, s3, 20
    s_lshl_b32 s9, s6, 1
    s_add_u32 s8, s8, s9
    s_add_u32 s9, s8, {256*2048}
    s_add_u32 s10, s8, 4096
    s_add_u32 s11, s9, 4096
    """)
    poll(12, "k2_pd", E("K2_CP0", 2))
    a(f"""
    s_cmp_eq_u32 s3, 1
    s_cbranch_scc1 k2_cx1
    s_cmp_eq_u32 s3, 2
    s_cbranch_scc1 k2_cx2
    s_cmp_eq_u32 s3, 3
    s_cbranch_scc1 k2_cx3
    """)
    for w in range(4):
        a.lab(f"k2_cx{w}")
        for o in range(4):
            if o == w:
                continue
            k = w if w < o else w - 1
            a(f"ds_write_b128 v4, {v(AC+8*o,4)} offset:{(3*o+k)*2048}")
            a(f"ds_write_b128 v4, {v(AC+8*o+4,4)} offset:{(3*o+k)*2048+1024}")
        a("s_waitcnt lgkmcnt(0)")
        bump(16)
        poll(16, f"k2_pe{w}", E("K2_CP0", 2))
        regs = {w: AC + 8 * w}
        for sw in range(4):
            if sw == w:
                continue
            k = sw if sw < w else sw - 1
            regs[sw] = 32 + 8 * k
            a(f"ds_read_b128 {v(32+8*k,4)}, v4 offset:{(3*w+k)*2048}")
            a(f"ds_read_b128 {v(36+8*k,4)}, v4 offset:{(3*w+k)*2048+1024}")
        a("s_waitcnt lgkmcnt(0)")
        for ch in range(2):
            for jj in range(0, 8, 2):
                a(f"v_pk_add_f32 {v(64+8*ch+jj,2)}, {v(regs[ch]+jj,2)}, {v(regs[ch+2]+jj,2)}")
        if w < 3:
            a("s_branch k2_cv_out")
    a.lab("k2_cv_out")
    dbg_ts(a, 4)
    for jj in range(8):
        a(f"v_cvt_pk_bf16_f32 v{16+jj}, v{64+jj}, v{72+jj}")
    for cb in range(2):
        for jj in range(4):
            so = 8 + cb + 2 * (jj // 2)
            a(f"buffer_store_dword v{16+4*cb+jj}, v13, s[52:55], s{so} offen offset:{(jj%2)*2048}")
    dbg_end(a, 1)
    a("@touch k3")
    a.lab("k2_end")
    a("s_endpgm")
    return a, desc("k2_kernel", 128)


K3_LDS = 131072


def gen_k3():
    a = Asm()
    head(a, "k3_kernel")
    a(f"""
    s_cmp_ge_u32 s2, 256
    s_cbranch_scc1 k3_end
    """)
    dbg_start(a)
    a(f"""
    s_load_dwordx2 s[40:41], s[0:1], 112
    s_load_dwordx4 s[16:19], s[0:1], 88
    v_lshrrev_b32 v1, 6, v0
    v_and_b32 v0, 63, v0
    s_and_b32 s4, s2, 7
    v_readfirstlane_b32 s3, v1
    v_readfirstlane_b32 s94, v1
    s_lshr_b32 s5, s2, 3
    v_lshlrev_b32 v1, 4, v0
    s_lshl_b32 s6, s4, 2
    s_lshr_b32 s7, s5, 3
    s_add_u32 s6, s6, s7            ; rt
    s_and_b32 s7, s5, 7             ; ct
    s_and_b32 s10, s3, 1
    s_bfe_u32 s11, s3, 0x10001
    s_cmp_ge_u32 s3, 4
    s_cbranch_scc1 k3_mm
    s_lshl_b32 s12, s3, 11
    s_lshl_b32 s8, s6, 16
    s_lshl_b32 s9, s11, 15
    s_add_u32 s8, s8, s9
    s_lshl_b32 s9, s10, 11
    s_add_u32 s8, s8, s9
    s_add_u32 s8, s8, {OI}          ; O base
    v_lshrrev_b32 v2, 3, v0         ; row
    v_and_b32 v3, 7, v0
    v_bfe_u32 v4, v0, 4, 1
    v_lshlrev_b32 v4, 2, v4
    v_xor_b32 v3, v3, v4
    v_lshlrev_b32 v2, 10, v2
    v_lshl_add_u32 v2, v3, 4, v2
    v_add_u32 v3, {8192-1024}, v2
    s_lshl_b32 s9, s7, 7
    s_lshl_b32 s13, s3, 14
    s_add_u32 s9, s9, s13
    s_and_b32 s60, s7, {E("K3_ROT", 0)}
    s_mov_b32 s46, {hex(WS_BYTES)}
    s_mov_b32 s47, 0x00020000
    s_mov_b32 s50, {hex(512*512*2)}
    s_mov_b32 s51, 0x00020000
    s_waitcnt lgkmcnt(0)
    s_mov_b32 s44, s40
    s_and_b32 s45, s41, 0xffff
    s_mov_b32 s48, s16
    s_and_b32 s49, s17, 0xffff
    """)

    def chunk(c):
        a(f"""
        s_add_u32 m0, s12, {c*16384}
        s_lshl_b32 s14, s60, 12
        s_add_u32 s14, s14, s8
        buffer_load_dwordx4 v1, s[44:47], s14 offen lds
        buffer_load_dwordx4 v1, s[44:47], s14 offen offset:1024 lds
        s_add_u32 m0, s12, {c*16384 + 8192}
        s_lshl_b32 s14, s60, 16
        s_add_u32 s14, s14, s9
        buffer_load_dwordx4 v2, s[48:51], s14 offen lds
        buffer_load_dwordx4 v3, s[48:51], s14 offen offset:1024 lds
        s_add_u32 s60, s60, 1
        s_and_b32 s60, s60, 7
        """)

    LA = E("K3_LA", 4)
    for c in range(LA):
        chunk(c)
    dbg_ts(a, 0)
    for b in range(8):
        a(f"s_waitcnt vmcnt({4*(min(8, b+LA) - b - 1)})")
        a("s_barrier")
        if b + LA < 8:
            chunk(b + LA)
    dbg_end(a, 2)
    a("s_endpgm")

    a.lab("k3_mm")
    a(f"""
    s_lshl_b32 s12, s10, 12
    v_add_u32 v2, s12, v1
    v_lshrrev_b32 v5, 5, v0         ; h
    v_bfe_u32 v3, v0, 2, 2
    v_lshl_add_u32 v3, v5, 2, v3    ; row = 4h + (i>>2)
    v_lshlrev_b32 v3, 7, v3
    v_bfe_u32 v4, v0, 3, 1
    v_xor_b32 v4, s11, v4
    v_lshl_add_u32 v3, v4, 6, v3
    v_and_b32 v4, 1, v0
    v_lshl_add_u32 v3, v4, 5, v3    ; + 16*(c&1) cols
    v_bfe_u32 v4, v0, 4, 1
    v_lshl_add_u32 v3, v4, 4, v3    ; + 8G cols
    v_bfe_u32 v4, v0, 1, 1
    v_lshl_add_u32 v3, v4, 3, v3    ; + 4*(c>>1) cols
    v_add_u32 v3, 8192, v3
    v_add_u32 v6, 65536, v2
    v_add_u32 v7, 65536, v3
    s_lshl_b32 s12, s6, 1
    s_add_u32 s12, s12, s10
    s_lshl_b32 s12, s12, 16         ; (2rt+qh)*32*2048
    s_lshl_b32 s13, s7, 1
    s_add_u32 s13, s13, s11
    s_lshl_b32 s13, s13, 6
    s_add_u32 s12, s12, s13
    s_add_u32 s12, s12, 1024
    s_add_u32 s13, s12, {16*2048}
    s_lshl_b32 s14, s3, 12
    v_and_b32 v4, 31, v0
    v_mul_u32_u24 v4, 80, v4
    v_lshl_add_u32 v4, v5, 5, v4
    v_add_u32 v4, s14, v4
    v_lshrrev_b32 v5, 2, v0
    v_and_b32 v9, 3, v0
    v_lshlrev_b32 v9, 4, v9
    v_lshl_add_u32 v8, v5, 11, v9
    v_mul_u32_u24 v5, 80, v5
    v_add3_u32 v5, v5, v9, s14
    s_waitcnt lgkmcnt(0)
    """)
    srd(a, 52, 18, 2048 * 1024 * 2)
    if DBG:
        srd(a, 44, 40, WS_BYTES)
    D = 80
    for c in range(8):
        a("s_barrier")
        if c in (0, 4, 7):
            dbg_ts(a, {0: 1, 4: 2, 7: 3}[c])
        F = 16 + 32 * (c % 2)
        ob, wb = (2, 3) if c < 4 else (6, 7)
        so = (c % 4) * 16384
        for i in range(4):
            a(f"ds_read_b128 {v(F+8*i,4)}, v{ob} offset:{so + i*1024}")
            a(f"ds_read_b64_tr_b16 {v(F+8*i+4,2)}, v{wb} offset:{so + i*2048}")
            a(f"ds_read_b64_tr_b16 {v(F+8*i+6,2)}, v{wb} offset:{so + i*2048 + 1024}")
        for i in range(4):
            a(f"s_waitcnt lgkmcnt({9-3*i})")
            cc = "0" if (c == 0 and i == 0) else v(D, 16)
            a(f"v_mfma_f32_32x32x16_bf16 {v(D,16)}, {v(F+8*i+4,4)}, {v(F+8*i,4)}, {cc}")
    a("s_nop 11")
    dbg_ts(a, 4)
    for j in range(4):
        a(f"v_cvt_pk_bf16_f32 v{16+j}, v{D+2*j}, v{D+2*j+1}")
    a("ds_write_b128 v4, v[16:19]")
    for j in range(4, 8):
        a(f"v_cvt_pk_bf16_f32 v{16+j}, v{D+2*j}, v{D+2*j+1}")
    a(f"""
    ds_write_b128 v4, v[20:23] offset:16
    ds_read_b128 v[24:27], v5
    ds_read_b128 v[28:31], v5 offset:{16*80}
    s_waitcnt lgkmcnt(1)
    buffer_store_dwordx4 v[24:27], v8, s[52:55], s12 offen
    s_waitcnt lgkmcnt(0)
    buffer_store_dwordx4 v[28:31], v8, s[52:55], s13 offen
    """)
    dbg_end(a, 2)
    a.lab("k3_end")
    a("s_endpgm")
    return a, desc("k3_kernel", 96)


def isize(l):
    t = l.split(";")[0].strip()
    if not t or t.endswith(":") or t.startswith((".", "@")):
        return 0
    op = t.split()[0]
    if op.startswith(("buffer_", "global_", "ds_", "v_mfma", "v_smfmac", "v_pk", "v_cvt_pk", "v_lshl_", "v_bfe", "v_fma_", "v_max3", "v_perm_",
                      "v_add3", "s_load", "s_mem", "v_readlane")) or "_dpp" in op or "_e64" in op:
        return 8
    import re
    for m in re.findall(r"[ ,](0x[0-9a-f]+|\d+)(?=,|$)", t if not op.startswith(("s_nop", "s_setprio")) else ""):
        if int(m, 0) > 64:
            return 8
    return 4


def add_stops(a, k, ranges, sp, tgt='end', first=True):
    out, names, on, acc = [], [], False, 0
    for l in a.L:
        if any(l == r[1] + ":" for r in ranges):
            on = False
        if on and acc >= sp and isize(l):
            names.append(f"{k}_s{len(names)}")
            out += [names[-1] + ":", f"    s_cbranch_execz {k}_{tgt}"]
            acc = 4
        out.append(l)
        acc += isize(l)
        if any(l == r[0] + ":" for r in ranges):
            on, acc = True, (sp if first else 0)
    a.L = out
    return names


def add_touch(a, k, names):
    i = a.L.index(f"    @touch {k}")
    L = []
    if names:
        assert len(names) <= 64, len(names)
        L = [f"s_bfe_u32 s92, s2, {0x30003 if len(names) <= 32 else 0x40003}", "s_and_b32 s93, s94, 3", "s_lshl2_add_u32 s92, s92, s93", "s_mov_b64 exec, 0"]
        for j, n in enumerate(names):
            L += [f"s_cmp_eq_u32 s92, {j}", f"s_cbranch_scc1 {n}"]
        if k != "k1":
            L.append("s_endpgm")
        else:
            assert a.L[i + 1] == "k1_ret:" and a.L[i + 2].strip() == "s_mov_b64 exec, -1"
    a.L[i:i+1] = ["    " + l for l in L]


def build():
    ks = [gen_k1(), gen_k2(), gen_k3()]
    sp = E("TCH", 256)
    n2 = add_stops(ks[1][0], "k2", [("k2_kernel", "k2_fallback"), ("k2_conv", os.environ.get("TCH_E", "k2_cv_e1"))], sp) if sp else []
    n3 = add_stops(ks[2][0], "k3", [("k3_kernel", "k3_end")], sp) if sp else []
    print("stops", len(n2), len(n3), file=sys.stderr)
    s1 = E("TCH1", 256)
    n1 = add_stops(ks[0][0], "k1", [("k1_ret", "k1_end")], s1, "ret", False) if s1 else []
    if E("TCH1R", 1):
        L = ks[0][0].L
        il = L.index("k1_load:")
        n1 = [n for n in n1 if L.index(n + ":") > il] + [n for n in n1 if L.index(n + ":") < il]
    print("stops1", len(n1), file=sys.stderr)
    add_touch(ks[0][0], "k1", n1)
    add_touch(ks[0][0], "k2", n2)
    add_touch(ks[1][0], "k3", n3)
    hdr = [
        "; generated by work/gen.py",
        f"; @launch kernel=k1_kernel grid=(256,1,1) block=(768,1,1) lds={K1_LDS}",
        f"; @launch kernel=k2_kernel grid=(256,1,1) block=(768,1,1) lds={K2_LDS}",
        f"; @launch kernel=k3_kernel grid=(256,1,1) block=(512,1,1) lds={K3_LDS}",
    ]
    out = "\n".join(hdr) + "\n"
    out += '.amdgcn_target "amdgcn-amd-amdhsa--gfx950"\n.text\n'
    for a, d in ks:
        out += a.text()
    out += '.section .rodata,"a"\n'
    for a, d in ks:
        out += d
    return out


if __name__ == "__main__":
    path = sys.argv[1] if len(sys.argv) > 1 else f"cdna_kernels/{NAME}.s"
    open(path, "w").write(build())
    print("wrote", path)
```

```python
from genlib import *

E = lambda k, d: int(os.environ.get(k, str(d)))

K1_XB = 0
K1_RING = 8192
K1_LDS = K1_RING + 9 * 16384
K1_UNITS = [[('x', 0), (0, 0)], [(1, 0), (2, 0)], [('x', 1), (0, 1)], [(1, 1), (2, 1)],
            [(0, 2), ('x', 2)], [('x', 3), (0, 3)]]
K1_UNITS += [[[(1, 2)], [(1, 3)], [(2, 2)], [(2, 3)]], [[(1, 2), (1, 3)], [(2, 2)], [(2, 3)]],
             [[(1, 2), (1, 3)], [(2, 2), (2, 3)]]][E("K1_TAIL", 1)]
K1_NB = len(K1_UNITS)
K1_PIECES = [(pc, u) for u, ps in enumerate(K1_UNITS) for pc in ps]
K1_AREA = {pc: i % 9 for i, (pc, u) in enumerate(K1_PIECES)}
K1_ISSUE = {-1: range(E("K1_LA", 5))}
_n = E("K1_LA", 5)
for _b in range(K1_NB):
    _lim = {0: 9, 1: 9, 2: 12, 3: 13}.get(_b, 16)
    K1_ISSUE[_b] = list(range(_n, min(_n + 2, _lim)))
    _n += len(K1_ISSUE[_b])
    assert all(K1_PIECES[i][1] > _b for i in K1_ISSUE[_b])
assert _n == 16
K1_STEPS = [(pc[0], pc[1], k8, u) for u, ps in enumerate(K1_UNITS) for pc in ps if pc[0] != 'x' for k8 in range(8)]
K1_UNIT = [min(g for g, st in enumerate(K1_STEPS) if st[3] == u) for u in range(K1_NB)]
K1_LAST = [max(g for g, st in enumerate(K1_STEPS) if st[0] == sg) for sg in range(3)]


def cost(line):
    t = line.strip()
    if t.startswith(("v_exp", "v_sin", "v_cos", "v_rcp", "v_mfma")):
        return 8
    if t.startswith(("v_cvt_pk", "v_fma_", "v_pk")) or "_dpp" in t:
        return 5
    return 4


def splice(lines, marks):
    out, acc, k = [], 0, 0
    nbar = len(marks)
    for l in lines:
        if k < nbar and acc >= marks[k]:
            if DBG and k == 0:
                out.append("    s_memtime s[66:67]")
            out.append("    s_barrier")
            k += 1
        out.append(l)
        acc += cost(l)
    assert k >= 1
    return out


def gen_k1():
    a = Asm()
    head(a, "k1_kernel")
    a(f"""
    s_cmp_ge_u32 s2, 256
    s_cbranch_scc1 k1_end
    """)
    dbg_start(a)
    a(f"""
    s_load_dwordx8 s[32:39], s[0:1], 64
    s_load_dwordx16 s[16:31], s[0:1], 0
    s_load_dwordx2 s[40:41], s[0:1], 112
    v_lshrrev_b32 v1, 6, v0
    v_and_b32 v0, 63, v0
    s_and_b32 s4, s2, 7             ; xcd
    v_readfirstlane_b32 s3, v1
    v_readfirstlane_b32 s94, v1
    s_lshr_b32 s5, s2, 3            ; idx
    s_and_b32 s15, s3, 3
    s_lshr_b32 s14, s3, 2
    s_cmp_eq_u32 s14, 1
    s_cbranch_scc1 k1_kgen
    s_and_b32 s6, s4, 1
    s_lshl_b32 s6, s6, 2
    s_and_b32 s7, s5, 3
    s_add_u32 s6, s6, s7
    s_lshr_b32 s7, s4, 1
    s_lshl_b32 s7, s7, 3
    s_lshr_b32 s8, s5, 2
    s_add_u32 s7, s7, s8
    s_and_b32 s12, s15, 1           ; rb
    s_lshr_b32 s13, s15, 1          ; hb
    s_lshl_b32 s8, s7, 1
    s_add_u32 s8, s8, s12
    s_lshl_b32 s12, s12, 12
    v_lshrrev_b32 v13, 5, v0        ; h
    s_cmp_eq_u32 s14, {2 if E("K1_ORD", 0) else 0}
    s_cbranch_scc1 {"k1_gemm" if E("K1_ORD", 0) else "k1_load"}
    """)
    a.lab("k1_gemm")
    a("@touch k1")
    a.lab("k1_ret")
    if E("TCH1", 256):
        a("s_mov_b64 exec, -1")

    DP = E("K1_DP", 6)
    XB0, WB0 = 8, 16
    XF, WF = 20, 36
    XR = 96
    ACC = [64, 80, 20]
    assert DP <= 6
    a(f"""
    v_and_b32 v7, 31, v0            ; s
    v_bfe_u32 v14, v0, 1, 3         ; (s>>1)&7
    v_xor_b32 v14, v14, v13         ; h ^ f
    v_lshlrev_b32 v15, 7, v7
    s_add_u32 s12, s12, {K1_RING}
    v_add_u32 v15, s12, v15         ; rb*4096 + s*128
    v_lshl_add_u32 v8, v14, 4, v15
    v_xor_b32 v9, 32, v8
    v_xor_b32 v10, 64, v8
    v_xor_b32 v11, 96, v8
    v_lshlrev_b32 v16, 10, v13      ; h*1024
    v_bfe_u32 v14, v0, 2, 2         ; r
    v_lshl_add_u32 v16, v14, 7, v16
    v_bfe_u32 v14, v0, 3, 1         ; r>>1
    v_xor_b32 v14, s13, v14
    v_lshl_add_u32 v16, v14, 6, v16
    v_bfe_u32 v14, v0, 4, 1
    v_lshl_add_u32 v16, v14, 5, v16
    v_and_b32 v14, 3, v0
    v_lshl_add_u32 v16, v14, 3, v16
    v_add_u32 v16, {K1_RING}, v16
    v_add_u32 v12, 65536, v8
    v_add_u32 v13, 65536, v9
    v_add_u32 v14, 65536, v10
    v_add_u32 v15, 65536, v11
    v_add_u32 v17, 65536, v16
    v_add_u32 v18, 131072, v16
    s_lshl_b32 s6, s6, 1
    s_add_u32 s6, s6, s13
    """)

    def reads(g):
        seg, p, k8, u = K1_STEPS[g]
        L = []
        if seg == 0:
            ar = K1_AREA[('x', p)]
            L.append(f"ds_read_b128 {v(XR+32*(p==3)+4*k8,4)}, v{XB0 + 4*(ar//4) + k8%4} offset:{(ar%4)*16384 + (k8//4)*8192}")
        ar = K1_AREA[(seg, p)]
        for half in range(2):
            L.append(f"ds_read_b64_tr_b16 {v(WF+4*(g%(DP+1))+2*half,2)}, v{WB0 + ar//4} offset:{(ar%4)*16384 + k8*2048 + half*512}")
        return L

    def mfma(g):
        seg, p, k8, u = K1_STEPS[g]
        x, w, d = v(XR + 32 * (p == 3) + 4 * k8, 4), v(WF + 4 * (g % (DP + 1)), 4), v(ACC[seg], 16)
        c = "0" if p == 0 and k8 == 0 else d
        return f"v_mfma_f32_32x32x16_bf16 {d}, {w}, {x}, {c}" if seg < 2 else f"v_mfma_f32_32x32x16_bf16 {d}, {x}, {w}, {c}"

    a(f"""
    s_lshl_b32 s10, s6, 17          ; fg*2*65536
    s_lshl_b32 s11, s8, 10
    s_add_u32 s10, s10, s11
    s_add_u32 s10, s10, {QI}        ; Q head A
    s_add_u32 s11, s10, 65536       ; Q head B
    s_lshl_b32 s12, s6, 18          ; fg*2*131072
    s_lshl_b32 s13, s8, 11
    s_add_u32 s12, s12, s13
    s_add_u32 s12, s12, {KVI}
    s_add_u32 s13, s12, 131072
    v_lshlrev_b32 v1, 4, v0         ; lane*16
    v_and_b32 v2, 0x33, v0
    v_bfe_u32 v3, v0, 2, 1
    v_lshl_or_b32 v2, v3, 3, v2
    v_bfe_u32 v3, v0, 3, 1
    v_lshl_or_b32 v2, v3, 2, v2
    v_lshlrev_b32 v2, 4, v2         ; K voffset
    v_and_b32 v3, 15, v0
    v_lshlrev_b32 v3, 4, v3
    v_lshrrev_b32 v4, 5, v0
    v_lshl_add_u32 v3, v4, 8, v3
    v_bfe_u32 v4, v0, 4, 1
    v_lshl_add_u32 v3, v4, 17, v3   ; V voffset
    s_mov_b32 s14, {fl(0.25*LOG2E)}
    s_mov_b32 s15, {fl(0.25*LOG2E)}
    """)
    a("s_waitcnt lgkmcnt(0)")
    srd(a, 44, 40, WS_BYTES)
    if E("K1_GPRIO", 2):
        a(f"s_setprio {E('K1_GPRIO', 2)}")

    def epi(seg):
        L = []
        A = ACC[seg]
        f = STFS[seg]
        for j in range(8):
            if seg == 0:
                L.append(f"v_pk_mul_f32 {v(A+2*j,2)}, {v(A+2*j,2)}, s[14:15]")
            L.append(f"v_cvt_pk_bf16_f32 v{A+j}, v{A+2*j}, v{A+2*j+1}")
            if j == 3:
                L.append({0: f"buffer_store_dwordx4 {v(A,4)}, v1, s[44:47], s10 offen{f}",
                          1: f"buffer_store_dwordx4 {v(A,4)}, v2, s[44:47], s12 offen{f}",
                          2: f"buffer_store_dwordx4 {v(A,4)}, v3, s[44:47], s12 offen offset:1024{f}"}[seg])
            if j == 7:
                L.append({0: f"buffer_store_dwordx4 {v(A+4,4)}, v1, s[44:47], s11 offen{f}",
                          1: f"buffer_store_dwordx4 {v(A+4,4)}, v2, s[44:47], s13 offen{f}",
                          2: f"buffer_store_dwordx4 {v(A+4,4)}, v3, s[44:47], s12 offen offset:1536{f}"}[seg])
        return L

    dbg_ts(a, 0)
    a("s_barrier")
    dbg_ts(a, 1)
    cnt = {}
    tot = 0
    for g in range(DP):
        for l in reads(g):
            a(l)
        tot += len(reads(g))
        cnt[g] = tot
    fill = []
    for g in range(96):
        a(f"s_waitcnt lgkmcnt({min(15, tot - cnt[g])})")
        a(mfma(g))
        n = g + DP
        if n < 96:
            if n in K1_UNIT:
                u = K1_UNIT.index(n)
                a("s_barrier")
                if u in (2, 4, 6, 8) and u < K1_NB:
                    dbg_ts(a, 1 + u // 2)
            for l in reads(n):
                a(l)
            tot += len(reads(n))
            cnt[n] = tot
        if g - 2 in K1_LAST:
            fill = fill + epi(K1_LAST.index(g - 2))
        nf = E("K1_NF", 2)
        for l in fill[:nf]:
            a(l)
        fill = fill[nf:]
    for l in fill:
        a(l)
    dbg_ts(a, 6)
    a("s_nop 11")
    if not DBG:
        a("s_nop 1")
    for l in epi(2):
        a(l)
    dbg_end(a, 0)
    a("s_endpgm")

    if E("K1_AL", 1):
        a(".p2align 7")
    a.lab("k1_load")
    a(f"""
    s_lshl_b32 s9, s8, 15
    s_lshl_b32 s10, s13, 14
    s_add_u32 s9, s9, s10
    s_lshl_b32 s10, s13, 11
    s_add_u32 s12, s12, s10
    v_lshrrev_b32 v1, 3, v0         ; lane>>3
    v_and_b32 v7, 7, v0             ; lane&7
    v_lshrrev_b32 v8, 4, v0         ; lane>>4
    v_xor_b32 v4, v7, v8
    v_lshlrev_b32 v5, 10, v1
    v_lshl_add_u32 v2, v4, 4, v5    ; q even
    v_xor_b32 v3, 64, v2            ; chunk^4
    v_add_u32 v3, 7168, v3          ; q odd
    s_mul_i32 s10, s15, {32*3072}
    s_lshl_b32 s11, s6, 7
    s_add_u32 s10, s10, s11
    s_lshl_b32 s13, s15, 12
    v_and_b32 v8, 1, v8
    v_lshlrev_b32 v8, 2, v8
    v_xor_b32 v7, v7, v8
    v_mul_u32_u24 v8, 3072, v1
    v_lshl_add_u32 v10, v7, 4, v8
    v_add_u32 v10, s10, v10         ; W voffsets v10..13
    v_add_u32 v11, {8*3072-1024}, v10
    v_add_u32 v12, {2*(8*3072-1024)}, v10
    v_add_u32 v13, {3*(8*3072-1024)}, v10
    {["s_add_u32 s60, s6, s7", "s_mov_b32 s60, s7", "s_mov_b32 s60, s6", "s_lshr_b32 s60, s7, 1"][E("K1_RM", 0)]}
    """)
    for p in range(4):
        a(f"""
        s_and_b32 s60, s60, {E("K1_ROT", 3)}
        s_lshl_b32 s{56+p}, s60, 8
        s_add_u32 s{56+p}, s{56+p}, s9
        s_mul_i32 s{96+p}, s60, {128*3072}
        s_add_u32 s60, s60, 1
        """.replace("s_and_b32 s60, s60, 0", "s_and_b32 s60, s60, %d" % (0 if p == 0 else 3)))
    a(f"""
    s_mov_b32 s50, {hex(2048*512*2)}
    s_mov_b32 s51, 0x00020000
    s_mov_b32 s54, {hex(512*1536*2)}
    s_mov_b32 s55, 0x00020000
    s_waitcnt lgkmcnt(0)
    s_mov_b32 s48, s34
    s_and_b32 s49, s35, 0xffff
    s_mov_b32 s52, s36
    s_and_b32 s53, s37, 0xffff
    """)
    q = []

    def dma_x(p):
        base = K1_RING + K1_AREA[('x', p)] * 16384
        a(f"""
        s_add_u32 m0, s12, {base}
        s_add_u32 s14, s{56+p}, 128
        buffer_load_dwordx4 v2, s[48:51], s{56+p} offen lds
        buffer_load_dwordx4 v3, s[48:51], s{56+p} offen offset:1024 lds
        s_add_u32 m0, s12, {base + 8192}
        s_nop 0
        buffer_load_dwordx4 v2, s[48:51], s14 offen lds
        buffer_load_dwordx4 v3, s[48:51], s14 offen offset:1024 lds
        """)

    def dma_w(seg, p):
        base = K1_RING + K1_AREA[(seg, p)] * 16384
        a(f"""
        s_add_u32 m0, s13, {base}
        s_add_u32 s14, s{96 + p}, {seg*1024}
        """)
        for i in range(4):
            a(f"buffer_load_dwordx4 v{10+i}, s[52:55], s14 offen offset:{i*1024} lds")

    def piece(i):
        pc, u = K1_PIECES[i]
        if pc[0] == 'x':
            dma_x(pc[1])
        else:
            dma_w(*pc)
        q.extend([u] * 4)

    def wait_for(tag):
        last = max(i for i, t in enumerate(q) if t == tag)
        a(f"s_waitcnt vmcnt({len(q) - 1 - last})")

    for i in K1_ISSUE[-1]:
        piece(i)
    if DBG:
        srd(a, 44, 40, WS_BYTES)
    for b in range(K1_NB):
        wait_for(b)
        if b < 8:
            dbg_ts(a, b)
        a("s_barrier")
        for i in K1_ISSUE.get(b, []):
            piece(i)
    dbg_end(a, 0)
    a("@touch k2")
    a("s_endpgm")

    if E("K1_AL", 1):
        a(".p2align 7")
    a.lab("k1_kgen")
    XA, XY, XC, XAD = 64, 65, 66, 67
    SA, SB, SC, SD, SE = 68, 69, 70, 71, 72
    a(f"""
    s_setprio 3
    s_lshl_b32 s6, s4, 6
    s_lshl_b32 s7, s5, 1
    s_add_u32 s6, s6, s7
    s_lshr_b32 s7, s15, 1
    s_add_u32 s6, s6, s7            ; channel d
    s_lshl_b32 s8, s6, 8
    s_and_b32 s9, s15, 1
    s_lshl_b32 s9, s9, 7
    s_add_u32 s8, s8, s9            ; d*256 + half*128
    s_lshl_b32 s9, s6, 1
    v_lshl_add_u32 v1, v0, 1, s8
    v_mov_b32 v10, s9
    s_lshl_b32 s12, s7, 12
    s_add_u32 s12, s12, {K1_XB}
    v_lshl_add_u32 v{XAD}, v0, 4, s12
    """)
    for i in range(2, 10):
        a(f"v_mov_b32 v{i}, 0")
    MID = f"""
    s_mul_i32 s11, s6, {KD_PITCH}
    s_add_u32 s11, s11, {KD}
    s_mov_b32 s13, {fl(LOG2E)}
    s_mov_b32 s14, {fl(1.0/(2*math.pi))}
    v_and_b32 v20, 15, v0           ; i / j
    v_lshrrev_b32 v21, 4, v0        ; g / G
    v_and_b32 v22, 1, v0
    v_cvt_f32_u32 v{XA}, v20
    v_mul_f32 v{XY}, 16.0, v{XA}
    v_and_b32 v23, 3, v0
    v_lshlrev_b32 v23, 2, v23
    v_lshrrev_b32 v24, 2, v20
    v_lshl_add_u32 v23, v24, 8, v23
    v_add_u32 v23, 512, v23         ; i<8 : 512 + 4(i&3) + 256(i>>2)
    v_lshlrev_b32 v24, 3, v22
    v_lshrrev_b32 v25, 1, v20
    v_lshl_add_u32 v24, v25, 8, v24 ; i>=8: 8(i&1) + 256(i>>1)
    v_cmp_gt_u32 vcc, 8, v20
    v_sub_u32 v{SE}, 63, v0
    v_cndmask_b32 v23, v24, v23, vcc
    v_cvt_f32_u32 v{XC}, v23
    v_lshlrev_b32 v{SE}, 2, v{SE}
    v_lshlrev_b32 v{SB}, 5, v20
    v_lshl_add_u32 v{SB}, v21, 3, v{SB}     ; seg0: 32j + 8G
    v_lshrrev_b32 v24, 5, v0                ; G>>1
    v_sub_u32 v25, 3, v24
    v_lshlrev_b32 v25, v25, v20
    v_lshl_add_u32 v{SC}, v21, 7, v25       ; seg2/3 A - 768
    v_mul_u32_u24 v24, 60, v24
    v_add3_u32 v{SD}, v24, v{SC}, 4         ; B - 768
    v_lshrrev_b32 v{SA}, 1, v{SB}           ; seg1: 16j + 4G
    v_cmp_eq_u32 vcc, 0, v0
    """
    LD = """
    s_waitcnt lgkmcnt(0)
    global_load_short_d16_hi v8, v10, s[30:31]
    global_load_short_d16_hi v2, v1, s[18:19]
    global_load_short_d16_hi v3, v1, s[20:21]
    global_load_short_d16_hi v4, v1, s[22:23]
    global_load_short_d16_hi v5, v1, s[24:25]
    global_load_short_d16_hi v6, v1, s[26:27]
    global_load_short_d16_hi v7, v1, s[28:29]
    global_load_short_d16_hi v9, v10, s[32:33]
    """
    a(f"""
    ds_write_b32 v{XAD}, v2 offset:3072
    {LD if E("KG_EARLY", 1) else MID}
    {MID if E("KG_EARLY", 1) else LD}
    """)
    srd(a, 44, 40, WS_BYTES)
    a(f"s_setprio {E('KG_PRIO', 2)}")
    PP, PW, WR, WI, CR, CI, KL = 12, 13, 14, 15, 16, 17, 18
    DPP = lambda j: f"row_newbcast:{j} row_mask:0xf bank_mask:0xf"
    k = Asm()
    k(f"""
    s_waitcnt vmcnt(7)
    v_mul_f32 v8, s13, v8
    v_exp_f32 v8, v8
    s_nop 0
    v_cvt_pk_bf16_f32 v8, v8, v8
    v_lshlrev_b32 v8, 16, v8                ; dt
    s_waitcnt vmcnt(5)
    v_mul_f32 v2, v8, v2
    v_mul_f32 v3, v8, v3
    v_mul_f32 v{PP}, s13, v2                ; p
    v_mul_f32 v{PW}, s14, v3                ; w
    v_rndne_f32 v3, v{PW}
    v_sub_f32 v{PW}, v{PW}, v3
    v_mul_f32 v20, {fl(256.0)}, v{PP}
    v_mul_f32 v21, {fl(256.0)}, v{PW}
    v_mul_f32 v22, {fl(2048.0)}, v{PP}
    v_mul_f32 v23, {fl(2048.0)}, v{PW}
    v_exp_f32 v20, v20
    v_exp_f32 v22, v22
    v_fract_f32 v23, v23
    v_cos_f32 v{CR}, v21
    v_sin_f32 v{CI}, v21
    v_cos_f32 v18, v23
    v_sin_f32 v19, v23
    s_waitcnt vmcnt(1)
    {"s_memtime s[64:65]" if DBG else ""}
    v_mul_f32 v4, v8, v4
    v_mul_f32 v5, v8, v5
    v_mul_f32 v{WR}, v6, v4
    v_mul_f32_e64 v{WI}, -v6, v5
    v_fma_f32 v{WR}, -v7, v5, v{WR}         ; Re W
    v_fma_f32 v{WI}, -v7, v4, v{WI}         ; -Im W
    v_mul_f32 v{CR}, v20, v{CR}
    v_mul_f32 v{CI}, v20, v{CI}
    v_mul_f32 v18, v{WR}, v18
    v_fmac_f32 v18, v{WI}, v19
    v_mul_f32 v{KL}, v22, v18               ; Re(W g^2048)
    """)
    red = [f"v_add_f32_dpp v{KL}, v{KL}, v{KL} {m}" for m in (
        "row_ror:1 row_mask:0xf bank_mask:0xf", "row_ror:2 row_mask:0xf bank_mask:0xf",
        "row_ror:4 row_mask:0xf bank_mask:0xf", "row_ror:8 row_mask:0xf bank_mask:0xf",
        "row_bcast:15 row_mask:0xa bank_mask:0xf", "row_bcast:31 row_mask:0xc bank_mask:0xf")]
    D0, D1, D2 = 20, 24, 28
    FX0, FX1, FX2, FY = 32, 36, 40, 44
    T = lambda q: 48 + q
    U = lambda q: 52 + q
    C = lambda q: 56 + q
    S = lambda q: 60 + q
    A_ = lambda q: 76 + q
    B_ = lambda q: 80 + q
    for ks in range(4):
        J = lambda q: 4 * ks + q

        def polar(X, fract):
            for q in range(4):
                k(f"v_mul_f32_dpp v{T(q)}, v{PP}, v{X} {DPP(J(q))}")
                k(f"v_mul_f32_dpp v{U(q)}, v{PW}, v{X} {DPP(J(q))}")
            if red:
                k(red.pop(0))
            for q in range(4):
                k(f"v_exp_f32 v{T(q)}, v{T(q)}")
                if fract:
                    k(f"v_fract_f32 v{U(q)}, v{U(q)}")
            for q in range(4):
                k(f"v_cos_f32 v{C(q)}, v{U(q)}")
                k(f"v_sin_f32 v{S(q)}, v{U(q)}")

        def mf(D, F):
            c = "0" if ks == 0 else v(D, 4)
            k(f"v_mfma_f32_16x16x32_bf16 {v(D,4)}, {v(F,4)}, {v(FY,4)}, {c}")

        polar(XY, False)
        for q in range(4):
            k(f"v_mul_f32_dpp v{A_(q)}, v{WR}, v{T(q)} {DPP(J(q))}")
            k(f"v_mul_f32_dpp v{B_(q)}, v{WI}, v{T(q)} {DPP(J(q))}")
        for q in range(4):
            k(f"v_mul_f32 v{T(q)}, v{A_(q)}, v{C(q)}")
            k(f"v_mul_f32 v{U(q)}, v{B_(q)}, v{C(q)}")
        for q in range(4):
            k(f"v_fmac_f32 v{T(q)}, v{B_(q)}, v{S(q)}")
            k(f"v_fma_f32 v{U(q)}, -v{A_(q)}, v{S(q)}, v{U(q)}")
        for q in range(4):
            k(f"v_cvt_pk_bf16_f32 v{FY+q}, v{T(q)}, v{U(q)}")
        polar(XC, True)
        for q in range(4):
            k(f"v_mul_f32 v{C(q)}, v{T(q)}, v{C(q)}")
            k(f"v_mul_f32 v{S(q)}, v{T(q)}, v{S(q)}")
        for q in range(4):
            k(f"v_cvt_pk_bf16_f32 v{FX2+q}, v{C(q)}, v{S(q)}")
        polar(XA, False)
        mf(D2, FX2)
        for q in range(4):
            k(f"v_mul_f32 v{C(q)}, v{T(q)}, v{C(q)}")
            k(f"v_mul_f32 v{S(q)}, v{T(q)}, v{S(q)}")
        for q in range(4):
            k(f"v_cvt_pk_bf16_f32 v{FX0+q}, v{C(q)}, v{S(q)}")
        for q in range(4):
            k(f"v_mul_f32_dpp v{T(q)}, v{CR}, v{C(q)} {DPP(J(q))}")
            k(f"v_mul_f32_dpp v{U(q)}, v{CI}, v{C(q)} {DPP(J(q))}")
        mf(D0, FX0)
        for q in range(4):
            k(f"v_fmac_f32_dpp v{T(q)}, -v{CI}, v{S(q)} {DPP(J(q))}")
            k(f"v_fmac_f32_dpp v{U(q)}, v{CR}, v{S(q)} {DPP(J(q))}")
        for q in range(4):
            k(f"v_cvt_pk_bf16_f32 v{FX1+q}, v{T(q)}, v{U(q)}")
        k("s_nop 1")
        mf(D1, FX1)
    k("""
    s_waitcnt vmcnt(0)
    v_cndmask_b32 v9, 0, v9, vcc
    """)
    m0, sg = [int(x) for x in os.environ.get("KG_MK", "800,400").split(",")]
    kl = splice(k.L, [m0 + sg * i for i in range(K1_NB)])
    a.L.extend(kl)
    nb = K1_NB - sum(1 for l in kl if l.strip() == "s_barrier")
    print("kgen cost", sum(cost(l) for l in k.L), "spare barriers", nb, file=sys.stderr)
    dbg_ts(a, 2)
    late = min(nb, E("KG_LATE", 0))
    for i in range(nb - late):
        a("s_barrier")
    a(f"""
    s_bitcmp1_b32 s15, 0
    s_cbranch_scc0 k1_kg_fin
    ds_write_b128 v{XAD}, {v(D2,4)} offset:2048
    ds_write_b128 v{XAD}, {v(D0,4)}
    v_mov_b32 v2, 1
    s_nop 2
    v_mov_b32 v{D1+1}, v{KL}
    ds_write_b128 v{XAD}, {v(D1,4)} offset:1024
    ds_write_b32 v{XAD}, v2 offset:3072
    """)
    for i in range(late):
        a("s_barrier")
    a("s_waitcnt lgkmcnt(0)")
    dbg_end(a, 0)
    a("s_endpgm")
    a.lab("k1_kg_fin")
    for i in range(late):
        a("s_barrier")
    a.lab("k1_kg_poll")
    a(f"""
    ds_read_b32 v2, v{XAD} offset:3072
    ds_read_b128 v[32:35], v{XAD}
    ds_read_b128 v[36:39], v{XAD} offset:1024
    ds_read_b128 v[40:43], v{XAD} offset:2048
    s_waitcnt lgkmcnt(0)
    v_readfirstlane_b32 s9, v2
    s_nop 0
    s_cmp_eq_u32 s9, 0
    s_cbranch_scc1 k1_kg_poll
    v_add_f32 v{D0}, v{D0}, v9
    v_mov_b32 v{D1+1}, v{KL}
    """)
    dbg_ts(a, 3)
    for j in range(12):
        if j != 7:
            a(f"v_add_f32 v{20+j}, v{20+j}, v{32+j}")
    a(f"""
    v_cvt_pk_bf16_f32 v12, v{D0}, v{D0+1}
    v_cvt_pk_bf16_f32 v13, v{D0+2}, v{D0+3}
    buffer_store_dwordx2 v[12:13], v{SB}, s[44:47], s11 offen{STFS[3]}
    v_cvt_pk_bf16_f32 v14, v{D1}, v{D1+2}
    v_cvt_pk_bf16_f32 v15, v{D2}, v{D2+1}
    v_cvt_pk_bf16_f32 v16, v{D2+2}, v{D2+3}
    v_cvt_pk_bf16_f32 v17, v{D1+1}, v{D1+1}
    buffer_store_dword v14, v{SA}, s[44:47], s11 offen offset:512{STFS[3]}
    buffer_store_dword v15, v{SC}, s[44:47], s11 offen offset:768{STFS[3]}
    buffer_store_dword v16, v{SD}, s[44:47], s11 offen offset:768{STFS[3]}
    buffer_store_dword v17, v{SE}, s[44:47], s11 offen offset:1280{STFS[3]}
    """)
    dbg_end(a, 0)
    a.lab("k1_end")
    a("s_endpgm")
    if E("K1_ORD", 0):
        i0, i1 = a.L.index("k1_gemm:"), a.L.index("k1_load:")
        a.L = a.L[:i0] + a.L[i1:] + a.L[i0:i1]
    return a, desc("k1_kernel", 160)


STF = os.environ.get("STF", "")
if STF:
    STF = " " + STF
STFS = [(" " + x if x else "") for x in os.environ.get("STFS", "sc0 sc1,sc0 sc1,sc0 sc1,sc0 sc1").split(",")]

WALK = E('K2_WALK', 0)
TP = 2080
CV_BASE = 64 * TP
CV_KS = 4160
CV_U = 8320
CV_CH = 12928
K2_FL = 163840 - 64
K2_LDS = 163840


def gen_k2():
    a = Asm()
    head(a, "k2_kernel")
    a(f"""
    s_cmp_ge_u32 s2, 256
    s_cbranch_scc1 k2_end
    """)
    dbg_start(a)
    a(f"""
    s_load_dwordx2 s[40:41], s[0:1], 112
    s_load_dwordx4 s[16:19], s[0:1], 88
    s_load_dwordx2 s[20:21], s[0:1], 0
    v_lshrrev_b32 v1, 6, v0
    v_and_b32 v0, 63, v0
    s_and_b32 s4, s2, 7
    v_readfirstlane_b32 s3, v1
    v_readfirstlane_b32 s94, v1
    s_lshr_b32 s5, s2, 3
    v_lshlrev_b32 v1, 4, v0
    s_lshl_b32 s6, s4, 2
    s_lshr_b32 s7, s5, 3
    s_add_u32 s6, s6, s7            ; head
    s_lshl_b32 s8, s6, 17
    s_add_u32 s8, s8, {KVI}
    s_mul_i32 s9, s3, {TP}
    s_lshl_b32 s10, s3, 11
    s_add_u32 s10, s10, s8
    s_mov_b32 m0, s9
    s_mov_b32 s46, {hex(WS_BYTES)}
    s_mov_b32 s47, 0x00020000
    s_cmp_ge_u32 s3, 8
    s_cbranch_scc1 k2_conv
    """)

    Q, IDX, KA, VA0, VA1 = 4, 2, 3, 28, 29
    KB = [8, 12]
    V0B = [16, 96]
    V1B = [20, 100]
    NEGM, O = 32, 80
    SB = [48, 64]
    FLV = 104
    a(f"""
    s_and_b32 s7, s5, 7
    s_lshl_b32 s7, s7, 3
    s_add_u32 s7, s7, s3            ; qt
    s_lshl_b32 s11, s6, 16
    s_lshl_b32 s12, s7, 10
    s_add_u32 s11, s11, s12
    s_add_u32 s11, s11, {QI}
    s_lshl_b32 s12, s7, 15
    s_lshl_b32 s13, s6, 10
    s_add_u32 s12, s12, s13
    s_add_u32 s12, s12, {OI}        ; O dest
    s_mov_b32 s24, 0
    v_mov_b32 v{IDX}, 0xdddddddd
    v_and_b32 v23, 15, v0
    v_lshrrev_b32 v24, 5, v0
    v_lshlrev_b32 v23, 4, v23
    v_lshl_add_u32 v30, v24, 8, v23
    v_add_u32 v30, 1024, v30
    v_add_u32 v31, 512, v30
    v_and_b32 v23, 16, v0
    v_cmp_eq_u32 vcc, 16, v23
    v_mov_b32 v24, 2064
    v_and_b32 v23, 27, v0
    v_mov_b32 v{FLV}, {K2_FL}
    v_cndmask_b32 v30, v30, v24, vcc
    v_cndmask_b32 v31, v31, v24, vcc
    v_cmp_eq_u32 vcc, 16, v23
    v_mov_b32 v24, 2048
    v_add_u32 v{KA}, s9, v1
    s_nop 0
    v_cndmask_b32 v30, v30, v24, vcc
    v_cndmask_b32 v31, v31, v24, vcc
    """)
    def zero_init():
        for j in range(4):
            a(f"v_mov_b32 v{V1B[1]+j}, 0")
        for j in range(8):
            a(f"v_mov_b32 v{SB[1]+8+j}, 0")
        for j in range(16):
            a(f"v_mov_b32 v{O+j}, 0")
    zero_init()
    if E("K2_PRIO", 1) == 1:
        a("""
        s_cmp_lt_u32 s3, 4
        s_cbranch_scc1 k2_np
        s_setprio 1
        """)
        a.lab("k2_np")
    a(f"""
    s_waitcnt lgkmcnt(0)
    s_mov_b32 s44, s40
    s_and_b32 s45, s41, 0xffff
    buffer_load_dwordx4 v1, s[44:47], s10 offen lds
    buffer_load_dwordx4 {v(Q,4)}, v1, s[44:47], s11 offen
    buffer_load_dwordx4 v1, s[44:47], s10 offen offset:1024 lds
    s_waitcnt vmcnt(1)
    ds_read_b128 {v(KB[0],4)}, v{KA}
    """)
    if DBG == 1:
        dbg_ts(a, 0)
    a(f"""
    s_waitcnt lgkmcnt(0)
    v_mfma_f32_32x32x16_bf16 {v(SB[0],16)}, {v(KB[0],4)}, {v(Q,4)}, 0
    s_nop 11
    v_max3_f32 v23, v{SB[0]}, v{SB[0]+1}, v{SB[0]+2}
    """)
    for j in range(3, 15, 2):
        a(f"v_max3_f32 v23, v23, v{SB[0]+j}, v{SB[0]+j+1}")
    a(f"v_max_f32 v23, v23, v{SB[0]+15}")
    a.lab("k2_start")
    a(f"""
    v_mov_b32 v24, v23
    v_mov_b32 v{KA}, v1
    v_mov_b32 v{VA0}, v30
    v_permlane32_swap_b32 v23, v24
    v_mov_b32 v{VA1}, v31
    s_mov_b32 s25, 0
    v_max_f32 v23, v23, v24
    """)
    a(f"v_sub_f32 v24, 0, v23")
    for j in range(0, 16, 2):
        a(f"v_pk_mov_b32 {v(NEGM+j,2)}, v[24:25], v[24:25] op_sel:[0,0]")
    a(f"""
    s_cmp_lg_u32 s24, 0
    s_cbranch_scc1 k2_nobar
    s_waitcnt vmcnt(0)
    s_barrier
    """)
    a.lab("k2_nobar")
    if DBG == 1:
        dbg_ts(a, 1)
    a(f"""
    ds_read_b128 {v(KB[0],4)}, v{KA}
    ds_read_b128 {v(KB[1],4)}, v{KA} offset:{TP}
    ds_read_b128 {v(V0B[0],4)}, v{VA0}
    ds_read_b128 {v(V1B[0],4)}, v{VA1}
    s_waitcnt lgkmcnt(3)
    v_mfma_f32_32x32x16_bf16 {v(SB[0],16)}, {v(KB[0],4)}, {v(Q,4)}, {v(NEGM,16)}
    s_nop 9
    """)
    a.lab("k2_loop")
    a(f"""
    s_bitcmp1_b32 0x0a, s25
    s_cbranch_scc1 k2_poll
    """)
    a.lab("k2_body")
    if DBG == 2:
        for k in range(7):
            a(f"s_mov_b32 s{64+2*k}, s{66+2*k}")
        a("s_memtime s[78:79]")
    U = 8
    PS = E("K2_PS", 46)
    for i in range(U):
        p, q = i % 2, (i + 1) % 2
        Sc, Sn = SB[p], SB[q]
        ex = lambda j: a(f"v_exp_f32 v{Sc+j}, v{Sc+j}")
        a.lab(f"k2_t{i}")
        ex(0); ex(1)
        a("s_waitcnt lgkmcnt(0)")
        a(f"v_smfmac_f32_32x32x32_bf16 {v(O,16)}, {v(V1B[q],4)}, {v(Sn+8,8)}, v{IDX}")
        a(f"ds_read_b128 {v(KB[p],4)}, v{KA} offset:{(i+2)*TP}")
        ex(2)
        a(f"ds_read_b128 {v(V0B[q],4)}, v{VA0} offset:{(i+1)*TP}")
        ex(3)
        a(f"ds_read_b128 {v(V1B[q],4)}, v{VA1} offset:{(i+1)*TP}")
        ex(4)
        a(f"v_mfma_f32_32x32x16_bf16 {v(Sn,16)}, {v(KB[q],4)}, {v(Q,4)}, {v(NEGM,16)}")
        for j in range(5, 10):
            ex(j)
        a(f"v_smfmac_f32_32x32x32_bf16 {v(O,16)}, {v(V0B[p],4)}, {v(Sc,8)}, v{IDX}")
        for j in range(10, 16):
            ex(j)
            if j == 11 and i == PS % U and E("K2_PRIO", 1) == 1:
                a(f"""
                s_cmp_lg_u32 s25, {PS // U}
                s_cbranch_scc1 k2_ps
                s_setprio 0
                """)
                a.lab("k2_ps")
            if i == U - 1:
                if j == 11:
                    a(f"v_add_u32 v{KA}, {U*TP}, v{KA}")
                if j == 12:
                    a(f"v_add_u32 v{VA0}, {U*TP}, v{VA0}")
                if j == 13:
                    a(f"v_add_u32 v{VA1}, {U*TP}, v{VA1}")
                    a("s_add_u32 s25, s25, 1")
                if j == 14:
                    a(f"s_cmp_lt_u32 s25, {64//U}")
    a(f"""
    s_cbranch_scc1 k2_loop
    {"s_cbranch_execz k2_cv_ret" if WALK else "s_nop 0"}
    v_smfmac_f32_32x32x32_bf16 {v(O,16)}, {v(V1B[1],4)}, {v(SB[1]+8,8)}, v{IDX}
    s_waitcnt lgkmcnt(0)
    s_nop 10
    v_mul_f32 v23, 0, v{O+8}
    """)
    if DBG == 1:
        dbg_ts(a, 4)
    for j in range(8):
        a(f"v_fma_f32 v23, 0, v{O+j}, v23")
    a(f"""
    v_add_f32 v23, v23, v{O+8}
    v_mov_b32 v24, {fl(2.0**100)}
    v_cmp_nlt_f32 vcc, v23, v24
    v_rcp_f32 v25, v{O+8}
    s_cmp_lg_u32 s24, 0
    s_cbranch_scc1 k2_store
    s_cmp_lg_u64 vcc, 0
    s_cbranch_scc1 k2_fallback
    """)
    a.lab("k2_store")
    for j in range(8):
        a(f"v_mul_f32 v{O+j}, v25, v{O+j}")
    for j in range(4):
        a(f"v_cvt_pk_bf16_f32 v{24+j}, v{O+2*j}, v{O+2*j+1}")
    a(f"buffer_store_dwordx4 v[24:27], v1, s[44:47], s12 offen{STF}")
    dbg_end(a, 1)
    a("s_endpgm")
    a.lab("k2_poll")
    a(f"""
    ds_read_b64 v[{FLV+2}:{FLV+3}], v{FLV}
    s_waitcnt lgkmcnt(0)
    v_readfirstlane_b32 s26, v{FLV+2}
    v_readfirstlane_b32 s27, v{FLV+3}
    s_cmp_eq_u32 s25, 1
    s_cselect_b32 s26, s26, s27
    s_cmp_lt_u32 s26, 4
    s_cbranch_scc1 k2_poll
    """)
    if DBG == 1:
        a("s_mov_b32 s68, s70")
        dbg_ts(a, 3)
    a("s_branch k2_body")
    a.lab("k2_fallback")
    a(f"""
    s_mov_b32 s24, 1
    s_mov_b32 s25, 0
    v_mov_b32 v23, 0xff800000
    v_add_u32 v{KA}, {63*TP}, v1
    """)
    zero_init()
    a.lab("k2_fb_loop")
    a(f"""
    ds_read_b128 {v(KB[0],4)}, v{KA}
    v_subrev_u32 v{KA}, {TP}, v{KA}
    s_waitcnt lgkmcnt(0)
    v_mfma_f32_32x32x16_bf16 {v(SB[0],16)}, {v(KB[0],4)}, {v(Q,4)}, 0
    s_nop 11
    """)
    for j in range(0, 16, 2):
        a(f"v_max3_f32 v23, v23, v{SB[0]+j}, v{SB[0]+j+1}")
    a(f"""
    s_add_u32 s25, s25, 1
    s_cmp_lt_u32 s25, 64
    s_cbranch_scc1 k2_fb_loop
    s_branch k2_start
    """)

    NC0 = E("K2_NC0", 0)
    FA = E("K2_FA", 8)

    def tile_dma():
        a(f"""
        s_add_u32 m0, m0, {4*TP}
        s_add_u32 s10, s10, 8192
        buffer_load_dwordx4 v1, s[44:47], s10 offen lds
        buffer_load_dwordx4 v1, s[44:47], s10 offen offset:1024 lds
        """)

    def bump(off):
        a(f"""
        s_mov_b64 exec, 1
        ds_add_u32 v2, v3 offset:{off}
        s_mov_b64 exec, -1
        """)

    def poll(off, name, after):
        BK = E("K2_BK", 4)
        a(f"s_setprio {E('K2_PP', 0)}")
        a(f"s_branch {name}_in")
        a.lab(name)
        for _ in range(BK):
            a("s_nop 15")
        a.lab(name + "_in")
        a(f"""
        ds_read_b32 v15, v2 offset:{off}
        s_waitcnt lgkmcnt(0)
        v_readfirstlane_b32 s26, v15
        s_cmp_lt_u32 s26, 4
        s_cbranch_scc1 {name}
        s_setprio {after}
        """)

    a.lab("k2_conv")
    a(f"""
    s_sub_u32 s3, s3, 8             ; j
    s_and_b32 s22, s3, 1            ; channel
    s_lshr_b32 s23, s3, 1           ; half
    s_mul_i32 s12, s22, {CV_CH}
    s_add_u32 s12, s12, {CV_BASE}
    v_mov_b32 v2, {K2_FL}
    v_mov_b32 v3, 1
    v_mov_b32 v8, 0
    v_mov_b32 v9, 0
    v_mov_b32 v10, 0
    v_mov_b32 v11, 0
    v_lshlrev_b32 v5, 3, v0
    v_add_u32 v6, s12, v1
    v_add_u32 v14, s12, v5
    s_cmp_ge_u32 s3, 2
    s_cbranch_scc1 k2_cv_i1
    ds_write_b64 v14, v[8:9] offset:{CV_U+4096}
    s_mov_b64 exec, 3
    ds_write_b128 v6, v[8:11]
    ds_write_b128 v6, v[8:11] offset:{CV_KS}
    v_add_u32 v4, v2, v1
    ds_write_b128 v4, v[8:11]
    s_mov_b64 exec, -1
    s_branch k2_cv_i2
    """)
    a.lab("k2_cv_i1")
    a(f"""
    s_lshl_b32 s13, s22, 4
    v_mul_u32_u24 v4, {TP}, v0
    s_cmp_eq_u32 s22, 0
    s_cselect_b32 s14, 0x3f803f80, 0
    v_add_u32 v4, s13, v4
    v_mov_b32 v8, s14
    v_mov_b32 v9, s14
    v_mov_b32 v10, s14
    v_mov_b32 v11, s14
    ds_write_b128 v4, v[8:11] offset:2048
    """)
    a.lab("k2_cv_i2")
    a(f"""
    s_lshl_b32 s6, s4, 6
    s_lshl_b32 s7, s5, 1
    s_add_u32 s6, s6, s7            ; d0
    s_add_u32 s11, s6, s22
    s_mul_i32 s11, s11, {KD_PITCH}
    s_add_u32 s11, s11, {KD}
    v_lshlrev_b32 v4, 2, v0
    v_lshlrev_b32 v7, 5, v0
    v_add_u32 v7, s12, v7
    v_lshlrev_b32 v12, 13, v0       ; u voffset
    s_lshl_b32 s13, s3, 19
    s_lshl_b32 s14, s6, 1
    s_add_u32 s13, s13, s14         ; u soffset
    s_add_u32 s27, s13, 4096
    s_mov_b32 s14, 0x01000100
    s_mov_b32 s15, 0x03020302
    s_mov_b32 s28, 0x05040302
    s_mov_b32 s29, 0x05040100
    s_mov_b32 s30, 0x07060302
    s_waitcnt lgkmcnt(0)
    s_mov_b32 s44, s40
    s_and_b32 s45, s41, 0xffff
    buffer_load_dwordx4 v1, s[44:47], s10 offen lds
    buffer_load_dwordx4 v1, s[44:47], s10 offen offset:1024 lds
    """)
    for i in range(NC0):
        tile_dma()
    if WALK:
        ent = [int(x) for x in os.environ.get("K2_ENT", "0,2,4,6").split(",")]
        a(f"""
        v_mov_b32 v28, 0
        v_mov_b32 v29, 0
        v_mov_b32 v30, 0
        v_mov_b32 v31, 0
        v_mov_b32 v{FLV}, 0
        s_mov_b32 s24, 1
        s_mov_b32 s25, 7
        s_mov_b64 exec, 0
        """)
        for j in range(4):
            tgt = f"k2_t{ent[j]}" if ent[j] < 8 else "k2_cv_ret"
            if j < 3:
                a(f"""
                s_cmp_eq_u32 s3, {j}
                s_cbranch_scc1 {tgt}
                """)
            else:
                a(f"s_branch {tgt}")
        a.lab("k2_cv_ret")
        a("s_mov_b64 exec, -1")
    srd(a, 52, 18, 2048 * 1024 * 2)
    srd(a, 48, 16, 512 * 512 * 2)
    srd(a, 56, 20, 2048 * 512 * 2)
    if E("K2_DL", 1):
        a(f"""
        s_add_u32 s31, s10, {8192*(FA-NC0)}
        s_add_u32 s33, s10, {8192*(13-NC0)}
        .p2align 7
        """)
    a(f"""
    s_waitcnt vmcnt({2*NC0})
    s_barrier
    s_setprio {E('K2_CP0', 2)}
    """)
    if E("K2_DL", 1):
        for nm, lim in (("k2_dl0", 31), ("k2_dl1", 33)):
            a.lab(nm)
            a(f"""
            s_add_u32 m0, m0, {4*TP}
            s_add_u32 s10, s10, 8192
            buffer_load_dwordx4 v1, s[44:47], s10 offen lds
            s_cmp_lt_u32 s10, s{lim}
            buffer_load_dwordx4 v1, s[44:47], s10 offen offset:1024 lds
            s_cbranch_scc1 {nm}
            """)
            if lim == 31:
                a(f"s_waitcnt vmcnt({2*(FA-4)})")
                bump(0)
    else:
      for i in range(NC0, 13):
        tile_dma()
        if i + 1 == FA:
            a(f"s_waitcnt vmcnt({2*(FA-4)})")
            bump(0)
    UR = 64
    a(f"""
    s_cmp_lg_u32 s23, 0
    s_cbranch_scc1 k2_cv_l1
    buffer_load_dwordx3 v[72:74], v5, s[44:47], s11 offen
    buffer_load_dwordx2 v[76:77], v4, s[44:47], s11 offen offset:512
    buffer_load_dwordx2 v[78:79], v4, s[44:47], s11 offen offset:768
    s_waitcnt vmcnt(3)
    s_branch k2_cv_l2
    """)
    a.lab("k2_cv_l1")
    a(f"""
    buffer_load_dwordx2 v[80:81], v4, s[44:47], s11 offen offset:1024
    s_waitcnt vmcnt(1)
    """)
    a.lab("k2_cv_l2")
    bump(4)
    dbg_ts(a, 0)
    for e in range(8):
        a(f"buffer_load_dword v{UR+e}, v12, s[56:59], s{13 if e < 4 else 27} offen offset:{(e&3)*1024}")
    a(f"""
    s_waitcnt vmcnt(8)
    s_cbranch_scc1 k2_cv_e1
    """)
    EE = lambda d, r: a(f"v_perm_b32 v{d}, v{r}, v{r}, s14")
    OO = lambda d, r: a(f"v_perm_b32 v{d}, v{r}, v{r}, s15")
    EO = lambda d, r: a(f"v_mov_b32 v{d}, v{r}")
    OE = lambda d, r: a(f"v_perm_b32 v{d}, v{r+1}, v{r}, s28")
    FF = lambda d, r: a(f"v_perm_b32 v{d}, v{r+1}, v{r+1}, s14")
    a(f"ds_write_b64 v14, v[72:73] offset:32")
    OE(8, 72)
    OE(9, 73)
    a(f"ds_write_b64 v14, v[8:9] offset:{32+CV_KS}")
    EE(24, 76); OE(25, 76); EO(26, 76); FF(27, 76)
    a(f"ds_write_b64 v14, v[24:25] offset:{32+512}")
    a(f"ds_write_b64 v14, v[26:27] offset:{32+512+CV_KS}")
    for d, f in zip(range(16, 24), (EE, EO, OO, FF, EE, OO, OE, FF)):
        f(d, 78)
    a(f"ds_write_b128 v6, v[16:19] offset:{32+1024}")
    a(f"ds_write_b128 v6, v[20:23] offset:{32+1024+CV_KS}")
    a(f"""
    v_lshlrev_b32 v28, 16, v72
    s_mov_b64 exec, 1
    ds_write_b32 v6, v28 offset:{CV_KS+28}
    s_mov_b64 exec, -1
    s_branch k2_cv_e2
    """)
    a.lab("k2_cv_e1")
    for d, f in zip(range(24, 40), (EE, EE, EO, OO, OO, OO, FF, FF, EE, EE, OO, OO, OO, OE, FF, FF)):
        f(d, 80)
    a(f"ds_write_b128 v7, v[24:27] offset:{32+2048}")
    a(f"ds_write_b128 v7, v[28:31] offset:{32+2048+16}")
    a(f"ds_write_b128 v7, v[32:35] offset:{32+2048+CV_KS}")
    a(f"ds_write_b128 v7, v[36:39] offset:{32+2048+16+CV_KS}")
    a.lab("k2_cv_e2")
    AF, BF, AC = 32, 64, 96
    a(f"""
    s_lshl_b32 s13, s3, 10
    s_sub_u32 s13, {CV_BASE + CV_U + 4080}, s13
    v_sub_u32 v8, s13, v1
    v_and_b32 v13, 15, v0           ; r / c
    v_lshrrev_b32 v14, 4, v0        ; g
    v_add_u32 v15, 1, v13
    v_lshrrev_b32 v16, 1, v15
    v_lshl_add_u32 v16, v14, 2, v16
    v_lshlrev_b32 v16, 2, v16
    v_and_b32 v15, 1, v15           ; r even
    v_mul_u32_u24 v15, {CV_KS}, v15
    s_lshl_b32 s13, s23, 8
    s_add_u32 s13, s13, s12
    v_add3_u32 v4, v15, v16, s13
    v_add_u32 v5, 1024, v4
    v_add_u32 v6, 2048, v4
    v_add_u32 v7, 3072, v4
    v_lshlrev_b32 v15, 5, v13
    v_lshlrev_b32 v16, 4, v14
    v_sub_u32 v12, v16, v15
    s_add_u32 s13, s13, {CV_U + 480}
    v_add_u32 v12, s13, v12
    v_lshlrev_b32 v13, 15, v13
    v_lshl_add_u32 v13, v14, 13, v13
    s_lshl_b32 s11, s5, 2
    s_add_u32 s11, s11, s3
    s_lshl_b32 s11, s11, 12
    v_lshlrev_b32 v9, 6, v0
    s_waitcnt vmcnt(0)
    buffer_load_dword v10, v9, s[48:51], s11 offen
    """)
    dbg_ts(a, 1)
    for d in range(4):
        a(f"v_perm_b32 v{16+d}, v{UR+6-2*d}, v{UR+7-2*d}, s29")
    for d in range(4):
        a(f"v_perm_b32 v{20+d}, v{UR+6-2*d}, v{UR+7-2*d}, s30")
    a(f"""
    ds_write_b128 v8, v[16:19]
    ds_write_b128 v8, v[20:23] offset:{CV_CH}
    s_waitcnt lgkmcnt(0)
    """)
    bump(8)
    poll(8, "k2_pc", E("K2_CPRIO", 0))
    dbg_ts(a, 2)
    if E("X_NOCONV", 0):
        a("s_branch k2_cv_out")
    PACE = E("K2_PACE", -1)
    for it in range(4):
        for m in range(8):
            base = 4 + m // 2
            o = 128 * (m & 1) + 16 * it
            a(f"ds_read2_b32 {v(AF+4*m,2)}, v{base} offset0:{o} offset1:{o+1}")
            a(f"ds_read2_b32 {v(AF+4*m+2,2)}, v{base} offset0:{o+2} offset1:{o+3}")
            a(f"ds_read_b128 {v(BF+4*m,4)}, v12 offset:{512*(7-m)+64*it}")
        for t in range(8):
            a(f"s_waitcnt lgkmcnt({min(15, 3*(7-t))})")
            prs = [(m, kk) for m in range(t + 1) for kk in range(t + 1) if max(m, kk) == t and m + kk <= 7]
            prs.sort(key=lambda x: (x[0] < x[1], x[0] + x[1]))
            for m, kk in prs:
                d = v(AC + 4 * (m + kk), 4)
                first = it == 0 and (m, kk) == min([(x, m + kk - x) for x in range(m + kk + 1)], key=lambda y: (max(y), y[0] < y[1]))
                a(f"v_mfma_f32_16x16x32_bf16 {d}, {v(AF+4*m,4)}, {v(BF+4*kk,4)}, {'0' if first else d}")
                if PACE >= 0:
                    a(f"s_nop {PACE}")
    dbg_ts(a, 3)
    bump(12)
    a(f"""
    v_add_u32 v4, {CV_BASE}, v1
    s_lshl_b32 s8, s3, 20
    s_lshl_b32 s9, s6, 1
    s_add_u32 s8, s8, s9
    s_add_u32 s9, s8, {256*2048}
    s_add_u32 s10, s8, 4096
    s_add_u32 s11, s9, 4096
    """)
    poll(12, "k2_pd", E("K2_CP0", 2))
    a(f"""
    s_cmp_eq_u32 s3, 1
    s_cbranch_scc1 k2_cx1
    s_cmp_eq_u32 s3, 2
    s_cbranch_scc1 k2_cx2
    s_cmp_eq_u32 s3, 3
    s_cbranch_scc1 k2_cx3
    """)
    for w in range(4):
        a.lab(f"k2_cx{w}")
        for o in range(4):
            if o == w:
                continue
            k = w if w < o else w - 1
            a(f"ds_write_b128 v4, {v(AC+8*o,4)} offset:{(3*o+k)*2048}")
            a(f"ds_write_b128 v4, {v(AC+8*o+4,4)} offset:{(3*o+k)*2048+1024}")
        a("s_waitcnt lgkmcnt(0)")
        bump(16)
        poll(16, f"k2_pe{w}", E("K2_CP0", 2))
        regs = {w: AC + 8 * w}
        for sw in range(4):
            if sw == w:
                continue
            k = sw if sw < w else sw - 1
            regs[sw] = 32 + 8 * k
            a(f"ds_read_b128 {v(32+8*k,4)}, v4 offset:{(3*w+k)*2048}")
            a(f"ds_read_b128 {v(36+8*k,4)}, v4 offset:{(3*w+k)*2048+1024}")
        a("s_waitcnt lgkmcnt(0)")
        for ch in range(2):
            for jj in range(0, 8, 2):
                a(f"v_pk_add_f32 {v(64+8*ch+jj,2)}, {v(regs[ch]+jj,2)}, {v(regs[ch+2]+jj,2)}")
        if w < 3:
            a("s_branch k2_cv_out")
    a.lab("k2_cv_out")
    dbg_ts(a, 4)
    for jj in range(8):
        a(f"v_cvt_pk_bf16_f32 v{16+jj}, v{64+jj}, v{72+jj}")
    for cb in range(2):
        for jj in range(4):
            so = 8 + cb + 2 * (jj // 2)
            a(f"buffer_store_dword v{16+4*cb+jj}, v13, s[52:55], s{so} offen offset:{(jj%2)*2048}")
    dbg_end(a, 1)
    a("@touch k3")
    a.lab("k2_end")
    a("s_endpgm")
    return a, desc("k2_kernel", 128)


K3_LDS = 131072


def gen_k3():
    a = Asm()
    head(a, "k3_kernel")
    a(f"""
    s_cmp_ge_u32 s2, 256
    s_cbranch_scc1 k3_end
    """)
    dbg_start(a)
    a(f"""
    s_load_dwordx2 s[40:41], s[0:1], 112
    s_load_dwordx4 s[16:19], s[0:1], 88
    v_lshrrev_b32 v1, 6, v0
    v_and_b32 v0, 63, v0
    s_and_b32 s4, s2, 7
    v_readfirstlane_b32 s3, v1
    v_readfirstlane_b32 s94, v1
    s_lshr_b32 s5, s2, 3
    v_lshlrev_b32 v1, 4, v0
    s_lshl_b32 s6, s4, 2
    s_lshr_b32 s7, s5, 3
    s_add_u32 s6, s6, s7            ; rt
    s_and_b32 s7, s5, 7             ; ct
    s_and_b32 s10, s3, 1
    s_bfe_u32 s11, s3, 0x10001
    s_cmp_ge_u32 s3, 4
    s_cbranch_scc1 k3_mm
    s_lshl_b32 s12, s3, 11
    s_lshl_b32 s8, s6, 16
    s_lshl_b32 s9, s11, 15
    s_add_u32 s8, s8, s9
    s_lshl_b32 s9, s10, 11
    s_add_u32 s8, s8, s9
    s_add_u32 s8, s8, {OI}          ; O base
    v_lshrrev_b32 v2, 3, v0         ; row
    v_and_b32 v3, 7, v0
    v_bfe_u32 v4, v0, 4, 1
    v_lshlrev_b32 v4, 2, v4
    v_xor_b32 v3, v3, v4
    v_lshlrev_b32 v2, 10, v2
    v_lshl_add_u32 v2, v3, 4, v2
    v_add_u32 v3, {8192-1024}, v2
    s_lshl_b32 s9, s7, 7
    s_lshl_b32 s13, s3, 14
    s_add_u32 s9, s9, s13
    s_and_b32 s60, s7, {E("K3_ROT", 0)}
    s_mov_b32 s46, {hex(WS_BYTES)}
    s_mov_b32 s47, 0x00020000
    s_mov_b32 s50, {hex(512*512*2)}
    s_mov_b32 s51, 0x00020000
    s_waitcnt lgkmcnt(0)
    s_mov_b32 s44, s40
    s_and_b32 s45, s41, 0xffff
    s_mov_b32 s48, s16
    s_and_b32 s49, s17, 0xffff
    """)

    def chunk(c):
        a(f"""
        s_add_u32 m0, s12, {c*16384}
        s_lshl_b32 s14, s60, 12
        s_add_u32 s14, s14, s8
        buffer_load_dwordx4 v1, s[44:47], s14 offen lds
        buffer_load_dwordx4 v1, s[44:47], s14 offen offset:1024 lds
        s_add_u32 m0, s12, {c*16384 + 8192}
        s_lshl_b32 s14, s60, 16
        s_add_u32 s14, s14, s9
        buffer_load_dwordx4 v2, s[48:51], s14 offen lds
        buffer_load_dwordx4 v3, s[48:51], s14 offen offset:1024 lds
        s_add_u32 s60, s60, 1
        s_and_b32 s60, s60, 7
        """)

    LA = E("K3_LA", 4)
    for c in range(LA):
        chunk(c)
    dbg_ts(a, 0)
    for b in range(8):
        a(f"s_waitcnt vmcnt({4*(min(8, b+LA) - b - 1)})")
        a("s_barrier")
        if b + LA < 8:
            chunk(b + LA)
    dbg_end(a, 2)
    a("s_endpgm")

    a.lab("k3_mm")
    a(f"""
    s_lshl_b32 s12, s10, 12
    v_add_u32 v2, s12, v1
    v_lshrrev_b32 v5, 5, v0         ; h
    v_bfe_u32 v3, v0, 2, 2
    v_lshl_add_u32 v3, v5, 2, v3    ; row = 4h + (i>>2)
    v_lshlrev_b32 v3, 7, v3
    v_bfe_u32 v4, v0, 3, 1
    v_xor_b32 v4, s11, v4
    v_lshl_add_u32 v3, v4, 6, v3
    v_and_b32 v4, 1, v0
    v_lshl_add_u32 v3, v4, 5, v3    ; + 16*(c&1) cols
    v_bfe_u32 v4, v0, 4, 1
    v_lshl_add_u32 v3, v4, 4, v3    ; + 8G cols
    v_bfe_u32 v4, v0, 1, 1
    v_lshl_add_u32 v3, v4, 3, v3    ; + 4*(c>>1) cols
    v_add_u32 v3, 8192, v3
    v_add_u32 v6, 65536, v2
    v_add_u32 v7, 65536, v3
    s_lshl_b32 s12, s6, 1
    s_add_u32 s12, s12, s10
    s_lshl_b32 s12, s12, 16         ; (2rt+qh)*32*2048
    s_lshl_b32 s13, s7, 1
    s_add_u32 s13, s13, s11
    s_lshl_b32 s13, s13, 6
    s_add_u32 s12, s12, s13
    s_add_u32 s12, s12, 1024
    s_add_u32 s13, s12, {16*2048}
    s_lshl_b32 s14, s3, 12
    v_and_b32 v4, 31, v0
    v_mul_u32_u24 v4, 80, v4
    v_lshl_add_u32 v4, v5, 5, v4
    v_add_u32 v4, s14, v4
    v_lshrrev_b32 v5, 2, v0
    v_and_b32 v9, 3, v0
    v_lshlrev_b32 v9, 4, v9
    v_lshl_add_u32 v8, v5, 11, v9
    v_mul_u32_u24 v5, 80, v5
    v_add3_u32 v5, v5, v9, s14
    s_waitcnt lgkmcnt(0)
    """)
    srd(a, 52, 18, 2048 * 1024 * 2)
    if DBG:
        srd(a, 44, 40, WS_BYTES)
    D = 80
    for c in range(8):
        a("s_barrier")
        if c in (0, 4, 7):
            dbg_ts(a, {0: 1, 4: 2, 7: 3}[c])
        F = 16 + 32 * (c % 2)
        ob, wb = (2, 3) if c < 4 else (6, 7)
        so = (c % 4) * 16384
        for i in range(4):
            a(f"ds_read_b128 {v(F+8*i,4)}, v{ob} offset:{so + i*1024}")
            a(f"ds_read_b64_tr_b16 {v(F+8*i+4,2)}, v{wb} offset:{so + i*2048}")
            a(f"ds_read_b64_tr_b16 {v(F+8*i+6,2)}, v{wb} offset:{so + i*2048 + 1024}")
        for i in range(4):
            a(f"s_waitcnt lgkmcnt({9-3*i})")
            cc = "0" if (c == 0 and i == 0) else v(D, 16)
            a(f"v_mfma_f32_32x32x16_bf16 {v(D,16)}, {v(F+8*i+4,4)}, {v(F+8*i,4)}, {cc}")
    a("s_nop 11")
    dbg_ts(a, 4)
    for j in range(4):
        a(f"v_cvt_pk_bf16_f32 v{16+j}, v{D+2*j}, v{D+2*j+1}")
    a("ds_write_b128 v4, v[16:19]")
    for j in range(4, 8):
        a(f"v_cvt_pk_bf16_f32 v{16+j}, v{D+2*j}, v{D+2*j+1}")
    a(f"""
    ds_write_b128 v4, v[20:23] offset:16
    ds_read_b128 v[24:27], v5
    ds_read_b128 v[28:31], v5 offset:{16*80}
    s_waitcnt lgkmcnt(1)
    buffer_store_dwordx4 v[24:27], v8, s[52:55], s12 offen
    s_waitcnt lgkmcnt(0)
    buffer_store_dwordx4 v[28:31], v8, s[52:55], s13 offen
    """)
    dbg_end(a, 2)
    a.lab("k3_end")
    a("s_endpgm")
    return a, desc("k3_kernel", 96)


def isize(l):
    t = l.split(";")[0].strip()
    if not t or t.endswith(":") or t.startswith((".", "@")):
        return 0
    op = t.split()[0]
    if op.startswith(("buffer_", "global_", "ds_", "v_mfma", "v_smfmac", "v_pk", "v_cvt_pk", "v_lshl_", "v_bfe", "v_fma_", "v_max3", "v_perm_",
                      "v_add3", "s_load", "s_mem", "v_readlane")) or "_dpp" in op or "_e64" in op:
        return 8
    import re
    for m in re.findall(r"[ ,](0x[0-9a-f]+|\d+)(?=,|$)", t if not op.startswith(("s_nop", "s_setprio")) else ""):
        if int(m, 0) > 64:
            return 8
    return 4


def add_stops(a, k, ranges, sp, tgt='end', first=True):
    out, names, on, acc = [], [], False, 0
    for l in a.L:
        if any(l == r[1] + ":" for r in ranges):
            on = False
        if on and acc >= sp and isize(l):
            names.append(f"{k}_s{len(names)}")
            out += [names[-1] + ":", f"    s_cbranch_execz {k}_{tgt}"]
            acc = 4
        out.append(l)
        acc += isize(l)
        if any(l == r[0] + ":" for r in ranges):
            on, acc = True, (sp if first else 0)
    a.L = out
    return names


def add_touch(a, k, names):
    i = a.L.index(f"    @touch {k}")
    L = []
    if names:
        assert len(names) <= 64, len(names)
        L = [f"s_bfe_u32 s92, s2, {0x30003 if len(names) <= 32 else 0x40003}", "s_and_b32 s93, s94, 3", "s_lshl2_add_u32 s92, s92, s93", "s_mov_b64 exec, 0"]
        for j, n in enumerate(names):
            L += [f"s_cmp_eq_u32 s92, {j}", f"s_cbranch_scc1 {n}"]
        if k != "k1":
            L.append("s_endpgm")
        else:
            assert a.L[i + 1] == "k1_ret:" and a.L[i + 2].strip() == "s_mov_b64 exec, -1"
    a.L[i:i+1] = ["    " + l for l in L]


def build():
    ks = [gen_k1(), gen_k2(), gen_k3()]
    sp = E("TCH", 256)
    n2 = add_stops(ks[1][0], "k2", [("k2_kernel", "k2_fallback"), ("k2_conv", os.environ.get("TCH_E", "k2_cv_e1"))], sp) if sp else []
    n3 = add_stops(ks[2][0], "k3", [("k3_kernel", "k3_end")], sp) if sp else []
    print("stops", len(n2), len(n3), file=sys.stderr)
    s1 = E("TCH1", 256)
    n1 = add_stops(ks[0][0], "k1", [("k1_ret", "k1_end")], s1, "ret", False) if s1 else []
    if E("TCH1R", 1):
        L = ks[0][0].L
        il = L.index("k1_load:")
        n1 = [n for n in n1 if L.index(n + ":") > il] + [n for n in n1 if L.index(n + ":") < il]
    print("stops1", len(n1), file=sys.stderr)
    add_touch(ks[0][0], "k1", n1)
    add_touch(ks[0][0], "k2", n2)
    add_touch(ks[1][0], "k3", n3)
    hdr = [
        "; generated by work/gen.py",
        f"; @launch kernel=k1_kernel grid=(256,1,1) block=(768,1,1) lds={K1_LDS}",
        f"; @launch kernel=k2_kernel grid=(256,1,1) block=(768,1,1) lds={K2_LDS}",
        f"; @launch kernel=k3_kernel grid=(256,1,1) block=(512,1,1) lds={K3_LDS}",
    ]
    out = "\n".join(hdr) + "\n"
    out += '.amdgcn_target "amdgcn-amd-amdhsa--gfx950"\n.text\n'
    for a, d in ks:
        out += a.text()
    out += '.section .rodata,"a"\n'
    for a, d in ks:
        out += d
    return out


if __name__ == "__main__":
    path = sys.argv[1] if len(sys.argv) > 1 else f"cdna_kernels/{NAME}.s"
    open(path, "w").write(build())
    print("wrote", path)
```

```python
from genlib import *

E = lambda k, d: int(os.environ.get(k, str(d)))

K1_XB = 0
K1_RING = 8192
K1_LDS = K1_RING + 9 * 16384
K1_UNITS = [[('x', 0), (0, 0)], [(1, 0), (2, 0)], [('x', 1), (0, 1)], [(1, 1), (2, 1)],
            [(0, 2), ('x', 2)], [('x', 3), (0, 3)]]
K1_UNITS += [[[(1, 2)], [(1, 3)], [(2, 2)], [(2, 3)]], [[(1, 2), (1, 3)], [(2, 2)], [(2, 3)]],
             [[(1, 2), (1, 3)], [(2, 2), (2, 3)]]][E("K1_TAIL", 1)]
K1_NB = len(K1_UNITS)
K1_PIECES = [(pc, u) for u, ps in enumerate(K1_UNITS) for pc in ps]
K1_AREA = {pc: i % 9 for i, (pc, u) in enumerate(K1_PIECES)}
K1_ISSUE = {-1: range(E("K1_LA", 5))}
_n = E("K1_LA", 5)
for _b in range(K1_NB):
    _lim = {0: 9, 1: 9, 2: 12, 3: 13}.get(_b, 16)
    K1_ISSUE[_b] = list(range(_n, min(_n + 2, _lim)))
    _n += len(K1_ISSUE[_b])
    assert all(K1_PIECES[i][1] > _b for i in K1_ISSUE[_b])
assert _n == 16
K1_STEPS = [(pc[0], pc[1], k8, u) for u, ps in enumerate(K1_UNITS) for pc in ps if pc[0] != 'x' for k8 in range(8)]
K1_UNIT = [min(g for g, st in enumerate(K1_STEPS) if st[3] == u) for u in range(K1_NB)]
K1_LAST = [max(g for g, st in enumerate(K1_STEPS) if st[0] == sg) for sg in range(3)]


def cost(line):
    t = line.strip()
    if t.startswith(("v_exp", "v_sin", "v_cos", "v_rcp", "v_mfma")):
        return 8
    if t.startswith(("v_cvt_pk", "v_fma_", "v_pk")) or "_dpp" in t:
        return 5
    return 4


def splice(lines, marks):
    out, acc, k = [], 0, 0
    nbar = len(marks)
    for l in lines:
        if k < nbar and acc >= marks[k]:
            if DBG and k == 0:
                out.append("    s_memtime s[66:67]")
            out.append("    s_barrier")
            k += 1
        out.append(l)
        acc += cost(l)
    assert k >= 1
    return out


def gen_k1():
    a = Asm()
    head(a, "k1_kernel")
    a(f"""
    s_cmp_ge_u32 s2, 256
    s_cbranch_scc1 k1_end
    """)
    dbg_start(a)
    a(f"""
    s_load_dwordx8 s[32:39], s[0:1], 64
    s_load_dwordx16 s[16:31], s[0:1], 0
    s_load_dwordx2 s[40:41], s[0:1], 112
    v_lshrrev_b32 v1, 6, v0
    v_and_b32 v0, 63, v0
    s_and_b32 s4, s2, 7             ; xcd
    v_readfirstlane_b32 s3, v1
    v_readfirstlane_b32 s94, v1
    s_lshr_b32 s5, s2, 3            ; idx
    s_and_b32 s15, s3, 3
    s_lshr_b32 s14, s3, 2
    s_cmp_eq_u32 s14, 1
    s_cbranch_scc1 k1_kgen
    s_and_b32 s6, s4, 1
    s_lshl_b32 s6, s6, 2
    s_and_b32 s7, s5, 3
    s_add_u32 s6, s6, s7
    s_lshr_b32 s7, s4, 1
    s_lshl_b32 s7, s7, 3
    s_lshr_b32 s8, s5, 2
    s_add_u32 s7, s7, s8
    s_and_b32 s12, s15, 1           ; rb
    s_lshr_b32 s13, s15, 1          ; hb
    s_lshl_b32 s8, s7, 1
    s_add_u32 s8, s8, s12
    s_lshl_b32 s12, s12, 12
    v_lshrrev_b32 v13, 5, v0        ; h
    s_cmp_eq_u32 s14, {2 if E("K1_ORD", 0) else 0}
    s_cbranch_scc1 {"k1_gemm" if E("K1_ORD", 0) else "k1_load"}
    """)
    a.lab("k1_gemm")
    a("@touch k1")
    a.lab("k1_ret")
    if E("TCH1", 256):
        a("s_mov_b64 exec, -1")

    DP = E("K1_DP", 6)
    XB0, WB0 = 8, 16
    XF, WF = 20, 36
    XR = 96
    ACC = [64, 80, 20]
    assert DP <= 6
    a(f"""
    v_and_b32 v7, 31, v0            ; s
    v_bfe_u32 v14, v0, 1, 3         ; (s>>1)&7
    v_xor_b32 v14, v14, v13         ; h ^ f
    v_lshlrev_b32 v15, 7, v7
    s_add_u32 s12, s12, {K1_RING}
    v_add_u32 v15, s12, v15         ; rb*4096 + s*128
    v_lshl_add_u32 v8, v14, 4, v15
    v_xor_b32 v9, 32, v8
    v_xor_b32 v10, 64, v8
    v_xor_b32 v11, 96, v8
    v_lshlrev_b32 v16, 10, v13      ; h*1024
    v_bfe_u32 v14, v0, 2, 2         ; r
    v_lshl_add_u32 v16, v14, 7, v16
    v_bfe_u32 v14, v0, 3, 1         ; r>>1
    v_xor_b32 v14, s13, v14
    v_lshl_add_u32 v16, v14, 6, v16
    v_bfe_u32 v14, v0, 4, 1
    v_lshl_add_u32 v16, v14, 5, v16
    v_and_b32 v14, 3, v0
    v_lshl_add_u32 v16, v14, 3, v16
    v_add_u32 v16, {K1_RING}, v16
    v_add_u32 v12, 65536, v8
    v_add_u32 v13, 65536, v9
    v_add_u32 v14, 65536, v10
    v_add_u32 v15, 65536, v11
    v_add_u32 v17, 65536, v16
    v_add_u32 v18, 131072, v16
    s_lshl_b32 s6, s6, 1
    s_add_u32 s6, s6, s13
    """)

    def reads(g):
        seg, p, k8, u = K1_STEPS[g]
        L = []
        if seg == 0:
            ar = K1_AREA[('x', p)]
            L.append(f"ds_read_b128 {v(XR+32*(p==3)+4*k8,4)}, v{XB0 + 4*(ar//4) + k8%4} offset:{(ar%4)*16384 + (k8//4)*8192}")
        ar = K1_AREA[(seg, p)]
        for half in range(2):
            L.append(f"ds_read_b64_tr_b16 {v(WF+4*(g%(DP+1))+2*half,2)}, v{WB0 + ar//4} offset:{(ar%4)*16384 + k8*2048 + half*512}")
        return L

    def mfma(g):
        seg, p, k8, u = K1_STEPS[g]
        x, w, d = v(XR + 32 * (p == 3) + 4 * k8, 4), v(WF + 4 * (g % (DP + 1)), 4), v(ACC[seg], 16)
        c = "0" if p == 0 and k8 == 0 else d
        return f"v_mfma_f32_32x32x16_bf16 {d}, {w}, {x}, {c}" if seg < 2 else f"v_mfma_f32_32x32x16_bf16 {d}, {x}, {w}, {c}"

    a(f"""
    s_lshl_b32 s10, s6, 17          ; fg*2*65536
    s_lshl_b32 s11, s8, 10
    s_add_u32 s10, s10, s11
    s_add_u32 s10, s10, {QI}        ; Q head A
    s_add_u32 s11, s10, 65536       ; Q head B
    s_lshl_b32 s12, s6, 18          ; fg*2*131072
    s_lshl_b32 s13, s8, 11
    s_add_u32 s12, s12, s13
    s_add_u32 s12, s12, {KVI}
    s_add_u32 s13, s12, 131072
    v_lshlrev_b32 v1, 4, v0         ; lane*16
    v_and_b32 v2, 0x33, v0
    v_bfe_u32 v3, v0, 2, 1
    v_lshl_or_b32 v2, v3, 3, v2
    v_bfe_u32 v3, v0, 3, 1
    v_lshl_or_b32 v2, v3, 2, v2
    v_lshlrev_b32 v2, 4, v2         ; K voffset
    v_and_b32 v3, 15, v0
    v_lshlrev_b32 v3, 4, v3
    v_lshrrev_b32 v4, 5, v0
    v_lshl_add_u32 v3, v4, 8, v3
    v_bfe_u32 v4, v0, 4, 1
    v_lshl_add_u32 v3, v4, 17, v3   ; V voffset
    s_mov_b32 s14, {fl(0.25*LOG2E)}
    s_mov_b32 s15, {fl(0.25*LOG2E)}
    """)
    a("s_waitcnt lgkmcnt(0)")
    srd(a, 44, 40, WS_BYTES)
    if E("K1_GPRIO", 2):
        a(f"s_setprio {E('K1_GPRIO', 2)}")

    def epi(seg):
        L = []
        A = ACC[seg]
        f = STFS[seg]
        for j in range(8):
            if seg == 0:
                L.append(f"v_pk_mul_f32 {v(A+2*j,2)}, {v(A+2*j,2)}, s[14:15]")
            L.append(f"v_cvt_pk_bf16_f32 v{A+j}, v{A+2*j}, v{A+2*j+1}")
            if j == 3:
                L.append({0: f"buffer_store_dwordx4 {v(A,4)}, v1, s[44:47], s10 offen{f}",
                          1: f"buffer_store_dwordx4 {v(A,4)}, v2, s[44:47], s12 offen{f}",
                          2: f"buffer_store_dwordx4 {v(A,4)}, v3, s[44:47], s12 offen offset:1024{f}"}[seg])
            if j == 7:
                L.append({0: f"buffer_store_dwordx4 {v(A+4,4)}, v1, s[44:47], s11 offen{f}",
                          1: f"buffer_store_dwordx4 {v(A+4,4)}, v2, s[44:47], s13 offen{f}",
                          2: f"buffer_store_dwordx4 {v(A+4,4)}, v3, s[44:47], s12 offen offset:1536{f}"}[seg])
        return L

    dbg_ts(a, 0)
    a("s_barrier")
    dbg_ts(a, 1)
    cnt = {}
    tot = 0
    for g in range(DP):
        for l in reads(g):
            a(l)
        tot += len(reads(g))
        cnt[g] = tot
    fill = []
    for g in range(96):
        a(f"s_waitcnt lgkmcnt({min(15, tot - cnt[g])})")
        a(mfma(g))
        n = g + DP
        if n < 96:
            if n in K1_UNIT:
                u = K1_UNIT.index(n)
                a("s_barrier")
                if u in (2, 4, 6, 8) and u < K1_NB:
                    dbg_ts(a, 1 + u // 2)
            for l in reads(n):
                a(l)
            tot += len(reads(n))
            cnt[n] = tot
        if g - 2 in K1_LAST:
            fill = fill + epi(K1_LAST.index(g - 2))
        nf = E("K1_NF", 2)
        for l in fill[:nf]:
            a(l)
        fill = fill[nf:]
    for l in fill:
        a(l)
    dbg_ts(a, 6)
    a("s_nop 11")
    if not DBG:
        a("s_nop 1")
    for l in epi(2):
        a(l)
    dbg_end(a, 0)
    a("s_endpgm")

    if E("K1_AL", 1):
        a(".p2align 7")
    a.lab("k1_load")
    a(f"""
    s_lshl_b32 s9, s8, 15
    s_lshl_b32 s10, s13, 14
    s_add_u32 s9, s9, s10
    s_lshl_b32 s10, s13, 11
    s_add_u32 s12, s12, s10
    v_lshrrev_b32 v1, 3, v0         ; lane>>3
    v_and_b32 v7, 7, v0             ; lane&7
    v_lshrrev_b32 v8, 4, v0         ; lane>>4
    v_xor_b32 v4, v7, v8
    v_lshlrev_b32 v5, 10, v1
    v_lshl_add_u32 v2, v4, 4, v5    ; q even
    v_xor_b32 v3, 64, v2            ; chunk^4
    v_add_u32 v3, 7168, v3          ; q odd
    s_mul_i32 s10, s15, {32*3072}
    s_lshl_b32 s11, s6, 7
    s_add_u32 s10, s10, s11
    s_lshl_b32 s13, s15, 12
    v_and_b32 v8, 1, v8
    v_lshlrev_b32 v8, 2, v8
    v_xor_b32 v7, v7, v8
    v_mul_u32_u24 v8, 3072, v1
    v_lshl_add_u32 v10, v7, 4, v8
    v_add_u32 v10, s10, v10         ; W voffsets v10..13
    v_add_u32 v11, {8*3072-1024}, v10
    v_add_u32 v12, {2*(8*3072-1024)}, v10
    v_add_u32 v13, {3*(8*3072-1024)}, v10
    {["s_add_u32 s60, s6, s7", "s_mov_b32 s60, s7", "s_mov_b32 s60, s6", "s_lshr_b32 s60, s7, 1"][E("K1_RM", 0)]}
    """)
    for p in range(4):
        a(f"""
        s_and_b32 s60, s60, {E("K1_ROT", 3)}
        s_lshl_b32 s{56+p}, s60, 8
        s_add_u32 s{56+p}, s{56+p}, s9
        s_mul_i32 s{96+p}, s60, {128*3072}
        s_add_u32 s60, s60, 1
        """.replace("s_and_b32 s60, s60, 0", "s_and_b32 s60, s60, %d" % (0 if p == 0 else 3)))
    a(f"""
    s_mov_b32 s50, {hex(2048*512*2)}
    s_mov_b32 s51, 0x00020000
    s_mov_b32 s54, {hex(512*1536*2)}
    s_mov_b32 s55, 0x00020000
    s_waitcnt lgkmcnt(0)
    s_mov_b32 s48, s34
    s_and_b32 s49, s35, 0xffff
    s_mov_b32 s52, s36
    s_and_b32 s53, s37, 0xffff
    """)
    q = []

    def dma_x(p):
        base = K1_RING + K1_AREA[('x', p)] * 16384
        a(f"""
        s_add_u32 m0, s12, {base}
        s_add_u32 s14, s{56+p}, 128
        buffer_load_dwordx4 v2, s[48:51], s{56+p} offen lds
        buffer_load_dwordx4 v3, s[48:51], s{56+p} offen offset:1024 lds
        s_add_u32 m0, s12, {base + 8192}
        s_nop 0
        buffer_load_dwordx4 v2, s[48:51], s14 offen lds
        buffer_load_dwordx4 v3, s[48:51], s14 offen offset:1024 lds
        """)

    def dma_w(seg, p):
        base = K1_RING + K1_AREA[(seg, p)] * 16384
        a(f"""
        s_add_u32 m0, s13, {base}
        s_add_u32 s14, s{96 + p}, {seg*1024}
        """)
        for i in range(4):
            a(f"buffer_load_dwordx4 v{10+i}, s[52:55], s14 offen offset:{i*1024} lds")

    def piece(i):
        pc, u = K1_PIECES[i]
        if pc[0] == 'x':
            dma_x(pc[1])
        else:
            dma_w(*pc)
        q.extend([u] * 4)

    def wait_for(tag):
        last = max(i for i, t in enumerate(q) if t == tag)
        a(f"s_waitcnt vmcnt({len(q) - 1 - last})")

    for i in K1_ISSUE[-1]:
        piece(i)
    if DBG:
        srd(a, 44, 40, WS_BYTES)
    for b in range(K1_NB):
        wait_for(b)
        if b < 8:
            dbg_ts(a, b)
        a("s_barrier")
        for i in K1_ISSUE.get(b, []):
            piece(i)
    dbg_end(a, 0)
    a("@touch k2")
    a("s_endpgm")

    if E("K1_AL", 1):
        a(".p2align 7")
    a.lab("k1_kgen")
    XA, XY, XC, XAD = 64, 65, 66, 67
    SA, SB, SC, SD, SE = 68, 69, 70, 71, 72
    a(f"""
    s_setprio 3
    s_lshl_b32 s6, s4, 6
    s_lshl_b32 s7, s5, 1
    s_add_u32 s6, s6, s7
    s_lshr_b32 s7, s15, 1
    s_add_u32 s6, s6, s7            ; channel d
    s_lshl_b32 s8, s6, 8
    s_and_b32 s9, s15, 1
    s_lshl_b32 s9, s9, 7
    s_add_u32 s8, s8, s9            ; d*256 + half*128
    s_lshl_b32 s9, s6, 1
    v_lshl_add_u32 v1, v0, 1, s8
    v_mov_b32 v10, s9
    s_lshl_b32 s12, s7, 12
    s_add_u32 s12, s12, {K1_XB}
    v_lshl_add_u32 v{XAD}, v0, 4, s12
    """)
    for i in range(2, 10):
        a(f"v_mov_b32 v{i}, 0")
    MID = f"""
    s_mul_i32 s11, s6, {KD_PITCH}
    s_add_u32 s11, s11, {KD}
    s_mov_b32 s13, {fl(LOG2E)}
    s_mov_b32 s14, {fl(1.0/(2*math.pi))}
    v_and_b32 v20, 15, v0           ; i / j
    v_lshrrev_b32 v21, 4, v0        ; g / G
    v_and_b32 v22, 1, v0
    v_cvt_f32_u32 v{XA}, v20
    v_mul_f32 v{XY}, 16.0, v{XA}
    v_and_b32 v23, 3, v0
    v_lshlrev_b32 v23, 2, v23
    v_lshrrev_b32 v24, 2, v20
    v_lshl_add_u32 v23, v24, 8, v23
    v_add_u32 v23, 512, v23         ; i<8 : 512 + 4(i&3) + 256(i>>2)
    v_lshlrev_b32 v24, 3, v22
    v_lshrrev_b32 v25, 1, v20
    v_lshl_add_u32 v24, v25, 8, v24 ; i>=8: 8(i&1) + 256(i>>1)
    v_cmp_gt_u32 vcc, 8, v20
    v_sub_u32 v{SE}, 63, v0
    v_cndmask_b32 v23, v24, v23, vcc
    v_cvt_f32_u32 v{XC}, v23
    v_lshlrev_b32 v{SE}, 2, v{SE}
    v_lshlrev_b32 v{SB}, 5, v20
    v_lshl_add_u32 v{SB}, v21, 3, v{SB}     ; seg0: 32j + 8G
    v_lshrrev_b32 v24, 5, v0                ; G>>1
    v_sub_u32 v25, 3, v24
    v_lshlrev_b32 v25, v25, v20
    v_lshl_add_u32 v{SC}, v21, 7, v25       ; seg2/3 A - 768
    v_mul_u32_u24 v24, 60, v24
    v_add3_u32 v{SD}, v24, v{SC}, 4         ; B - 768
    v_lshrrev_b32 v{SA}, 1, v{SB}           ; seg1: 16j + 4G
    v_cmp_eq_u32 vcc, 0, v0
    """
    LD = """
    s_waitcnt lgkmcnt(0)
    global_load_short_d16_hi v8, v10, s[30:31]
    global_load_short_d16_hi v2, v1, s[18:19]
    global_load_short_d16_hi v3, v1, s[20:21]
    global_load_short_d16_hi v4, v1, s[22:23]
    global_load_short_d16_hi v5, v1, s[24:25]
    global_load_short_d16_hi v6, v1, s[26:27]
    global_load_short_d16_hi v7, v1, s[28:29]
    global_load_short_d16_hi v9, v10, s[32:33]
    """
    a(f"""
    ds_write_b32 v{XAD}, v2 offset:3072
    {LD if E("KG_EARLY", 1) else MID}
    {MID if E("KG_EARLY", 1) else LD}
    """)
    srd(a, 44, 40, WS_BYTES)
    a(f"s_setprio {E('KG_PRIO', 2)}")
    PP, PW, WR, WI, CR, CI, KL = 12, 13, 14, 15, 16, 17, 18
    DPP = lambda j: f"row_newbcast:{j} row_mask:0xf bank_mask:0xf"
    k = Asm()
    k(f"""
    s_waitcnt vmcnt(7)
    v_mul_f32 v8, s13, v8
    v_exp_f32 v8, v8
    s_nop 0
    v_cvt_pk_bf16_f32 v8, v8, v8
    v_lshlrev_b32 v8, 16, v8                ; dt
    s_waitcnt vmcnt(5)
    v_mul_f32 v2, v8, v2
    v_mul_f32 v3, v8, v3
    v_mul_f32 v{PP}, s13, v2                ; p
    v_mul_f32 v{PW}, s14, v3                ; w
    v_rndne_f32 v3, v{PW}
    v_sub_f32 v{PW}, v{PW}, v3
    v_mul_f32 v20, {fl(256.0)}, v{PP}
    v_mul_f32 v21, {fl(256.0)}, v{PW}
    v_mul_f32 v22, {fl(2048.0)}, v{PP}
    v_mul_f32 v23, {fl(2048.0)}, v{PW}
    v_exp_f32 v20, v20
    v_exp_f32 v22, v22
    v_fract_f32 v23, v23
    v_cos_f32 v{CR}, v21
    v_sin_f32 v{CI}, v21
    v_cos_f32 v18, v23
    v_sin_f32 v19, v23
    s_waitcnt vmcnt(1)
    {"s_memtime s[64:65]" if DBG else ""}
    v_mul_f32 v4, v8, v4
    v_mul_f32 v5, v8, v5
    v_mul_f32 v{WR}, v6, v4
    v_mul_f32_e64 v{WI}, -v6, v5
    v_fma_f32 v{WR}, -v7, v5, v{WR}         ; Re W
    v_fma_f32 v{WI}, -v7, v4, v{WI}         ; -Im W
    v_mul_f32 v{CR}, v20, v{CR}
    v_mul_f32 v{CI}, v20, v{CI}
    v_mul_f32 v18, v{WR}, v18
    v_fmac_f32 v18, v{WI}, v19
    v_mul_f32 v{KL}, v22, v18               ; Re(W g^2048)
    """)
    red = [f"v_add_f32_dpp v{KL}, v{KL}, v{KL} {m}" for m in (
        "row_ror:1 row_mask:0xf bank_mask:0xf", "row_ror:2 row_mask:0xf bank_mask:0xf",
        "row_ror:4 row_mask:0xf bank_mask:0xf", "row_ror:8 row_mask:0xf bank_mask:0xf",
        "row_bcast:15 row_mask:0xa bank_mask:0xf", "row_bcast:31 row_mask:0xc bank_mask:0xf")]
    D0, D1, D2 = 20, 24, 28
    FX0, FX1, FX2, FY = 32, 36, 40, 44
    T = lambda q: 48 + q
    U = lambda q: 52 + q
    C = lambda q: 56 + q
    S = lambda q: 60 + q
    A_ = lambda q: 76 + q
    B_ = lambda q: 80 + q
    for ks in range(4):
        J = lambda q: 4 * ks + q

        def polar(X, fract):
            for q in range(4):
                k(f"v_mul_f32_dpp v{T(q)}, v{PP}, v{X} {DPP(J(q))}")
                k(f"v_mul_f32_dpp v{U(q)}, v{PW}, v{X} {DPP(J(q))}")
            if red:
                k(red.pop(0))
            for q in range(4):
                k(f"v_exp_f32 v{T(q)}, v{T(q)}")
                if fract:
                    k(f"v_fract_f32 v{U(q)}, v{U(q)}")
            for q in range(4):
                k(f"v_cos_f32 v{C(q)}, v{U(q)}")
                k(f"v_sin_f32 v{S(q)}, v{U(q)}")

        def mf(D, F):
            c = "0" if ks == 0 else v(D, 4)
            k(f"v_mfma_f32_16x16x32_bf16 {v(D,4)}, {v(F,4)}, {v(FY,4)}, {c}")

        polar(XY, False)
        for q in range(4):
            k(f"v_mul_f32_dpp v{A_(q)}, v{WR}, v{T(q)} {DPP(J(q))}")
            k(f"v_mul_f32_dpp v{B_(q)}, v{WI}, v{T(q)} {DPP(J(q))}")
        for q in range(4):
            k(f"v_mul_f32 v{T(q)}, v{A_(q)}, v{C(q)}")
            k(f"v_mul_f32 v{U(q)}, v{B_(q)}, v{C(q)}")
        for q in range(4):
            k(f"v_fmac_f32 v{T(q)}, v{B_(q)}, v{S(q)}")
            k(f"v_fma_f32 v{U(q)}, -v{A_(q)}, v{S(q)}, v{U(q)}")
        for q in range(4):
            k(f"v_cvt_pk_bf16_f32 v{FY+q}, v{T(q)}, v{U(q)}")
        polar(XC, True)
        for q in range(4):
            k(f"v_mul_f32 v{C(q)}, v{T(q)}, v{C(q)}")
            k(f"v_mul_f32 v{S(q)}, v{T(q)}, v{S(q)}")
        for q in range(4):
            k(f"v_cvt_pk_bf16_f32 v{FX2+q}, v{C(q)}, v{S(q)}")
        polar(XA, False)
        mf(D2, FX2)
        for q in range(4):
            k(f"v_mul_f32 v{C(q)}, v{T(q)}, v{C(q)}")
            k(f"v_mul_f32 v{S(q)}, v{T(q)}, v{S(q)}")
        for q in range(4):
            k(f"v_cvt_pk_bf16_f32 v{FX0+q}, v{C(q)}, v{S(q)}")
        for q in range(4):
            k(f"v_mul_f32_dpp v{T(q)}, v{CR}, v{C(q)} {DPP(J(q))}")
            k(f"v_mul_f32_dpp v{U(q)}, v{CI}, v{C(q)} {DPP(J(q))}")
        mf(D0, FX0)
        for q in range(4):
            k(f"v_fmac_f32_dpp v{T(q)}, -v{CI}, v{S(q)} {DPP(J(q))}")
            k(f"v_fmac_f32_dpp v{U(q)}, v{CR}, v{S(q)} {DPP(J(q))}")
        for q in range(4):
            k(f"v_cvt_pk_bf16_f32 v{FX1+q}, v{T(q)}, v{U(q)}")
        k("s_nop 1")
        mf(D1, FX1)
    k("""
    s_waitcnt vmcnt(0)
    v_cndmask_b32 v9, 0, v9, vcc
    """)
    m0, sg = [int(x) for x in os.environ.get("KG_MK", "800,400").split(",")]
    kl = splice(k.L, [m0 + sg * i for i in range(K1_NB)])
    a.L.extend(kl)
    nb = K1_NB - sum(1 for l in kl if l.strip() == "s_barrier")
    print("kgen cost", sum(cost(l) for l in k.L), "spare barriers", nb, file=sys.stderr)
    dbg_ts(a, 2)
    late = min(nb, E("KG_LATE", 0))
    for i in range(nb - late):
        a("s_barrier")
    a(f"""
    s_bitcmp1_b32 s15, 0
    s_cbranch_scc0 k1_kg_fin
    ds_write_b128 v{XAD}, {v(D2,4)} offset:2048
    ds_write_b128 v{XAD}, {v(D0,4)}
    v_mov_b32 v2, 1
    s_nop 2
    v_mov_b32 v{D1+1}, v{KL}
    ds_write_b128 v{XAD}, {v(D1,4)} offset:1024
    ds_write_b32 v{XAD}, v2 offset:3072
    """)
    for i in range(late):
        a("s_barrier")
    a("s_waitcnt lgkmcnt(0)")
    dbg_end(a, 0)
    a("s_endpgm")
    a.lab("k1_kg_fin")
    for i in range(late):
        a("s_barrier")
    a.lab("k1_kg_poll")
    a(f"""
    ds_read_b32 v2, v{XAD} offset:3072
    ds_read_b128 v[32:35], v{XAD}
    ds_read_b128 v[36:39], v{XAD} offset:1024
    ds_read_b128 v[40:43], v{XAD} offset:2048
    s_waitcnt lgkmcnt(0)
    v_readfirstlane_b32 s9, v2
    s_nop 0
    s_cmp_eq_u32 s9, 0
    s_cbranch_scc1 k1_kg_poll
    v_add_f32 v{D0}, v{D0}, v9
    v_mov_b32 v{D1+1}, v{KL}
    """)
    dbg_ts(a, 3)
    for j in range(12):
        if j != 7:
            a(f"v_add_f32 v{20+j}, v{20+j}, v{32+j}")
    a(f"""
    v_cvt_pk_bf16_f32 v12, v{D0}, v{D0+1}
    v_cvt_pk_bf16_f32 v13, v{D0+2}, v{D0+3}
    buffer_store_dwordx2 v[12:13], v{SB}, s[44:47], s11 offen{STFS[3]}
    v_cvt_pk_bf16_f32 v14, v{D1}, v{D1+2}
    v_cvt_pk_bf16_f32 v15, v{D2}, v{D2+1}
    v_cvt_pk_bf16_f32 v16, v{D2+2}, v{D2+3}
    v_cvt_pk_bf16_f32 v17, v{D1+1}, v{D1+1}
    buffer_store_dword v14, v{SA}, s[44:47], s11 offen offset:512{STFS[3]}
    buffer_store_dword v15, v{SC}, s[44:47], s11 offen offset:768{STFS[3]}
    buffer_store_dword v16, v{SD}, s[44:47], s11 offen offset:768{STFS[3]}
    buffer_store_dword v17, v{SE}, s[44:47], s11 offen offset:1280{STFS[3]}
    """)
    dbg_end(a, 0)
    a.lab("k1_end")
    a("s_endpgm")
    if E("K1_ORD", 0):
        i0, i1 = a.L.index("k1_gemm:"), a.L.index("k1_load:")
        a.L = a.L[:i0] + a.L[i1:] + a.L[i0:i1]
    return a, desc("k1_kernel", 160)


STF = os.environ.get("STF", "")
if STF:
    STF = " " + STF
CVF = os.environ.get("CVF", "")
STFS = [(" " + x if x else "") for x in os.environ.get("STFS", "sc0 sc1,sc0 sc1,sc0 sc1,sc0 sc1").split(",")]

WALK = E('K2_WALK', 0)
TP = 2080
CV_BASE = 64 * TP
CV_KS = 4160
CV_U = 8320
CV_CH = 12928
K2_FL = 163840 - 64
K2_LDS = 163840


def gen_k2():
    a = Asm()
    head(a, "k2_kernel")
    a(f"""
    s_cmp_ge_u32 s2, 256
    s_cbranch_scc1 k2_end
    """)
    dbg_start(a)
    a(f"""
    s_load_dwordx2 s[40:41], s[0:1], 112
    s_load_dwordx4 s[16:19], s[0:1], 88
    s_load_dwordx2 s[20:21], s[0:1], 0
    v_lshrrev_b32 v1, 6, v0
    v_and_b32 v0, 63, v0
    s_and_b32 s4, s2, 7
    v_readfirstlane_b32 s3, v1
    v_readfirstlane_b32 s94, v1
    s_lshr_b32 s5, s2, 3
    v_lshlrev_b32 v1, 4, v0
    s_lshl_b32 s6, s4, 2
    s_lshr_b32 s7, s5, 3
    s_add_u32 s6, s6, s7            ; head
    s_lshl_b32 s8, s6, 17
    s_add_u32 s8, s8, {KVI}
    s_mul_i32 s9, s3, {TP}
    s_lshl_b32 s10, s3, 11
    s_add_u32 s10, s10, s8
    s_mov_b32 m0, s9
    s_mov_b32 s46, {hex(WS_BYTES)}
    s_mov_b32 s47, 0x00020000
    s_cmp_ge_u32 s3, 8
    s_cbranch_scc1 k2_conv
    """)

    Q, IDX, KA, VA0, VA1 = 4, 2, 3, 28, 29
    KB = [8, 12]
    V0B = [16, 96]
    V1B = [20, 100]
    NEGM, O = 32, 80
    SB = [48, 64]
    FLV = 104
    a(f"""
    s_and_b32 s7, s5, 7
    s_lshl_b32 s7, s7, 3
    s_add_u32 s7, s7, s3            ; qt
    s_lshl_b32 s11, s6, 16
    s_lshl_b32 s12, s7, 10
    s_add_u32 s11, s11, s12
    s_add_u32 s11, s11, {QI}
    s_lshl_b32 s12, s7, 15
    s_lshl_b32 s13, s6, 10
    s_add_u32 s12, s12, s13
    s_add_u32 s12, s12, {OI}        ; O dest
    s_mov_b32 s24, 0
    v_mov_b32 v{IDX}, 0xdddddddd
    v_and_b32 v23, 15, v0
    v_lshrrev_b32 v24, 5, v0
    v_lshlrev_b32 v23, 4, v23
    v_lshl_add_u32 v30, v24, 8, v23
    v_add_u32 v30, 1024, v30
    v_add_u32 v31, 512, v30
    v_and_b32 v23, 16, v0
    v_cmp_eq_u32 vcc, 16, v23
    v_mov_b32 v24, 2064
    v_and_b32 v23, 27, v0
    v_mov_b32 v{FLV}, {K2_FL}
    v_cndmask_b32 v30, v30, v24, vcc
    v_cndmask_b32 v31, v31, v24, vcc
    v_cmp_eq_u32 vcc, 16, v23
    v_mov_b32 v24, 2048
    v_add_u32 v{KA}, s9, v1
    s_nop 0
    v_cndmask_b32 v30, v30, v24, vcc
    v_cndmask_b32 v31, v31, v24, vcc
    """)
    def zero_init():
        for j in range(4):
            a(f"v_mov_b32 v{V1B[1]+j}, 0")
        for j in range(8):
            a(f"v_mov_b32 v{SB[1]+8+j}, 0")
        for j in range(16):
            a(f"v_mov_b32 v{O+j}, 0")
    zero_init()
    if E("K2_PRIO", 1) == 1:
        a("""
        s_cmp_lt_u32 s3, 4
        s_cbranch_scc1 k2_np
        s_setprio 1
        """)
        a.lab("k2_np")
    a(f"""
    s_waitcnt lgkmcnt(0)
    s_mov_b32 s44, s40
    s_and_b32 s45, s41, 0xffff
    buffer_load_dwordx4 v1, s[44:47], s10 offen lds
    buffer_load_dwordx4 {v(Q,4)}, v1, s[44:47], s11 offen
    buffer_load_dwordx4 v1, s[44:47], s10 offen offset:1024 lds
    s_waitcnt vmcnt(1)
    ds_read_b128 {v(KB[0],4)}, v{KA}
    """)
    if DBG == 1:
        dbg_ts(a, 0)
    a(f"""
    s_waitcnt lgkmcnt(0)
    v_mfma_f32_32x32x16_bf16 {v(SB[0],16)}, {v(KB[0],4)}, {v(Q,4)}, 0
    s_nop 11
    v_max3_f32 v23, v{SB[0]}, v{SB[0]+1}, v{SB[0]+2}
    """)
    for j in range(3, 15, 2):
        a(f"v_max3_f32 v23, v23, v{SB[0]+j}, v{SB[0]+j+1}")
    a(f"v_max_f32 v23, v23, v{SB[0]+15}")
    a.lab("k2_start")
    a(f"""
    v_mov_b32 v24, v23
    v_mov_b32 v{KA}, v1
    v_mov_b32 v{VA0}, v30
    v_permlane32_swap_b32 v23, v24
    v_mov_b32 v{VA1}, v31
    s_mov_b32 s25, 0
    v_max_f32 v23, v23, v24
    """)
    a(f"v_sub_f32 v24, 0, v23")
    for j in range(0, 16, 2):
        a(f"v_pk_mov_b32 {v(NEGM+j,2)}, v[24:25], v[24:25] op_sel:[0,0]")
    a(f"""
    s_cmp_lg_u32 s24, 0
    s_cbranch_scc1 k2_nobar
    s_waitcnt vmcnt(0)
    s_barrier
    """)
    a.lab("k2_nobar")
    if DBG == 1:
        dbg_ts(a, 1)
    a(f"""
    ds_read_b128 {v(KB[0],4)}, v{KA}
    ds_read_b128 {v(KB[1],4)}, v{KA} offset:{TP}
    ds_read_b128 {v(V0B[0],4)}, v{VA0}
    ds_read_b128 {v(V1B[0],4)}, v{VA1}
    s_waitcnt lgkmcnt(3)
    v_mfma_f32_32x32x16_bf16 {v(SB[0],16)}, {v(KB[0],4)}, {v(Q,4)}, {v(NEGM,16)}
    s_nop 9
    """)
    a.lab("k2_loop")
    a(f"""
    s_bitcmp1_b32 0x0a, s25
    s_cbranch_scc1 k2_poll
    """)
    a.lab("k2_body")
    if DBG == 2:
        for k in range(7):
            a(f"s_mov_b32 s{64+2*k}, s{66+2*k}")
        a("s_memtime s[78:79]")
    U = 8
    PS = E("K2_PS", 46)
    for i in range(U):
        p, q = i % 2, (i + 1) % 2
        Sc, Sn = SB[p], SB[q]
        ex = lambda j: a(f"v_exp_f32 v{Sc+j}, v{Sc+j}")
        a.lab(f"k2_t{i}")
        ex(0); ex(1)
        a("s_waitcnt lgkmcnt(0)")
        a(f"v_smfmac_f32_32x32x32_bf16 {v(O,16)}, {v(V1B[q],4)}, {v(Sn+8,8)}, v{IDX}")
        a(f"ds_read_b128 {v(KB[p],4)}, v{KA} offset:{(i+2)*TP}")
        ex(2)
        a(f"ds_read_b128 {v(V0B[q],4)}, v{VA0} offset:{(i+1)*TP}")
        ex(3)
        a(f"ds_read_b128 {v(V1B[q],4)}, v{VA1} offset:{(i+1)*TP}")
        ex(4)
        a(f"v_mfma_f32_32x32x16_bf16 {v(Sn,16)}, {v(KB[q],4)}, {v(Q,4)}, {v(NEGM,16)}")
        for j in range(5, 10):
            ex(j)
        a(f"v_smfmac_f32_32x32x32_bf16 {v(O,16)}, {v(V0B[p],4)}, {v(Sc,8)}, v{IDX}")
        for j in range(10, 16):
            ex(j)
            if j == 11 and i == PS % U and E("K2_PRIO", 1) == 1:
                a(f"""
                s_cmp_lg_u32 s25, {PS // U}
                s_cbranch_scc1 k2_ps
                s_setprio 0
                """)
                a.lab("k2_ps")
            if i == U - 1:
                if j == 11:
                    a(f"v_add_u32 v{KA}, {U*TP}, v{KA}")
                if j == 12:
                    a(f"v_add_u32 v{VA0}, {U*TP}, v{VA0}")
                if j == 13:
                    a(f"v_add_u32 v{VA1}, {U*TP}, v{VA1}")
                    a("s_add_u32 s25, s25, 1")
                if j == 14:
                    a(f"s_cmp_lt_u32 s25, {64//U}")
    a(f"""
    s_cbranch_scc1 k2_loop
    {"s_cbranch_execz k2_cv_ret" if WALK else "s_nop 0"}
    v_smfmac_f32_32x32x32_bf16 {v(O,16)}, {v(V1B[1],4)}, {v(SB[1]+8,8)}, v{IDX}
    s_waitcnt lgkmcnt(0)
    s_nop 10
    v_mul_f32 v23, 0, v{O+8}
    """)
    if DBG == 1:
        dbg_ts(a, 4)
    for j in range(8):
        a(f"v_fma_f32 v23, 0, v{O+j}, v23")
    a(f"""
    v_add_f32 v23, v23, v{O+8}
    v_mov_b32 v24, {fl(2.0**100)}
    v_cmp_nlt_f32 vcc, v23, v24
    v_rcp_f32 v25, v{O+8}
    s_cmp_lg_u32 s24, 0
    s_cbranch_scc1 k2_store
    s_cmp_lg_u64 vcc, 0
    s_cbranch_scc1 k2_fallback
    """)
    a.lab("k2_store")
    for j in range(8):
        a(f"v_mul_f32 v{O+j}, v25, v{O+j}")
    for j in range(4):
        a(f"v_cvt_pk_bf16_f32 v{24+j}, v{O+2*j}, v{O+2*j+1}")
    a(f"buffer_store_dwordx4 v[24:27], v1, s[44:47], s12 offen{STF}")
    dbg_end(a, 1)
    a("s_endpgm")
    a.lab("k2_poll")
    a(f"""
    ds_read_b64 v[{FLV+2}:{FLV+3}], v{FLV}
    s_waitcnt lgkmcnt(0)
    v_readfirstlane_b32 s26, v{FLV+2}
    v_readfirstlane_b32 s27, v{FLV+3}
    s_cmp_eq_u32 s25, 1
    s_cselect_b32 s26, s26, s27
    s_cmp_lt_u32 s26, 4
    s_cbranch_scc1 k2_poll
    """)
    if DBG == 1:
        a("s_mov_b32 s68, s70")
        dbg_ts(a, 3)
    a("s_branch k2_body")
    a.lab("k2_fallback")
    a(f"""
    s_mov_b32 s24, 1
    s_mov_b32 s25, 0
    v_mov_b32 v23, 0xff800000
    v_add_u32 v{KA}, {63*TP}, v1
    """)
    zero_init()
    a.lab("k2_fb_loop")
    a(f"""
    ds_read_b128 {v(KB[0],4)}, v{KA}
    v_subrev_u32 v{KA}, {TP}, v{KA}
    s_waitcnt lgkmcnt(0)
    v_mfma_f32_32x32x16_bf16 {v(SB[0],16)}, {v(KB[0],4)}, {v(Q,4)}, 0
    s_nop 11
    """)
    for j in range(0, 16, 2):
        a(f"v_max3_f32 v23, v23, v{SB[0]+j}, v{SB[0]+j+1}")
    a(f"""
    s_add_u32 s25, s25, 1
    s_cmp_lt_u32 s25, 64
    s_cbranch_scc1 k2_fb_loop
    s_branch k2_start
    """)

    NC0 = E("K2_NC0", 0)
    FA = E("K2_FA", 8)

    def tile_dma():
        a(f"""
        s_add_u32 m0, m0, {4*TP}
        s_add_u32 s10, s10, 8192
        buffer_load_dwordx4 v1, s[44:47], s10 offen lds
        buffer_load_dwordx4 v1, s[44:47], s10 offen offset:1024 lds
        """)

    def bump(off):
        a(f"""
        s_mov_b64 exec, 1
        ds_add_u32 v2, v3 offset:{off}
        s_mov_b64 exec, -1
        """)

    def poll(off, name, after):
        BK = E("K2_BK", 4)
        a(f"s_setprio {E('K2_PP', 0)}")
        a(f"s_branch {name}_in")
        a.lab(name)
        for _ in range(BK):
            a("s_nop 15")
        a.lab(name + "_in")
        a(f"""
        ds_read_b32 v15, v2 offset:{off}
        s_waitcnt lgkmcnt(0)
        v_readfirstlane_b32 s26, v15
        s_cmp_lt_u32 s26, 4
        s_cbranch_scc1 {name}
        s_setprio {after}
        """)

    a.lab("k2_conv")
    a(f"""
    s_sub_u32 s3, s3, 8             ; j
    s_and_b32 s22, s3, 1            ; channel
    s_lshr_b32 s23, s3, 1           ; half
    s_mul_i32 s12, s22, {CV_CH}
    s_add_u32 s12, s12, {CV_BASE}
    v_mov_b32 v2, {K2_FL}
    v_mov_b32 v3, 1
    v_mov_b32 v8, 0
    v_mov_b32 v9, 0
    v_mov_b32 v10, 0
    v_mov_b32 v11, 0
    v_lshlrev_b32 v5, 3, v0
    v_add_u32 v6, s12, v1
    v_add_u32 v14, s12, v5
    s_cmp_ge_u32 s3, 2
    s_cbranch_scc1 k2_cv_i1
    ds_write_b64 v14, v[8:9] offset:{CV_U+4096}
    s_mov_b64 exec, 3
    ds_write_b128 v6, v[8:11]
    ds_write_b128 v6, v[8:11] offset:{CV_KS}
    v_add_u32 v4, v2, v1
    ds_write_b128 v4, v[8:11]
    s_mov_b64 exec, -1
    s_branch k2_cv_i2
    """)
    a.lab("k2_cv_i1")
    a(f"""
    s_lshl_b32 s13, s22, 4
    v_mul_u32_u24 v4, {TP}, v0
    s_cmp_eq_u32 s22, 0
    s_cselect_b32 s14, 0x3f803f80, 0
    v_add_u32 v4, s13, v4
    v_mov_b32 v8, s14
    v_mov_b32 v9, s14
    v_mov_b32 v10, s14
    v_mov_b32 v11, s14
    ds_write_b128 v4, v[8:11] offset:2048
    """)
    a.lab("k2_cv_i2")
    a(f"""
    s_lshl_b32 s6, s4, 6
    s_lshl_b32 s7, s5, 1
    s_add_u32 s6, s6, s7            ; d0
    s_add_u32 s11, s6, s22
    s_mul_i32 s11, s11, {KD_PITCH}
    s_add_u32 s11, s11, {KD}
    v_lshlrev_b32 v4, 2, v0
    v_lshlrev_b32 v7, 5, v0
    v_add_u32 v7, s12, v7
    v_lshlrev_b32 v12, 13, v0       ; u voffset
    s_lshl_b32 s13, s3, 19
    s_lshl_b32 s14, s6, 1
    s_add_u32 s13, s13, s14         ; u soffset
    s_add_u32 s27, s13, 4096
    s_mov_b32 s14, 0x01000100
    s_mov_b32 s15, 0x03020302
    s_mov_b32 s28, 0x05040302
    s_mov_b32 s29, 0x05040100
    s_mov_b32 s30, 0x07060302
    s_waitcnt lgkmcnt(0)
    s_mov_b32 s44, s40
    s_and_b32 s45, s41, 0xffff
    buffer_load_dwordx4 v1, s[44:47], s10 offen lds
    buffer_load_dwordx4 v1, s[44:47], s10 offen offset:1024 lds
    """)
    for i in range(NC0):
        tile_dma()
    if WALK:
        ent = [int(x) for x in os.environ.get("K2_ENT", "0,2,4,6").split(",")]
        a(f"""
        v_mov_b32 v28, 0
        v_mov_b32 v29, 0
        v_mov_b32 v30, 0
        v_mov_b32 v31, 0
        v_mov_b32 v{FLV}, 0
        s_mov_b32 s24, 1
        s_mov_b32 s25, 7
        s_mov_b64 exec, 0
        """)
        for j in range(4):
            tgt = f"k2_t{ent[j]}" if ent[j] < 8 else "k2_cv_ret"
            if j < 3:
                a(f"""
                s_cmp_eq_u32 s3, {j}
                s_cbranch_scc1 {tgt}
                """)
            else:
                a(f"s_branch {tgt}")
        a.lab("k2_cv_ret")
        a("s_mov_b64 exec, -1")
    srd(a, 52, 18, 2048 * 1024 * 2)
    srd(a, 48, 16, 512 * 512 * 2)
    srd(a, 56, 20, 2048 * 512 * 2)
    if E("K2_DL", 1):
        a(f"""
        s_add_u32 s31, s10, {8192*(FA-NC0)}
        s_add_u32 s33, s10, {8192*(13-NC0)}
        .p2align 7
        """)
    a(f"""
    s_waitcnt vmcnt({2*NC0})
    s_barrier
    s_setprio {E('K2_CP0', 2)}
    """)
    if E("K2_DL", 1):
        for nm, lim in (("k2_dl0", 31), ("k2_dl1", 33)):
            a.lab(nm)
            a(f"""
            s_add_u32 m0, m0, {4*TP}
            s_add_u32 s10, s10, 8192
            buffer_load_dwordx4 v1, s[44:47], s10 offen lds
            s_cmp_lt_u32 s10, s{lim}
            buffer_load_dwordx4 v1, s[44:47], s10 offen offset:1024 lds
            s_cbranch_scc1 {nm}
            """)
            if lim == 31:
                a(f"s_waitcnt vmcnt({2*(FA-4)})")
                bump(0)
    else:
      for i in range(NC0, 13):
        tile_dma()
        if i + 1 == FA:
            a(f"s_waitcnt vmcnt({2*(FA-4)})")
            bump(0)
    UR = 64
    a(f"""
    s_cmp_lg_u32 s23, 0
    s_cbranch_scc1 k2_cv_l1
    buffer_load_dwordx3 v[72:74], v5, s[44:47], s11 offen
    buffer_load_dwordx2 v[76:77], v4, s[44:47], s11 offen offset:512
    buffer_load_dwordx2 v[78:79], v4, s[44:47], s11 offen offset:768
    s_waitcnt vmcnt(3)
    s_branch k2_cv_l2
    """)
    a.lab("k2_cv_l1")
    a(f"""
    buffer_load_dwordx2 v[80:81], v4, s[44:47], s11 offen offset:1024
    s_waitcnt vmcnt(1)
    """)
    a.lab("k2_cv_l2")
    bump(4)
    dbg_ts(a, 0)
    for e in range(8):
        a(f"buffer_load_dword v{UR+e}, v12, s[56:59], s{13 if e < 4 else 27} offen offset:{(e&3)*1024}")
    a(f"""
    s_waitcnt vmcnt(8)
    s_cbranch_scc1 k2_cv_e1
    """)
    EE = lambda d, r: a(f"v_perm_b32 v{d}, v{r}, v{r}, s14")
    OO = lambda d, r: a(f"v_perm_b32 v{d}, v{r}, v{r}, s15")
    EO = lambda d, r: a(f"v_mov_b32 v{d}, v{r}")
    OE = lambda d, r: a(f"v_perm_b32 v{d}, v{r+1}, v{r}, s28")
    FF = lambda d, r: a(f"v_perm_b32 v{d}, v{r+1}, v{r+1}, s14")
    a(f"ds_write_b64 v14, v[72:73] offset:32")
    OE(8, 72)
    OE(9, 73)
    a(f"ds_write_b64 v14, v[8:9] offset:{32+CV_KS}")
    EE(24, 76); OE(25, 76); EO(26, 76); FF(27, 76)
    a(f"ds_write_b64 v14, v[24:25] offset:{32+512}")
    a(f"ds_write_b64 v14, v[26:27] offset:{32+512+CV_KS}")
    for d, f in zip(range(16, 24), (EE, EO, OO, FF, EE, OO, OE, FF)):
        f(d, 78)
    a(f"ds_write_b128 v6, v[16:19] offset:{32+1024}")
    a(f"ds_write_b128 v6, v[20:23] offset:{32+1024+CV_KS}")
    a(f"""
    v_lshlrev_b32 v28, 16, v72
    s_mov_b64 exec, 1
    ds_write_b32 v6, v28 offset:{CV_KS+28}
    s_mov_b64 exec, -1
    s_branch k2_cv_e2
    """)
    a.lab("k2_cv_e1")
    for d, f in zip(range(24, 40), (EE, EE, EO, OO, OO, OO, FF, FF, EE, EE, OO, OO, OO, OE, FF, FF)):
        f(d, 80)
    a(f"ds_write_b128 v7, v[24:27] offset:{32+2048}")
    a(f"ds_write_b128 v7, v[28:31] offset:{32+2048+16}")
    a(f"ds_write_b128 v7, v[32:35] offset:{32+2048+CV_KS}")
    a(f"ds_write_b128 v7, v[36:39] offset:{32+2048+16+CV_KS}")
    a.lab("k2_cv_e2")
    AF, BF, AC = 32, 64, 96
    a(f"""
    s_lshl_b32 s13, s3, 10
    s_sub_u32 s13, {CV_BASE + CV_U + 4080}, s13
    v_sub_u32 v8, s13, v1
    v_and_b32 v13, 15, v0           ; r / c
    v_lshrrev_b32 v14, 4, v0        ; g
    v_add_u32 v15, 1, v13
    v_lshrrev_b32 v16, 1, v15
    v_lshl_add_u32 v16, v14, 2, v16
    v_lshlrev_b32 v16, 2, v16
    v_and_b32 v15, 1, v15           ; r even
    v_mul_u32_u24 v15, {CV_KS}, v15
    s_lshl_b32 s13, s23, 8
    s_add_u32 s13, s13, s12
    v_add3_u32 v4, v15, v16, s13
    v_add_u32 v5, 1024, v4
    v_add_u32 v6, 2048, v4
    v_add_u32 v7, 3072, v4
    v_lshlrev_b32 v15, 5, v13
    v_lshlrev_b32 v16, 4, v14
    v_sub_u32 v12, v16, v15
    s_add_u32 s13, s13, {CV_U + 480}
    v_add_u32 v12, s13, v12
    v_lshlrev_b32 v13, 15, v13
    v_lshl_add_u32 v13, v14, 13, v13
    s_lshl_b32 s11, s5, 2
    s_add_u32 s11, s11, s3
    s_lshl_b32 s11, s11, 12
    v_lshlrev_b32 v9, 6, v0
    s_waitcnt vmcnt(0)
    buffer_load_dword v10, v9, s[48:51], s11 offen
    """)
    dbg_ts(a, 1)
    for d in range(4):
        a(f"v_perm_b32 v{16+d}, v{UR+6-2*d}, v{UR+7-2*d}, s29")
    for d in range(4):
        a(f"v_perm_b32 v{20+d}, v{UR+6-2*d}, v{UR+7-2*d}, s30")
    a(f"""
    ds_write_b128 v8, v[16:19]
    ds_write_b128 v8, v[20:23] offset:{CV_CH}
    s_waitcnt lgkmcnt(0)
    """)
    bump(8)
    poll(8, "k2_pc", E("K2_CPRIO", 0))
    dbg_ts(a, 2)
    if E("X_NOCONV", 0):
        a("s_branch k2_cv_out")
    PACE = E("K2_PACE", -1)
    for it in range(4):
        for m in range(8):
            base = 4 + m // 2
            o = 128 * (m & 1) + 16 * it
            a(f"ds_read2_b32 {v(AF+4*m,2)}, v{base} offset0:{o} offset1:{o+1}")
            a(f"ds_read2_b32 {v(AF+4*m+2,2)}, v{base} offset0:{o+2} offset1:{o+3}")
            a(f"ds_read_b128 {v(BF+4*m,4)}, v12 offset:{512*(7-m)+64*it}")
        for t in range(8):
            a(f"s_waitcnt lgkmcnt({min(15, 3*(7-t))})")
            prs = [(m, kk) for m in range(t + 1) for kk in range(t + 1) if max(m, kk) == t and m + kk <= 7]
            prs.sort(key=lambda x: (x[0] < x[1], x[0] + x[1]))
            for m, kk in prs:
                d = v(AC + 4 * (m + kk), 4)
                first = it == 0 and (m, kk) == min([(x, m + kk - x) for x in range(m + kk + 1)], key=lambda y: (max(y), y[0] < y[1]))
                a(f"v_mfma_f32_16x16x32_bf16 {d}, {v(AF+4*m,4)}, {v(BF+4*kk,4)}, {'0' if first else d}")
                if PACE >= 0:
                    a(f"s_nop {PACE}")
    dbg_ts(a, 3)
    bump(12)
    a(f"""
    v_add_u32 v4, {CV_BASE}, v1
    s_lshl_b32 s8, s3, 20
    s_lshl_b32 s9, s6, 1
    s_add_u32 s8, s8, s9
    s_add_u32 s9, s8, {256*2048}
    s_add_u32 s10, s8, 4096
    s_add_u32 s11, s9, 4096
    """)
    poll(12, "k2_pd", E("K2_CP0", 2))
    a(f"""
    s_cmp_eq_u32 s3, 1
    s_cbranch_scc1 k2_cx1
    s_cmp_eq_u32 s3, 2
    s_cbranch_scc1 k2_cx2
    s_cmp_eq_u32 s3, 3
    s_cbranch_scc1 k2_cx3
    """)
    for w in range(4):
        a.lab(f"k2_cx{w}")
        for o in range(4):
            if o == w:
                continue
            k = w if w < o else w - 1
            a(f"ds_write_b128 v4, {v(AC+8*o,4)} offset:{(3*o+k)*2048}")
            a(f"ds_write_b128 v4, {v(AC+8*o+4,4)} offset:{(3*o+k)*2048+1024}")
        a("s_waitcnt lgkmcnt(0)")
        bump(16)
        poll(16, f"k2_pe{w}", E("K2_CP0", 2))
        regs = {w: AC + 8 * w}
        for sw in range(4):
            if sw == w:
                continue
            k = sw if sw < w else sw - 1
            regs[sw] = 32 + 8 * k
            a(f"ds_read_b128 {v(32+8*k,4)}, v4 offset:{(3*w+k)*2048}")
            a(f"ds_read_b128 {v(36+8*k,4)}, v4 offset:{(3*w+k)*2048+1024}")
        a("s_waitcnt lgkmcnt(0)")
        for ch in range(2):
            for jj in range(0, 8, 2):
                a(f"v_pk_add_f32 {v(64+8*ch+jj,2)}, {v(regs[ch]+jj,2)}, {v(regs[ch+2]+jj,2)}")
        if w < 3:
            a("s_branch k2_cv_out")
    a.lab("k2_cv_out")
    dbg_ts(a, 4)
    for jj in range(8):
        a(f"v_cvt_pk_bf16_f32 v{16+jj}, v{64+jj}, v{72+jj}")
    for cb in range(2):
        for jj in range(4):
            so = 8 + cb + 2 * (jj // 2)
            a(f"buffer_store_dword v{16+4*cb+jj}, v13, s[52:55], s{so} offen offset:{(jj%2)*2048}{CVF}")
    if E("K2_WB", 0):
        a("""
        s_waitcnt vmcnt(0)
        buffer_wbl2 sc1
        """)
    dbg_end(a, 1)
    a("@touch k3")
    a.lab("k2_end")
    a("s_endpgm")
    return a, desc("k2_kernel", 128)


K3_LDS = 131072


def gen_k3():
    a = Asm()
    head(a, "k3_kernel")
    a(f"""
    s_cmp_ge_u32 s2, 256
    s_cbranch_scc1 k3_end
    """)
    dbg_start(a)
    a(f"""
    s_load_dwordx2 s[40:41], s[0:1], 112
    s_load_dwordx4 s[16:19], s[0:1], 88
    v_lshrrev_b32 v1, 6, v0
    v_and_b32 v0, 63, v0
    s_and_b32 s4, s2, 7
    v_readfirstlane_b32 s3, v1
    v_readfirstlane_b32 s94, v1
    s_lshr_b32 s5, s2, 3
    v_lshlrev_b32 v1, 4, v0
    s_lshl_b32 s6, s4, 2
    s_lshr_b32 s7, s5, 3
    s_add_u32 s6, s6, s7            ; rt
    s_and_b32 s7, s5, 7             ; ct
    s_and_b32 s10, s3, 1
    s_bfe_u32 s11, s3, 0x10001
    s_cmp_ge_u32 s3, 4
    s_cbranch_scc1 k3_mm
    s_lshl_b32 s12, s3, 11
    s_lshl_b32 s8, s6, 16
    s_lshl_b32 s9, s11, 15
    s_add_u32 s8, s8, s9
    s_lshl_b32 s9, s10, 11
    s_add_u32 s8, s8, s9
    s_add_u32 s8, s8, {OI}          ; O base
    v_lshrrev_b32 v2, 3, v0         ; row
    v_and_b32 v3, 7, v0
    v_bfe_u32 v4, v0, 4, 1
    v_lshlrev_b32 v4, 2, v4
    v_xor_b32 v3, v3, v4
    v_lshlrev_b32 v2, 10, v2
    v_lshl_add_u32 v2, v3, 4, v2
    v_add_u32 v3, {8192-1024}, v2
    s_lshl_b32 s9, s7, 7
    s_lshl_b32 s13, s3, 14
    s_add_u32 s9, s9, s13
    s_and_b32 s60, s7, {E("K3_ROT", 0)}
    s_mov_b32 s46, {hex(WS_BYTES)}
    s_mov_b32 s47, 0x00020000
    s_mov_b32 s50, {hex(512*512*2)}
    s_mov_b32 s51, 0x00020000
    s_waitcnt lgkmcnt(0)
    s_mov_b32 s44, s40
    s_and_b32 s45, s41, 0xffff
    s_mov_b32 s48, s16
    s_and_b32 s49, s17, 0xffff
    """)

    def chunk(c):
        a(f"""
        s_add_u32 m0, s12, {c*16384}
        s_lshl_b32 s14, s60, 12
        s_add_u32 s14, s14, s8
        buffer_load_dwordx4 v1, s[44:47], s14 offen lds
        buffer_load_dwordx4 v1, s[44:47], s14 offen offset:1024 lds
        s_add_u32 m0, s12, {c*16384 + 8192}
        s_lshl_b32 s14, s60, 16
        s_add_u32 s14, s14, s9
        buffer_load_dwordx4 v2, s[48:51], s14 offen lds
        buffer_load_dwordx4 v3, s[48:51], s14 offen offset:1024 lds
        s_add_u32 s60, s60, 1
        s_and_b32 s60, s60, 7
        """)

    LA = E("K3_LA", 4)
    for c in range(LA):
        chunk(c)
    dbg_ts(a, 0)
    for b in range(8):
        a(f"s_waitcnt vmcnt({4*(min(8, b+LA) - b - 1)})")
        a("s_barrier")
        if b + LA < 8:
            chunk(b + LA)
    dbg_end(a, 2)
    a("s_endpgm")

    a.lab("k3_mm")
    a(f"""
    s_lshl_b32 s12, s10, 12
    v_add_u32 v2, s12, v1
    v_lshrrev_b32 v5, 5, v0         ; h
    v_bfe_u32 v3, v0, 2, 2
    v_lshl_add_u32 v3, v5, 2, v3    ; row = 4h + (i>>2)
    v_lshlrev_b32 v3, 7, v3
    v_bfe_u32 v4, v0, 3, 1
    v_xor_b32 v4, s11, v4
    v_lshl_add_u32 v3, v4, 6, v3
    v_and_b32 v4, 1, v0
    v_lshl_add_u32 v3, v4, 5, v3    ; + 16*(c&1) cols
    v_bfe_u32 v4, v0, 4, 1
    v_lshl_add_u32 v3, v4, 4, v3    ; + 8G cols
    v_bfe_u32 v4, v0, 1, 1
    v_lshl_add_u32 v3, v4, 3, v3    ; + 4*(c>>1) cols
    v_add_u32 v3, 8192, v3
    v_add_u32 v6, 65536, v2
    v_add_u32 v7, 65536, v3
    s_lshl_b32 s12, s6, 1
    s_add_u32 s12, s12, s10
    s_lshl_b32 s12, s12, 16         ; (2rt+qh)*32*2048
    s_lshl_b32 s13, s7, 1
    s_add_u32 s13, s13, s11
    s_lshl_b32 s13, s13, 6
    s_add_u32 s12, s12, s13
    s_add_u32 s12, s12, 1024
    s_add_u32 s13, s12, {16*2048}
    s_lshl_b32 s14, s3, 12
    v_and_b32 v4, 31, v0
    v_mul_u32_u24 v4, 80, v4
    v_lshl_add_u32 v4, v5, 5, v4
    v_add_u32 v4, s14, v4
    v_lshrrev_b32 v5, 2, v0
    v_and_b32 v9, 3, v0
    v_lshlrev_b32 v9, 4, v9
    v_lshl_add_u32 v8, v5, 11, v9
    v_mul_u32_u24 v5, 80, v5
    v_add3_u32 v5, v5, v9, s14
    s_waitcnt lgkmcnt(0)
    """)
    srd(a, 52, 18, 2048 * 1024 * 2)
    if DBG:
        srd(a, 44, 40, WS_BYTES)
    D = 80
    for c in range(8):
        a("s_barrier")
        if c in (0, 4, 7):
            dbg_ts(a, {0: 1, 4: 2, 7: 3}[c])
        F = 16 + 32 * (c % 2)
        ob, wb = (2, 3) if c < 4 else (6, 7)
        so = (c % 4) * 16384
        for i in range(4):
            a(f"ds_read_b128 {v(F+8*i,4)}, v{ob} offset:{so + i*1024}")
            a(f"ds_read_b64_tr_b16 {v(F+8*i+4,2)}, v{wb} offset:{so + i*2048}")
            a(f"ds_read_b64_tr_b16 {v(F+8*i+6,2)}, v{wb} offset:{so + i*2048 + 1024}")
        for i in range(4):
            a(f"s_waitcnt lgkmcnt({9-3*i})")
            cc = "0" if (c == 0 and i == 0) else v(D, 16)
            a(f"v_mfma_f32_32x32x16_bf16 {v(D,16)}, {v(F+8*i+4,4)}, {v(F+8*i,4)}, {cc}")
    a("s_nop 11")
    dbg_ts(a, 4)
    for j in range(4):
        a(f"v_cvt_pk_bf16_f32 v{16+j}, v{D+2*j}, v{D+2*j+1}")
    a("ds_write_b128 v4, v[16:19]")
    for j in range(4, 8):
        a(f"v_cvt_pk_bf16_f32 v{16+j}, v{D+2*j}, v{D+2*j+1}")
    a(f"""
    ds_write_b128 v4, v[20:23] offset:16
    ds_read_b128 v[24:27], v5
    ds_read_b128 v[28:31], v5 offset:{16*80}
    s_waitcnt lgkmcnt(1)
    buffer_store_dwordx4 v[24:27], v8, s[52:55], s12 offen
    s_waitcnt lgkmcnt(0)
    buffer_store_dwordx4 v[28:31], v8, s[52:55], s13 offen
    """)
    dbg_end(a, 2)
    a.lab("k3_end")
    a("s_endpgm")
    return a, desc("k3_kernel", 96)


def isize(l):
    t = l.split(";")[0].strip()
    if not t or t.endswith(":") or t.startswith((".", "@")):
        return 0
    op = t.split()[0]
    if op.startswith(("buffer_", "global_", "ds_", "v_mfma", "v_smfmac", "v_pk", "v_cvt_pk", "v_lshl_", "v_bfe", "v_fma_", "v_max3", "v_perm_",
                      "v_add3", "s_load", "s_mem", "v_readlane")) or "_dpp" in op or "_e64" in op:
        return 8
    import re
    for m in re.findall(r"[ ,](0x[0-9a-f]+|\d+)(?=,|$)", t if not op.startswith(("s_nop", "s_setprio")) else ""):
        if int(m, 0) > 64:
            return 8
    return 4


def add_stops(a, k, ranges, sp, tgt='end', first=True):
    out, names, on, acc = [], [], False, 0
    for l in a.L:
        if any(l == r[1] + ":" for r in ranges):
            on = False
        if on and acc >= sp and isize(l):
            names.append(f"{k}_s{len(names)}")
            out += [names[-1] + ":", f"    s_cbranch_execz {k}_{tgt}"]
            acc = 4
        out.append(l)
        acc += isize(l)
        if any(l == r[0] + ":" for r in ranges):
            on, acc = True, (sp if first else 0)
    a.L = out
    return names


def add_touch(a, k, names):
    i = a.L.index(f"    @touch {k}")
    L = []
    if names:
        assert len(names) <= 64, len(names)
        L = [f"s_bfe_u32 s92, s2, {0x30003 if len(names) <= 32 else 0x40003}", "s_and_b32 s93, s94, 3", "s_lshl2_add_u32 s92, s92, s93", "s_mov_b64 exec, 0"]
        for j, n in enumerate(names):
            L += [f"s_cmp_eq_u32 s92, {j}", f"s_cbranch_scc1 {n}"]
        if k != "k1":
            L.append("s_endpgm")
        else:
            assert a.L[i + 1] == "k1_ret:" and a.L[i + 2].strip() == "s_mov_b64 exec, -1"
    a.L[i:i+1] = ["    " + l for l in L]


def build():
    ks = [gen_k1(), gen_k2(), gen_k3()]
    sp = E("TCH", 256)
    n2 = add_stops(ks[1][0], "k2", [("k2_kernel", "k2_fallback"), ("k2_conv", os.environ.get("TCH_E", "k2_cv_e1"))], sp) if sp else []
    n3 = add_stops(ks[2][0], "k3", [("k3_kernel", "k3_end")], sp) if sp else []
    if E("CHAIN", 0):
        L = ks[2][0].L
        i = L.index("k3_kernel:") + 1
        ch = []
        for j in range(E("CHAIN", 0)):
            ch += [f"    s_branch k3_c{j}", ".p2align 9", f"k3_c{j}:", "    s_cbranch_execz k3_end"]
            if E("CHAIN_T", 0):
                n3.append(f"k3_c{j}")
        L[i:i] = ch
    print("stops", len(n2), len(n3), file=sys.stderr)
    s1 = E("TCH1", 256)
    n1 = add_stops(ks[0][0], "k1", [("k1_ret", "k1_end")], s1, "ret", False) if s1 else []
    if E("TCH1R", 1):
        L = ks[0][0].L
        il = L.index("k1_load:")
        n1 = [n for n in n1 if L.index(n + ":") > il] + [n for n in n1 if L.index(n + ":") < il]
    print("stops1", len(n1), file=sys.stderr)
    add_touch(ks[0][0], "k1", n1)
    add_touch(ks[0][0], "k2", n2)
    add_touch(ks[1][0], "k3", n3)
    hdr = [
        "; generated by work/gen.py",
        f"; @launch kernel=k1_kernel grid=(256,1,1) block=(768,1,1) lds={K1_LDS}",
        f"; @launch kernel=k2_kernel grid=(256,1,1) block=(768,1,1) lds={K2_LDS}",
        f"; @launch kernel=k3_kernel grid=(256,1,1) block=(512,1,1) lds={K3_LDS}",
    ]
    out = "\n".join(hdr) + "\n"
    out += '.amdgcn_target "amdgcn-amd-amdhsa--gfx950"\n.text\n'
    for a, d in ks:
        out += a.text()
    out += '.section .rodata,"a"\n'
    for a, d in ks:
        out += d
    return out


if __name__ == "__main__":
    path = sys.argv[1] if len(sys.argv) > 1 else f"cdna_kernels/{NAME}.s"
    open(path, "w").write(build())
    print("wrote", path)
```
